```python
import torch

def _softmax(x, axis=-1):
    return torch.softmax(x, dim=axis)
def _gelu(x):
    return torch.nn.functional.gelu(x, approximate="tanh")
def _silu(x):
    return torch.nn.functional.silu(x)
def _sigmoid(x):
    return torch.sigmoid(x)
def _layernorm(x, axis=-1, eps=1e-5):
    m = x.mean(dim=axis, keepdim=True)
    v = x.var(dim=axis, keepdim=True, unbiased=False)
    return (x - m) / torch.sqrt(v + eps)
def _scatter_add(tgt, idx, src, axis=0):
    return tgt.clone().index_add_(axis, idx, src)
def _segment_sum(src, seg, n):
    out = torch.zeros((n,) + src.shape[1:], dtype=src.dtype)
    return out.index_add_(0, seg, src)
def _pad(x, pw):
    flat = tuple(v for pair in reversed(pw) for v in pair)
    return torch.nn.functional.pad(x, flat)

kernel_name = 'parallel_sum__sliding_block__glu_gated_bilinear__prompt'

def setup_inputs():

    _w = (lambda a: (lambda t: t.to(torch.bfloat16) if t.is_floating_point() else t)(torch.as_tensor(a)))
    def _A_setup():
        B, S, D = 1, 2048, 448
        return {
            "x": _w((lambda *s: torch.randn(*s, dtype=torch.bfloat16) * 0.05)(B, S, D)),
            "wqkv": _w((lambda *s: torch.randn(*s, dtype=torch.bfloat16) * 0.05)(D, 3 * D)),
            "wo": _w((lambda *s: torch.randn(*s, dtype=torch.bfloat16) * 0.05)(D, D)),
        }
    _A_in = _A_setup()

    def _B_setup():
        B, S, D, F = 1, 2048, 448, 1792
        return {
            "x": _w((lambda *s: torch.randn(*s, dtype=torch.bfloat16) * 0.05)(B, S, D)),
            "w_gate": _w((lambda *s: torch.randn(*s, dtype=torch.bfloat16) * 0.8)(D, F) * (D ** -0.5)),
            "w_up": _w((lambda *s: torch.randn(*s, dtype=torch.bfloat16) * 0.8)(D, F) * (D ** -0.5)),
            "w_down": _w((lambda *s: torch.randn(*s, dtype=torch.bfloat16) * 0.8)(F, D) * (F ** -0.5)),
        }
    _B_in = _B_setup()

    return {
        "A_x": _A_in["x"],
        "A_wqkv": _A_in["wqkv"],
        "A_wo": _A_in["wo"],
        "B_x": _B_in["x"],
        "B_w_gate": _B_in["w_gate"],
        "B_w_up": _B_in["w_up"],
        "B_w_down": _B_in["w_down"],
    }

def reference(A_x, A_wqkv, A_wo, B_x, B_w_gate, B_w_up, B_w_down):
    def _A_ref(x, wqkv, wo):
        B, S, D = x.shape
        H = 16; Dh = D // H; W = 256
        qkv = (lambda x, *d: x.permute(*d))((x @ wqkv).reshape(B, S, 3, H, Dh), 2, 0, 3, 1, 4)
        q, k, v = qkv[0], qkv[1], qkv[2]
        scores = torch.einsum("bhqd,bhkd->bhqk", q, k) * (Dh ** -0.5)
        idx = torch.arange(S)
        mask = (idx[:, None] - idx[None, :] >= 0) & (idx[:, None] - idx[None, :] < W)
        scores = torch.where(mask[None, None], scores, -1e9)
        p = _softmax(scores, axis=-1)
        o = torch.einsum("bhqk,bhkd->bhqd", p, v)
        return (lambda x, *d: x.permute(*d))(o, 0, 2, 1, 3).reshape(B, S, D) @ wo

    def _B_ref(x, w_gate, w_up, w_down):
        g = torch.einsum("bsd,df->bsf", x, w_gate)
        u = torch.einsum("bsd,df->bsf", x, w_up)
        h = g * u
        return torch.einsum("bsf,fd->bsd", h, w_down)

    x = A_x
    xn = _layernorm(x, axis=-1)
    return x + _A_ref(xn, A_wqkv, A_wo) + _B_ref(xn, B_w_gate, B_w_up, B_w_down)
```

```python
import re

class Asm:
    def __init__(self):
        self.L = []
        self.vmc = 0
        self.tags = {}
        self._br = []
    def I(self, s):
        for x in s.split("\n"):
            x = x.strip()
            if x: self.L.append(x)
    __call__ = I
    def C(self, s): self.L.append("; " + s)
    def label(self, name): self.L.append(name + ":")
    def VM(self, s, tag=None):
        self.I(s); self.vmc += 1
        if tag is not None: self.tags[tag] = self.vmc
    def tag(self, tag): self.tags[tag] = self.vmc
    def vm_n(self, *tags):
        t = max(self.tags[x] for x in tags)
        n = self.vmc - t
        assert n >= 0
        return min(n, 63)
    def wait_vm(self, *tags, lgkm=None):
        n = self.vm_n(*tags)
        s = "s_waitcnt vmcnt(%d)" % n
        if lgkm is not None: s += " lgkmcnt(%d)" % lgkm
        self.I(s)
    def br_begin(self): self._br.append([self.vmc, []])
    def br_alt_end(self):
        b = self._br[-1]; b[1].append(self.vmc - b[0]); self.vmc = b[0]
    def br_end(self):
        b = self._br.pop(); self.vmc = b[0] + min(b[1])

REG = re.compile(r"\b([vas])(\d+)\b|\b([vas])\[(\d+):(\d+)\]|\b(vcc|exec|m0)\b")
def regs(op):
    out = []
    for m in REG.finditer(op):
        if m.group(1): out.append((m.group(1), int(m.group(2))))
        elif m.group(3): out += [(m.group(3), i) for i in range(int(m.group(4)), int(m.group(5)) + 1)]
        else: out.append((m.group(6), 0))
    return out
TRANS = ("v_exp_f32", "v_log_f32", "v_rcp_f32", "v_rsq_f32", "v_sqrt_f32", "v_sin_f32", "v_cos_f32", "v_rcp_iflag_f32")
def split_ops(rest):
    ops = []; depth = 0; cur = ""
    for ch in rest:
        if ch == '[': depth += 1
        if ch == ']': depth -= 1
        if ch == ',' and depth == 0: ops.append(cur.strip()); cur = ""
        else: cur += ch
    if cur.strip(): ops.append(cur.strip())
    return ops

class Ins:
    def __init__(self, text):
        self.text = text
        t = text.split(";")[0].strip()
        p = t.split(None, 1)
        self.mn = p[0]; ops = split_ops(p[1]) if len(p) > 1 else []
        mn = self.mn
        self.mfma = mn.startswith("v_mfma")
        self.valu = mn.startswith("v_") and not self.mfma
        self.vmem = mn.startswith("buffer_") or mn.startswith("global_")
        self.ds = mn.startswith("ds_")
        self.salu = mn.startswith("s_")
        self.trans = any(mn.startswith(x) for x in TRANS)
        self.ldsdma = self.vmem and (" lds" in t or "load_lds" in mn)
        self.defs = []; self.uses = []; self.srcC = []; self.srcAB = []; self.sdata = []
        self.passes = 0
        R = [regs(o) for o in ops]
        if self.mfma:
            self.defs = R[0]; self.srcAB = R[1] + R[2]; self.srcC = R[3]; self.uses = self.srcAB + self.srcC
            self.passes = 8 if "32x32x16" in mn else 4 if "16x16x32" in mn else 2 if "4x4x4" in mn else 16
        elif self.valu:
            if mn.startswith("v_cmp"):
                self.defs = R[0]; self.uses = sum(R[1:], [])
            elif mn.startswith("v_permlane32_swap") or mn.startswith("v_permlane16_swap"):
                self.defs = R[0] + R[1]; self.uses = R[0] + R[1]
            elif mn.startswith("v_add_co") or mn.startswith("v_addc_co") or mn.startswith("v_sub_co"):
                self.defs = R[0] + R[1]; self.uses = sum(R[2:], [])
            elif mn == "v_nop": pass
            else:
                self.defs = R[0]; self.uses = sum(R[1:], [])
                if mn.startswith("v_fmac") or mn.startswith("v_dot2c"): self.uses += R[0]
                if mn.startswith("v_cndmask") and len(ops) == 3: self.uses.append(("vcc", 0))
            self.dpp = "_dpp" in mn or "row_" in t or "quad_perm" in t
        elif self.vmem:
            if "store" in mn or ("atomic" in mn):
                self.uses = sum(R, [])
                if mn.startswith("buffer_"): self.sdata = R[0]
                else: self.sdata = R[1]
                if not re.search(r"x[34]", mn): self.sdata = []
            elif self.ldsdma: self.uses = sum(R, []) + [("m0", 0)]
            elif mn in ("buffer_wbl2", "buffer_inv"): pass
            else: self.defs = R[0]; self.uses = sum(R[1:], [])
        elif self.ds:
            if "write" in mn: self.uses = sum(R, [])
            else: self.defs = R[0]; self.uses = sum(R[1:], [])
        elif self.salu:
            if mn.startswith("s_cmp") or mn.startswith("s_cbranch") or mn.startswith("s_wait") or mn.startswith("s_bitcmp") or mn in ("s_barrier", "s_nop", "s_branch", "s_endpgm", "s_sleep", "s_setprio"):
                self.uses = sum(R, [])
            else:
                self.defs = R[0] if R else []; self.uses = sum(R[1:], [])
        self.states = 1
        if mn == "s_nop": self.states = int(ops[0], 0) + 1

def need(p, c):
    n = 0
    pd = set(p.defs);
    isv = lambda s: {r for r in s if r[0] in "va" and len(r[0]) == 1}
    if p.valu:
        pv = isv(pd)
        if c.mfma and pv & set(c.uses): n = max(n, 2)
        if c.valu:
            if p.trans and not c.trans and pv & (set(c.uses)): n = max(n, 1)
            if p.trans and c.trans and pv & set(c.uses): n = max(n, 1)
            if c.mn.startswith("v_permlane") and pv & set(c.uses): n = max(n, 2)
            if getattr(c, "dpp", False) and pv & set(c.uses): n = max(n, 2)
            if (c.mn.startswith("v_readfirstlane") or c.mn.startswith("v_readlane")) and pv & set(c.uses): n = max(n, 1)
        ps = {r for r in pd if r[0] in ("s", "vcc")}
        if ps:
            if c.valu and ps & set(c.uses): n = max(n, 4 if "lane" in c.mn else 2)
            if c.vmem and ps & set(c.uses): n = max(n, 5)
            if c.salu and ps & set(c.uses): n = max(n, 1)
        if p.trans and (c.vmem or c.ds) and pv & set(c.uses): n = max(n, 1)
    if p.mfma:
        big = {2: 5, 4: 8, 8: 12, 16: 20}[p.passes]
        if c.mfma:
            if pd & set(c.srcAB): n = max(n, big)
            if pd & set(c.srcC):
                if not (p.defs == c.srcC and p.passes == c.passes): n = max(n, big - 2 if p.passes > 2 else 4)
                elif p.passes == 2: n = max(n, 2)
            elif pd & set(c.defs): n = max(n, big)
        elif (c.valu or c.vmem or c.ds) and pd & (set(c.uses) | set(c.defs)): n = max(n, big)
        if c.valu and set(p.srcC) & set(c.defs): n = max(n, {2: 1, 4: 3, 8: 7, 16: 15}[p.passes])
    if p.salu and ("m0", 0) in pd and c.ldsdma: n = max(n, 1)
    if p.vmem and p.sdata:
        if set(p.sdata) & set(c.defs): n = max(n, 2)
    return n

def pad_hazards(lines, verbose=False):
    out = []; hist = []
    snaps = {}
    nins = 0
    for ln in lines:
        s = ln.split(";")[0].strip()
        if not s or s.startswith("."):
            out.append(ln); continue
        if s.endswith(":"):
            lab = s[:-1]
            for h in snaps.pop(lab, []): hist += [[i, d] for i, d in h]
            out.append(ln); continue
        c = Ins(s)
        req = 0
        for p, d in hist:
            k = need(p, c) - d
            if k > req: req = k; who = p
        if req > 0:
            if verbose: print("pad %d before '%s' (after '%s')" % (req, s, who.text))
            nins += req
            while req > 0:
                k = min(req, 16); out.append("s_nop %d" % (k - 1)); req -= k
                for h in hist: h[1] += k
        out.append(ln)
        for h in hist: h[1] += c.states
        hist.append([c, 0])
        hist = [h for h in hist if h[1] < 24]
        if c.mn.startswith("s_cbranch") or c.mn == "s_branch":
            tgt = s.split()[-1]
            snaps.setdefault(tgt, []).append([[i, d] for i, d in hist])
            if c.mn == "s_branch": hist = []
    return out, nins
```

```python
import sys
from asmlib import Asm, pad_hazards

KN = "parallel_sum__sliding_block__glu_gated_bilinear__prompt_kernel"
FLQ, FLH, FLO = 0, 2048, 4096
QKV = 0x10000
ACT = QKV + 64 * 168 * 512
WS_BYTES = ACT + 64 * 144 * 1024
STAMP = WS_BYTES
XR, WR, MISC = 0, 65536, 131072
LDS_BYTES = 163840
SPIN_MAX = 200000

def vr(a, n=1): return "v%d" % a if n == 1 else "v[%d:%d]" % (a, a + n - 1)
def ar(a, n=1): return "a%d" % a if n == 1 else "a[%d:%d]" % (a, a + n - 1)
def sr(a, n=1): return "s%d" % a if n == 1 else "s[%d:%d]" % (a, a + n - 1)

sX, sWQKV, sG1, sG2, sWS, sWD, sWO, sOUT, sDBG = 8, 12, 16, 20, 24, 28, 32, 36, 40
sKA = 44
sW, sA, sB, sRB, sCG, sT0, sT1, sT2, sT3 = 64, 65, 66, 67, 68, 69, 70, 71, 72
sXO, sWO1, sG1O, sG2O, sG1S, sNON = 73, 74, 75, 76, 77, 78
sIDX, sXCD, sG1Q, sSPIN = 80, 81, 82, 83
sM0, sM1 = 84, 86
sE0, sE1, sE2, sE3 = 88, 89, 90, 91
sPF = 92
sH, sARB = 96, 97
sXM, sWM = 98, 99

class G:
    def __init__(self, opts):
        self.o = opts
        self.A = Asm()
        self.nlab = 0
    def lab(self, p="L"):
        self.nlab += 1; return "%s%d" % (p, self.nlab)

    def srd(self, d, ptr, size):
        A = self.A
        A("s_mov_b32 s%d, s%d" % (d, ptr)); A("s_and_b32 s%d, s%d, 0xffff" % (d + 1, ptr + 1))
        A("s_mov_b32 s%d, %d" % (d + 2, size)); A("s_mov_b32 s%d, 0x20000" % (d + 3))
    def stamp(self, i):
        if not self.o.get("stamps"): return
        A = self.A
        A("s_memtime s[100:101]"); A("s_waitcnt lgkmcnt(0)")
        A("v_mov_b32 v0, s100"); A("v_mov_b32 v3, 0")
        A("s_lshl_b32 s100, s2, 2"); A("s_add_u32 s100, s100, s%d" % sW); A("s_lshl_b32 s100, s100, 6")
        A("s_add_u32 s100, s100, %d" % (STAMP + i * 4))
        A.VM("buffer_store_dword v0, v3, s[%d:%d], s100 offen" % (sWS, sWS + 3))
    def poll(self, voff, vt, first_tag):
        A = self.A
        ok = self.lab("OK"); sp = self.lab("SPIN")
        A.wait_vm(first_tag)
        A("v_cmp_eq_u64 vcc, %s, %s" % (sr(sNON, 2), vr(vt, 2)))
        A("s_cmp_eq_u64 vcc, exec")
        A("s_cbranch_scc1 %s" % ok)
        A("s_mov_b32 s%d, 0" % sSPIN)
        A.label(sp)
        A("s_sleep 2")
        A("buffer_load_dwordx2 %s, %s, %s, 0 offen sc1" % (vr(vt, 2), vr(voff), sr(sWS, 4)))
        A("s_add_u32 s%d, s%d, 1" % (sSPIN, sSPIN))
        A("s_cmp_ge_u32 s%d, %d" % (sSPIN, SPIN_MAX))
        A("s_cbranch_scc1 %s" % ok)
        A("s_waitcnt vmcnt(0)")
        A("v_cmp_eq_u64 vcc, %s, %s" % (sr(sNON, 2), vr(vt, 2)))
        A("s_nop 1")
        A("s_cmp_eq_u64 vcc, exec")
        A("s_cbranch_scc0 %s" % sp)
        A.label(ok)

    def build(self):
        A = self.A; o = self.o
        vL = 1; vL16 = 2
        vXD = 4
        vW1D = 8
        vG1D, vG2D = 10, 11
        vXA = 12
        vW1A = 20
        vG1A, vG2A = 22, 24
        vSEL = 28
        vWF = 32
        vSX, vCS = 48, 52
        vMF = 56
        vCF = 64
        vR = 72
        vT = 76
        vXX = 96
        vP = 112
        vACC = 128
        vEX = 26
        vN = 192
        vFO = 194
        vDUM = 198

        A("s_cmp_ge_u32 s2, 256"); A("s_cbranch_scc1 L_END")
        A("s_load_dwordx16 s[44:59], s[0:1], 0"); A("s_load_dwordx4 s[60:63], s[0:1], 64")
        A("v_lshrrev_b32 v3, 6, v0"); A("v_and_b32 v%d, 63, v0" % vL)
        A("v_readfirstlane_b32 s%d, v3" % sW)
        A("v_lshlrev_b32 v%d, 4, v%d" % (vL16, vL))
        A("s_and_b32 s%d, s2, 7" % sXCD); A("s_lshr_b32 s%d, s2, 3" % sIDX)
        A("s_lshr_b32 s%d, s%d, 1" % (sA, sW)); A("s_and_b32 s%d, s%d, 1" % (sB, sW))
        A("s_and_b32 s%d, s%d, 1" % (sT0, sXCD)); A("s_lshl_b32 s%d, s%d, 3" % (sT0, sT0)); A("s_and_b32 s%d, s%d, 7" % (sT1, sIDX)); A("s_add_u32 s%d, s%d, s%d" % (sRB, sT0, sT1))
        A("s_lshr_b32 s%d, s%d, 1" % (sT0, sXCD)); A("s_lshl_b32 s%d, s%d, 2" % (sT0, sT0)); A("s_lshr_b32 s%d, s%d, 3" % (sT1, sIDX)); A("s_add_u32 s%d, s%d, s%d" % (sCG, sT0, sT1))
        A("v_lshrrev_b32 v%d, 3, v%d" % (vT, vL))
        A("v_lshrrev_b32 v%d, 4, v%d" % (vT + 1, vL))
        A("v_and_b32 v%d, 7, v%d" % (vT + 2, vL))
        A("v_xor_b32 v%d, v%d, v%d" % (vT + 3, vT + 2, vT + 1))
        A("v_mul_u32_u24 v%d, 896, v%d" % (vT + 4, vT))
        A("v_lshl_add_u32 v%d, v%d, 4, v%d" % (vXD, vT + 3, vT + 4))
        A("v_xor_b32 v%d, 64, v%d" % (vXD + 1, vXD))
        A("v_add_u32 v%d, %d, v%d" % (vXD + 1, 8 * 896, vXD + 1))
        A("v_add_u32 v%d, %d, v%d" % (vXD + 2, 16 * 896, vXD))
        A("v_add_u32 v%d, %d, v%d" % (vXD + 3, 16 * 896, vXD + 1))
        A("s_lshl_b32 s%d, s%d, 2" % (sT0, sRB)); A("s_add_u32 s%d, s%d, s%d" % (sT0, sT0, sW)); A("s_mul_i32 s%d, s%d, %d" % (sXO, sT0, 32 * 896))
        A("s_lshl_b32 s%d, s%d, 12" % (sXM, sW))
        A("v_and_b32 v%d, 1, v%d" % (vT + 5, vT + 1)); A("v_lshlrev_b32 v%d, 2, v%d" % (vT + 5, vT + 5))
        A("v_xor_b32 v%d, v%d, v%d" % (vT + 5, vT + 5, vT + 2))
        A("v_mul_u32_u24 v%d, 2688, v%d" % (vT + 6, vT))
        A("v_lshl_add_u32 v%d, v%d, 4, v%d" % (vW1D, vT + 5, vT + 6))
        A("v_add_u32 v%d, %d, v%d" % (vW1D + 1, 8 * 2688, vW1D))
        A("s_mul_i32 s%d, s%d, %d" % (sWO1, sW, 16 * 2688)); A("s_lshl_b32 s%d, s%d, 7" % (sT0, sCG)); A("s_add_u32 s%d, s%d, s%d" % (sWO1, sWO1, sT0))
        A("s_lshl_b32 s%d, s%d, 11" % (sWM, sW)); A("s_add_u32 s%d, s%d, %d" % (sWM, sWM, WR))
        A("s_waitcnt lgkmcnt(0)")
        self.srd(sX, 44, 1835008); self.srd(sWQKV, 46, 1204224)
        def dma_x(s):
            out = []
            for i in range(4):
                out.append(["s_add_u32 m0, s%d, %d" % (sXM, XR + (s % 4) * 16384 + i * 1024),
                            ("s_add_u32 s%d, s%d, 128" % (sXO, sXO)) if (i == 0 and s > 0) else "s_nop 0",
                            ("VM", "buffer_load_dwordx4 v%d, %s, s%d offen lds" % (vXD + i, sr(sX, 4), sXO), "x%d" % s)])
            return out
        def dma_w1(s):
            out = []
            for i in range(2):
                out.append(["s_add_u32 m0, s%d, %d" % (sWM, s * 8192 + i * 1024),
                            ("s_add_u32 s%d, s%d, %d" % (sWO1, sWO1, 64 * 2688)) if (i == 0 and s > 0) else "s_nop 0",
                            ("VM", "buffer_load_dwordx4 v%d, %s, s%d offen lds" % (vW1D + i, sr(sWQKV, 4), sWO1), "w%d" % s)])
            return out
        def put(item):
            for x in item:
                if isinstance(x, tuple): A.VM(x[1], x[2])
                else: A(x)
        for s in range(4):
            for it in dma_x(s) + dma_w1(s): put(it)
        self.srd(sWS, 62, WS_BYTES + (1 << 18)); self.srd(sWD, 56, 1605632); self.srd(sWO, 48, 401408)
        self.srd(sOUT, 58, 1835008); self.srd(sDBG, 60, 256)
        self.stamp(0)
        l1 = self.lab()
        A("s_or_b32 s%d, s2, s%d" % (sT0, sW)); A("s_cmp_lg_u32 s%d, 0" % sT0); A("s_cbranch_scc1 %s" % l1)
        A("s_memrealtime s[%d:%d]" % (sE0, sE0 + 1)); A("s_waitcnt lgkmcnt(0)")
        A("s_or_b32 s%d, s%d, 1" % (sE2, sE0)); A("s_or_b32 s%d, s%d, 1" % (sE3, sE0 + 1))
        A("v_mov_b32 v%d, s%d" % (vN, sE2)); A("v_mov_b32 v%d, s%d" % (vN + 1, sE3))
        A("v_lshlrev_b32 v%d, 8, v%d" % (vT + 7, vL))
        A("buffer_store_dwordx2 %s, v%d, %s, 0 offen sc1" % (vr(vN, 2), vT + 7, sr(sDBG, 4)))
        A.label(l1)
        if o.get("prefetch", 1):
            A("s_cmp_eq_u32 s%d, 0" % sW); A("s_cselect_b32 s%d, s52, s54" % sPF); A("s_cselect_b32 s%d, s53, s55" % (sPF + 1))
            A("s_cmp_eq_u32 s%d, 2" % sW); A("s_cselect_b32 s%d, s56, s%d" % (sPF, sPF)); A("s_cselect_b32 s%d, s57, s%d" % (sPF + 1, sPF + 1))
            A("s_cmp_eq_u32 s%d, 3" % sW); A("s_cselect_b32 s%d, s48, s%d" % (sPF, sPF)); A("s_cselect_b32 s%d, s49, s%d" % (sPF + 1, sPF + 1))
            A("s_mov_b32 s%d, 1605632" % (sPF + 2)); A("s_cselect_b32 s%d, 401408, s%d" % (sPF + 2, sPF + 2))
            A("s_mov_b32 s%d, 6272" % sT0); A("s_cselect_b32 s%d, 1664, s%d" % (sT0, sT0))
            A("s_cselect_b32 s%d, 12, 48" % sT1)
            A("s_and_b32 s%d, s%d, 0xffff" % (sPF + 1, sPF + 1)); A("s_mov_b32 s%d, 0x20000" % (sPF + 3))
            A("s_mul_i32 s%d, s%d, s2" % (sT0, sT0))
            A("v_min_u32 v%d, s%d, v%d" % (vT + 7, sT1, vL)); A("v_lshlrev_b32 v%d, 7, v%d" % (vT + 7, vT + 7))
            A.VM("buffer_load_dword v%d, v%d, %s, s%d offen" % (vDUM, vT + 7, sr(sPF, 4), sT0))
            if o.get("codepf", 1):
                A("s_getpc_b64 s[%d:%d]" % (sE0, sE0 + 1))
                A("s_and_b32 s%d, s%d, 3" % (sT0, sIDX)); A("s_cmp_eq_u32 s%d, s%d" % (sT0, sW))
                l2 = self.lab(); A("s_cbranch_scc0 %s" % l2)
                A("s_lshl_b32 s%d, s%d, 13" % (sT0, sT0))
                A("v_lshlrev_b32 v%d, 7, v%d" % (vT + 8, vL)); A("v_add_u32 v%d, s%d, v%d" % (vT + 8, sT0, vT + 8))
                A("v_min_u32 v%d, L_END-L_PFBASE, v%d" % (vT + 8, vT + 8))
                A("global_load_dword v%d, v%d, s[%d:%d]" % (vDUM + 1, vT + 8, sE0, sE0 + 1))
                A.label(l2)
                A.label("L_PFBASE")
        sLine = sA
        A("s_cmp_eq_u32 s%d, 0" % sLine); A("s_cselect_b32 s%d, s52, s54" % sG2); A("s_cselect_b32 s%d, s53, s55" % (sG2 + 1))
        A("s_and_b32 s%d, s%d, 0xffff" % (sG2 + 1, sG2 + 1)); A("s_mov_b32 s%d, 1605632" % (sG2 + 2)); A("s_mov_b32 s%d, 0x20000" % (sG2 + 3))
        A("s_sub_u32 s%d, s%d, 12" % (sT0, sCG)); A("s_cmp_lt_u32 s%d, 3" % sT0); A("s_cselect_b32 s%d, 1, 0" % sG1Q)
        A("s_cselect_b32 s%d, s%d, s%d" % (sG1, sWQKV, sG2)); A("s_cselect_b32 s%d, s%d, s%d" % (sG1 + 1, sWQKV + 1, sG2 + 1))
        A("s_cselect_b32 s%d, s%d, s%d" % (sG1 + 2, sWQKV + 2, sG2 + 2)); A("s_mov_b32 s%d, 0x20000" % (sG1 + 3))
        A("s_mov_b32 s%d, 3584" % sG1S); A("s_cselect_b32 s%d, 2688, s%d" % (sG1S, sG1S))
        A("s_lshl_b32 s%d, s%d, 1" % (sT1, sCG))
        A("s_cmp_lt_u32 s%d, 12" % sCG)
        A("s_cselect_b32 s%d, s%d, 27" % (sE0, sT1))
        A("s_add_u32 s%d, s%d, 1" % (sT2, sT1)); A("s_add_u32 s%d, s%d, 12" % (sT3, sCG))
        A("s_cmp_lt_u32 s%d, 12" % sCG); A("s_cselect_b32 s%d, s%d, s%d" % (sE1, sT2, sT3))
        A("s_sub_u32 s%d, s%d, 8" % (sT1, sT1))
        A("s_add_u32 s%d, s%d, s%d" % (sT2, sT1, sLine)); A("s_min_u32 s%d, s%d, 20" % (sT2, sT2))
        A("s_add_u32 s%d, s%d, s%d" % (sT3, sT1, sB)); A("s_min_u32 s%d, s%d, 20" % (sT3, sT3))
        A("s_cmp_eq_u32 s%d, 1" % sG1Q)
        A("s_cselect_b32 s%d, s%d, s%d" % (sT2, sT2, sE0)); A("s_cselect_b32 s%d, s%d, s%d" % (sE0, sT3, sE0))
        A("s_lshl_b32 s%d, s%d, 7" % (sG1O, sT2)); A("s_mul_i32 s%d, s%d, s%d" % (sT3, sB, sG1S)); A("s_lshl_b32 s%d, s%d, 5" % (sT3, sT3)); A("s_add_u32 s%d, s%d, s%d" % (sG1O, sG1O, sT3))
        A("s_lshl_b32 s%d, s%d, 7" % (sG2O, sE1)); A("s_mul_i32 s%d, s%d, %d" % (sT3, sB, 32 * 3584)); A("s_add_u32 s%d, s%d, s%d" % (sG2O, sG2O, sT3))
        A("s_lshl_b32 s%d, s%d, 1" % (sT3, sLine)); A("v_xor_b32 v%d, s%d, v%d" % (vT + 6, sT3, vT + 5))
        A("v_mul_lo_u32 v%d, s%d, v%d" % (vT + 7, sG1S, vT)); A("v_lshl_add_u32 v%d, v%d, 4, v%d" % (vG1D, vT + 6, vT + 7))
        A("v_mul_u32_u24 v%d, 3584, v%d" % (vT + 7, vT)); A("v_lshl_add_u32 v%d, v%d, 4, v%d" % (vG2D, vT + 6, vT + 7))
        A("s_lshl_b32 s%d, s%d, 3" % (sG1S, sG1S))
        A("v_and_b32 v%d, 31, v%d" % (vT, vL)); A("v_lshrrev_b32 v%d, 5, v%d" % (vT + 1, vL))
        A("v_bfe_u32 v%d, v%d, 1, 3" % (vT + 2, vL))
        A("v_xor_b32 v%d, v%d, v%d" % (vT + 2, vT + 2, vT + 1))
        A("s_lshl_b32 s%d, s%d, 12" % (sT0, sW))
        A("v_lshlrev_b32 v%d, 7, v%d" % (vT + 3, vT)); A("v_add_u32 v%d, s%d, v%d" % (vT + 3, sT0, vT + 3))
        for s in range(4):
            A("v_xor_b32 v%d, %d, v%d" % (vT + 4, 2 * s, vT + 2))
            A("v_lshl_add_u32 v%d, v%d, 4, v%d" % (vXA + s, vT + 4, vT + 3))
            A("v_xor_b32 v%d, 4096, v%d" % (vXA + 4 + s, vXA + s))
        A("v_bfe_u32 v%d, v%d, 2, 2" % (vT + 2, vL))
        A("v_lshl_add_u32 v%d, v%d, 3, v%d" % (vT + 3, vT + 1, vT + 2))
        A("v_and_b32 v%d, 3, v%d" % (vT + 4, vL)); A("v_lshlrev_b32 v%d, 3, v%d" % (vT + 4, vT + 4))
        A("v_lshl_add_u32 v%d, v%d, 7, v%d" % (vT + 3, vT + 3, vT + 4))
        A("v_add_u32 v%d, %d, v%d" % (vT + 3, WR, vT + 3))
        A("v_and_b32 v%d, 2, v%d" % (vT + 2, vT + 2))
        A("v_bfe_u32 v%d, v%d, 4, 1" % (vT + 4, vL))
        A("s_lshl_b32 s%d, s%d, 1" % (sT0, sB)); A("v_add_u32 v%d, s%d, v%d" % (vT + 5, sT0, vT + 4)); A("v_xor_b32 v%d, v%d, v%d" % (vT + 5, vT + 5, vT + 2))
        A("v_lshl_add_u32 v%d, v%d, 5, v%d" % (vW1A, vT + 5, vT + 3))
        A("s_add_u32 s%d, s%d, s%d" % (sT1, sT0, sA))
        A("v_xor_b32 v%d, v%d, v%d" % (vT + 5, vT + 2, vT + 4)); A("v_xor_b32 v%d, s%d, v%d" % (vT + 5, sT1, vT + 5))
        A("v_lshl_add_u32 v%d, v%d, 13, v%d" % (vT + 6, vT + 4, vT + 3))
        A("v_lshl_add_u32 v%d, v%d, 5, v%d" % (vG2A, vT + 5, vT + 6)); A("v_xor_b32 v%d, 32, v%d" % (vG2A + 1, vG2A))
        A("s_lshl_b32 s%d, s%d, 1" % (sT1, sA)); A("s_xor_b32 s%d, s%d, s%d" % (sT1, sT1, sB))
        A("v_xor_b32 v%d, v%d, v%d" % (vT + 5, vT + 2, vT + 4)); A("v_xor_b32 v%d, s%d, v%d" % (vT + 5, sT1, vT + 5))
        A("s_lshl_b32 s%d, s%d, 13" % (sT2, sB)); A("v_add_u32 v%d, s%d, v%d" % (vT + 6, sT2, vT + 3))
        A("v_lshl_add_u32 v%d, v%d, 5, v%d" % (vT + 7, vT + 5, vT + 6)); A("v_xor_b32 v%d, 64, v%d" % (vT + 8, vT + 7))
        A("s_cmp_eq_u32 s%d, 1" % sG1Q); A("s_cselect_b64 vcc, -1, 0")
        A("v_cndmask_b32 v%d, v%d, v%d, vcc" % (vG1A, vG2A, vT + 7)); A("v_cndmask_b32 v%d, v%d, v%d, vcc" % (vG1A + 1, vG2A + 1, vT + 8))
        A("v_lshrrev_b32 v%d, 2, v%d" % (vT + 5, vL)); A("v_xor_b32 v%d, v%d, v%d" % (vT + 5, vT + 5, vT + 4)); A("v_and_b32 v%d, 1, v%d" % (vT + 5, vT + 5))
        A("v_and_or_b32 v%d, v%d, 3, v%d" % (vT + 5, vL, vT + 5))
        A("v_cmp_eq_u32 vcc, 0, v%d" % (vT + 5)); A("v_mov_b32 v%d, 0x3f803f80" % (vT + 6))
        A("v_cndmask_b32 v%d, 0, v%d, vcc" % (vSEL, vT + 6))
        for i in range(1, 4): A("v_mov_b32 v%d, v%d" % (vSEL + i, vSEL))
        for f in (vMF, vMF + 4, vCF, vCF + 4):
            for i in range(1, 4): A("v_mov_b32 v%d, 0" % (f + i))
        A("s_lshl_b32 s%d, s%d, 9" % (sT0, sW)); A("s_add_u32 s%d, s%d, %d" % (sT0, sT0, MISC))
        A("v_lshlrev_b32 v%d, 3, v%d" % (vEX, vL)); A("v_add_u32 v%d, s%d, v%d" % (vEX, sT0, vEX))
        A("s_lshl_b32 s%d, s%d, 12" % (sE2, sW)); A("s_add_u32 s%d, s%d, %d" % (sE2, sE2, WR))
        sGM = sE2
        def dma_g(g):
            p = g // 7; out = []
            so, vd, srd_ = (sG1O, vG1D, sG1) if p == 0 else (sG2O, vG2D, sG2)
            for i in range(4):
                if i == 0 and g % 7 == 0: adv = "s_nop 0"
                elif p == 0:
                    adv = "s_add_u32 s%d, s%d, s%d" % (so, so, sG1S) if i > 0 else None
                else:
                    adv = "s_add_u32 s%d, s%d, %d" % (so, so, 8 * 3584 * (1 if i > 0 else 5))
                it = ["s_add_u32 m0, s%d, %d" % (sGM, (g % 4) * 16384 + i * 1024)]
                if adv is None:
                    it += ["s_mul_i32 s%d, s%d, 5" % (sT3, sG1S), "s_add_u32 s%d, s%d, s%d" % (so, so, sT3)]
                else: it.append(adv)
                it.append(("VM", "buffer_load_dwordx4 v%d, %s, s%d offen lds" % (vd, sr(srd_, 4), so), "g%d" % g))
                out.append(it)
            return out

        XF = lambda j, ks: ar((j * 28 + ks) * 4, 4)
        def mf32(d, a_, b_, c=None): return "v_mfma_f32_32x32x16_bf16 %s, %s, %s, %s" % (vr(d, 16), a_, b_, c if c is not None else vr(d, 16))
        def mf16(d, a_, b_, c=None): return "v_mfma_f32_16x16x32_bf16 %s, %s, %s, %s" % (vr(d, 4), a_, b_, c if c is not None else vr(d, 4))
        def rd_x(ks):
            s, q = divmod(ks, 4)
            return ["ds_read_b128 %s, v%d offset:%d" % (XF(j, ks), vXA + 4 * j + q, XR + (s % 4) * 16384) for j in range(2)]
        def rd_w1(ks):
            s, q = divmod(ks, 4); d = vWF + (ks % 2) * 8
            return ["ds_read_b64_tr_b16 %s, v%d offset:%d" % (vr(d + 2 * j, 2), vW1A, s * 8192 + (16 * q + 4 * j) * 128) for j in range(2)]
        def rd_g(p, ks, t):
            s, q = divmod(ks, 4); g = p * 7 + s; d = vWF + (ks % 2) * 8 + t * 4
            va = (vG1A if p == 0 else vG2A) + t
            return ["ds_read_b64_tr_b16 %s, v%d offset:%d" % (vr(d + 2 * j, 2), va, (g % 4) * 16384 + (16 * q + 4 * j) * 128) for j in range(2)]

        A.C("FIRST pass")
        A.wait_vm("x0", "w0"); A("s_barrier")
        self.stamp(1)
        for x in rd_x(0) + rd_w1(0): A(x)
        pend = []
        for ks in range(28):
            s, q = divmod(ks, 4); z = "0" if ks == 0 else None
            W = vr(vWF + (ks % 2) * 8, 4)
            if q == 3:
                if s < 6: A.wait_vm("x%d" % (s + 1), "w%d" % (s + 1), lgkm=0)
                else: A.wait_vm("g0", lgkm=0)
                A("s_barrier")
                assert not pend
                if s <= 2: pend = dma_x(s + 4) + dma_w1(s + 4)
                else: pend = dma_g(s - 3)
                if s == 4:
                    pend.append([("VM", "buffer_load_dwordx2 %s, v%d, %s, 0 offen sc1" % (vr(vN, 2), vMF + 1, sr(sDBG, 4)), "nonce")])
            else: A("s_waitcnt lgkmcnt(0)")
            A(mf32(vACC, W, XF(0, ks), z))
            if ks < 27:
                for x in rd_x(ks + 1): A(x)
            else:
                for x in rd_g(0, 0, 0): A(x)
            A(mf32(vACC + 16, W, XF(1, ks), z))
            if ks < 27:
                for x in rd_w1(ks + 1): A(x)
            else:
                for x in rd_g(0, 0, 1): A(x)
            A(mf32(vXX, XF(0, ks), XF(0, ks), z))
            npop = -(-len(pend) // (4 - (q + 1) % 4)) if pend else 0
            for _ in range(npop): put(pend.pop(0))
            A(mf16(vSX, vr(vSEL, 4), XF(0, ks), z))
            A(mf16(vCS, vr(vSEL, 4), W, z))
        self.stamp(2)
        A.C("stats")
        for msk, m in ((sM0, 0xAAAAAAAA), (sM1, 0xCCCCCCCC)):
            A("s_mov_b32 s%d, 0x%x" % (msk, m)); A("s_mov_b32 s%d, 0x%x" % (msk + 1, m))
        for i in range(8): A("v_cndmask_b32 v%d, v%d, v%d, %s" % (vT + i, vXX + 2 * i, vXX + 2 * i + 1, sr(sM0, 2)))
        for i in range(4): A("v_cndmask_b32 v%d, v%d, v%d, %s" % (vT + i, vT + 2 * i, vT + 2 * i + 1, sr(sM1, 2)))
        for msk, m in ((sM0, 0xFF00FF00), (sM1, 0xFFFF0000)):
            A("s_mov_b32 s%d, 0x%x" % (msk, m)); A("s_mov_b32 s%d, 0x%x" % (msk + 1, m))
        for i in range(2): A("v_cndmask_b32 v%d, v%d, v%d, %s" % (vT + i, vT + 2 * i, vT + 2 * i + 1, sr(sM0, 2)))
        A("v_cndmask_b32 v%d, v%d, v%d, %s" % (vT, vT, vT + 1, sr(sM1, 2)))
        A("v_mov_b32 v%d, v%d" % (vT + 1, vT))
        A("s_mov_b32 s%d, 0xF0F0F0F0" % sM0); A("s_mov_b32 s%d, 0xF0F0F0F0" % (sM0 + 1))
        A("v_permlane32_swap_b32 v%d, v%d" % (vT, vT + 1))
        A("v_cndmask_b32 v%d, v%d, v%d, %s" % (vT, vT, vT + 1, sr(sM0, 2)))
        inv = "0x3b124925"
        A("v_mul_f32 v%d, %s, v%d" % (vT + 1, inv, vSX))
        A("v_mul_f32 v%d, %s, v%d" % (vT, inv, vT))
        A("v_fma_f32 v%d, -v%d, v%d, v%d" % (vT, vT + 1, vT + 1, vT))
        A("v_max_f32 v%d, 0, v%d" % (vT, vT))
        A("v_cvt_pk_bf16_f32 v%d, v%d, v%d" % (vT + 2, vT + 1, vT))
        A("v_and_b32 v%d, 0xffff0000, v%d" % (vT + 3, vT + 2))
        A("v_add_f32 v%d, 0x3727c5ac, v%d" % (vT + 3, vT + 3))
        A("v_cvt_pk_bf16_f32 v%d, v%d, v%d" % (vT + 3, vT + 3, vT + 3))
        A("v_lshlrev_b32 v%d, 16, v%d" % (vT + 3, vT + 3))
        A("v_sqrt_f32 v%d, v%d" % (vT + 3, vT + 3))
        A("v_lshlrev_b32 v%d, 16, v%d" % (vT + 2, vT + 2))
        A("v_cvt_pk_bf16_f32 v%d, v%d, v%d" % (vT + 3, vT + 3, vT + 3))
        A("v_mul_f32 v%d, -0.5, v%d" % (vT + 2, vT + 2))
        A("v_lshlrev_b32 v%d, 16, v%d" % (vT + 3, vT + 3))
        A("v_rcp_f32 v%d, v%d" % (vR, vT + 3))
        A("v_cvt_pk_bf16_f32 v%d, v%d, v%d" % (vMF, vT + 2, vT + 2))
        A("v_mov_b32 v%d, v%d" % (vT + 4, vMF)); A("v_mov_b32 v%d, v%d" % (vT + 5, vR))
        A("ds_write_b64 v%d, %s" % (vEX, vr(vT + 4, 2)))
        A("v_xor_b32 v%d, 512, v%d" % (vEX + 1, vEX))
        def cfrag(dst, c):
            A("v_cvt_pk_bf16_f32 v%d, v%d, v%d" % (vT + 8, c, c)); A("v_lshlrev_b32 v%d, 16, v%d" % (vT + 8, vT + 8))
            A("v_sub_f32 v%d, v%d, v%d" % (vT + 9, c, vT + 8)); A("v_cvt_pk_bf16_f32 v%d, v%d, v%d" % (dst, vT + 8, vT + 9))
        cfrag(vCF, vCS)
        A("s_waitcnt lgkmcnt(0)"); A("s_barrier")
        A("ds_read_b64 %s, v%d" % (vr(vT + 4, 2), vEX + 1))
        A(mf32(vACC, vr(vCF, 4), vr(vMF, 4)))
        A("s_cmp_lt_u32 s%d, 7" % sCG); A("s_cselect_b32 s%d, 0x3e8b98d6, 1.0" % sT0)
        A("s_waitcnt lgkmcnt(0)")
        A("v_mov_b32 v%d, v%d" % (vMF + 4, vT + 4)); A("v_mov_b32 v%d, v%d" % (vR + 1, vT + 5))
        A("v_mul_f32 v%d, s%d, v%d" % (vR + 2, sT0, vR)); A("v_mul_f32 v%d, s%d, v%d" % (vR + 3, sT0, vT + 5))
        A(mf32(vACC + 16, vr(vCF, 4), vr(vMF + 4, 4)))
        A("s_lshl_b32 s%d, s%d, 2" % (sT1, sRB)); A("s_add_u32 s%d, s%d, s%d" % (sARB, sT1, sW))
        def qkv_store(acc, vscale, soff, tag):
            for i in range(16): A("v_mul_f32 v%d, v%d, v%d" % (acc + i, vscale, acc + i))
            for h in range(2):
                for i in range(4): A("v_cvt_pk_bf16_f32 v%d, v%d, v%d" % (vP + 4 * h + i, acc + 8 * h + 2 * i, acc + 8 * h + 2 * i + 1))
            for h in range(2):
                A("v_permlane32_swap_b32 v%d, v%d" % (vP + 4 * h, vP + 4 * h + 2)); A("v_permlane32_swap_b32 v%d, v%d" % (vP + 4 * h + 1, vP + 4 * h + 3))
            for h in range(2):
                A.VM("buffer_store_dwordx4 %s, v%d, %s, s%d offen offset:%d sc1" % (vr(vP + 4 * h, 4), vL16, sr(sWS, 4), soff, 1024 * h), tag)
        def qkv_soff(dst, j, sunit, stile):
            A("s_xor_b32 s%d, s%d, %d" % (dst, sARB, j)); A("s_mul_i32 s%d, s%d, 42" % (dst, dst))
            A("s_lshl_b32 s%d, s%d, 1" % (sT3, sunit)); A("s_add_u32 s%d, s%d, s%d" % (dst, dst, sT3)); A("s_add_u32 s%d, s%d, s%d" % (dst, dst, stile))
            A("s_lshl_b32 s%d, s%d, 11" % (dst, dst)); A("s_add_u32 s%d, s%d, %d" % (dst, dst, QKV))
        qkv_soff(sT1, 0, sCG, sB); qkv_soff(sT2, 1, sCG, sB)
        vP0 = vP
        qkv_store(vACC, vR + 2, sT1, "st0")
        vP = vP0 + 8
        qkv_store(vACC + 16, vR + 3, sT2, "st0")
        vP = vP0
        A("v_mul_f32 v%d, v%d, v%d" % (vR + 2, vR, vR)); A("v_mul_f32 v%d, v%d, v%d" % (vR + 3, vR + 1, vR + 1))
        A.wait_vm("nonce")
        ok = self.lab("OK"); sp = self.lab("SPIN")
        A("s_mov_b32 s%d, 0" % sSPIN)
        A.label(sp)
        A("v_readfirstlane_b32 s%d, v%d" % (sNON, vN)); A("v_readfirstlane_b32 s%d, v%d" % (sNON + 1, vN + 1))
        A("s_nop 0")
        A("s_min_u32 s%d, s%d, s%d" % (sT0, sNON, sNON + 1)); A("s_cmp_lg_u32 s%d, 0" % sT0); A("s_cbranch_scc1 %s" % ok)
        A("s_add_u32 s%d, s%d, 1" % (sSPIN, sSPIN)); A("s_cmp_ge_u32 s%d, %d" % (sSPIN, SPIN_MAX)); A("s_cbranch_scc1 %s" % ok)
        A("s_sleep 2")
        A("buffer_load_dwordx2 %s, v%d, %s, 0 offen sc1" % (vr(vN, 2), vMF + 1, sr(sDBG, 4)))
        A("s_waitcnt vmcnt(0)"); A("s_branch %s" % sp)
        A.label(ok)
        A("v_mov_b32 v%d, s%d" % (vN, sNON)); A("v_mov_b32 v%d, s%d" % (vN + 1, sNON + 1))
        A("v_lshlrev_b32 v%d, 28, v%d" % (vFO, vL))
        A("s_lshl_b32 s%d, s%d, 4" % (sH, sRB)); A("s_add_u32 s%d, s%d, s%d" % (sH, sH, sCG)); A("s_lshl_b32 s%d, s%d, 3" % (sH, sH))
        def put_flag(base):
            l = self.lab()
            A("s_cmp_lg_u32 s%d, 0" % sW); A("s_cbranch_scc1 %s" % l)
            A("buffer_store_dwordx2 %s, v%d, %s, s%d offen offset:%d sc1" % (vr(vN, 2), vFO, sr(sWS, 4), sH, base))
            A.label(l)
        self.stamp(3)

        self.att_setup_regs = None
        extra = {}
        self.att_pre(extra, locals())
        for p in range(2):
            A.C("G2 pass %d" % p)
            for ks in range(28):
                s, q = divmod(ks, 4); g = p * 7 + s; z = "0" if ks == 0 else None
                W0 = vr(vWF + (ks % 2) * 8, 4); W1 = vr(vWF + (ks % 2) * 8 + 4, 4)
                last = (p == 1 and ks == 27)
                if q == 3 and not last:
                    tags = ["g%d" % (g + 1)]
                    if g == 8: tags.append("ep0")
                    A.wait_vm(*tags, lgkm=0); A("s_barrier")
                    if g == 8: put_flag(FLQ)
                    assert not pend
                    if g + 4 < 14: pend = dma_g(g + 4)
                elif q == 3: A("s_waitcnt lgkmcnt(0)")
                else: A("s_waitcnt lgkmcnt(2)")
                nx = (p, ks + 1) if ks < 27 else (p + 1, 0)
                A(mf32(vACC, W0, XF(0, ks), z))
                if not last:
                    for x in rd_g(nx[0], nx[1], 0): A(x)
                A(mf32(vACC + 16, W0, XF(1, ks), z))
                if q != 3: A("s_waitcnt lgkmcnt(2)")
                if not last:
                    for x in rd_g(nx[0], nx[1], 1): A(x)
                A(mf32(vACC + 32, W1, XF(0, ks), z))
                if pend: put(pend.pop(0))
                for it in extra.get((p, ks), []):
                    if callable(it): it()
                    else: put(it)
                A(mf32(vACC + 48, W1, XF(1, ks), z))
                A(mf16(vCS, vr(vSEL, 4), W0, z))
            self.stamp(4 + 2 * p)
            A.C("G2 epilogue %d" % p)
            A("ds_write_b32 v%d, v%d offset:%d" % (vEX, vCS, 2048 * (p + 1)))
            if p == 0: A("v_xor_b32 v%d, 1024, v%d" % (vEX + 1, vEX))
            cfrag(vCF, vCS)
            A("s_waitcnt lgkmcnt(0)"); A("s_barrier")
            A("ds_read_b32 v%d, v%d offset:%d" % (vT + 10, vEX + 1, 2048 * (p + 1)))
            A(mf32(vACC, vr(vCF, 4), vr(vMF, 4))); A(mf32(vACC + 16, vr(vCF, 4), vr(vMF + 4, 4)))
            A("s_waitcnt lgkmcnt(0)")
            cfrag(vCF + 4, vT + 10)
            A(mf32(vACC + 32, vr(vCF + 4, 4), vr(vMF, 4))); A(mf32(vACC + 48, vr(vCF + 4, 4), vr(vMF + 4, 4)))
            def gu_epi(sgu, tag):
                A("s_lshl_b32 s%d, s%d, 2" % (sT0, sgu)); A("s_lshl_b32 s%d, s%d, 1" % (sT1, sB)); A("s_add_u32 s%d, s%d, s%d" % (sT0, sT0, sT1)); A("s_add_u32 s%d, s%d, s%d" % (sT0, sT0, sA))
                for t in range(2):
                    for j in range(2):
                        acc = vACC + 32 * t + 16 * j; pk = vP + 4 * (2 * t + j)
                        A("s_xor_b32 s%d, s%d, %d" % (sT1, sARB, j)); A("s_mul_i32 s%d, s%d, 144" % (sT1, sT1))
                        A("s_xor_b32 s%d, s%d, %d" % (sT2, sT0, t)); A("s_add_u32 s%d, s%d, s%d" % (sT1, sT1, sT2))
                        A("s_lshl_b32 s%d, s%d, 10" % (sT1, sT1)); A("s_add_u32 s%d, s%d, %d" % (sT1, sT1, ACT))
                        for i in range(8): A("v_mul_f32 v%d, v%d, v%d" % (acc + i, vR + 2 + j, acc + i))
                        for i in range(8): A("v_mul_f32 v%d, v%d, v%d" % (acc + i, acc + i, acc + 8 + i))
                        for i in range(4): A("v_cvt_pk_bf16_f32 v%d, v%d, v%d" % (pk + i, acc + 2 * i, acc + 2 * i + 1))
                        A.VM("buffer_store_dwordx4 %s, v%d, %s, s%d offen sc1" % (vr(pk, 4), vL16, sr(sWS, 4), sT1), tag)
            if p == 0:
                lq = self.lab(); lj = self.lab()
                A.br_begin()
                A("s_cmp_eq_u32 s%d, 1" % sG1Q); A("s_cbranch_scc1 %s" % lq)
                gu_epi(sE0, None); A("s_branch %s" % lj); A.br_alt_end()
                A.label(lq)
                for t in range(2):
                    for j in range(2):
                        A("s_xor_b32 s%d, s%d, %d" % (sT0, sA, t))
                        qkv_soff(sT1, j, sE0, sT0)
                        vP = vP0 + 8 * j
                        qkv_store(vACC + 32 * t + 16 * j, vR + j, sT1, None)
                vP = vP0
                A.br_alt_end(); A.br_end()
                A.label(lj); A.tag("ep0")
            else:
                gu_epi(sE1, "ep1")
            self.stamp(5 + 2 * p)
        self.attention(locals())
        self.k2(locals())
        A.label("L_END")
        A("s_endpgm")

    def att_pre(self, extra, env):
        A = self.A
        vL, vL16, vT = env["vL"], env["vL16"], env["vT"]
        self.vAF = vAF = 200
        self.vAT = vAT = 202
        self.vKD = vKD = 204
        self.vQ = vQ = 208
        sHD, sRA = 3, 4
        self.sHD, self.sRA = sHD, sRA
        sKO = 5; sQO = 6; sTK = 7
        def setup():
            A("s_lshl_b32 s%d, s%d, 1" % (sHD, sXCD)); A("s_and_b32 s%d, s%d, 1" % (sT0, sIDX)); A("s_add_u32 s%d, s%d, s%d" % (sHD, sHD, sT0))
            A("s_lshr_b32 s%d, s%d, 1" % (sRA, sIDX))
            A("v_lshrrev_b32 v%d, 4, v%d" % (vAF, vL)); A("v_min_u32 v%d, 2, v%d" % (vAF, vAF))
            A("v_sub_u32 v%d, s%d, v%d" % (vAF, sRA, vAF)); A("v_max_i32 v%d, 0, v%d" % (vAF, vAF))
            A("v_and_b32 v%d, 15, v%d" % (vAF + 1, vL)); A("v_lshl_add_u32 v%d, v%d, 4, v%d" % (vAF, vAF, vAF + 1))
            A("v_lshlrev_b32 v%d, 3, v%d" % (vAF, vAF))
        def setup2():
            A("s_mul_i32 s%d, s%d, 7" % (sQO, sHD)); A("s_lshr_b32 s%d, s%d, 1" % (sQO, sQO)); A("s_lshl_b32 s%d, s%d, 9" % (sQO, sQO)); A("s_add_u32 s%d, s%d, %d" % (sQO, sQO, QKV))
            A("v_lshrrev_b32 v%d, 5, v%d" % (vKD, vL)); A("v_lshlrev_b32 v%d, 6, v%d" % (vKD, vKD)); A("v_xor_b32 v%d, v%d, v%d" % (vKD, vKD, vL16))
            A("v_xor_b32 v%d, 128, v%d" % (vKD + 1, vKD))
            A("s_lshl_b32 s%d, s%d, 2" % (sTK, sRA)); A("s_mul_i32 s%d, s%d, 3" % (sT0, sW)); A("s_add_u32 s%d, s%d, s%d" % (sTK, sTK, sT0)); A("s_sub_u32 s%d, s%d, 8" % (sTK, sTK))
            A("s_mul_i32 s%d, s%d, 6144" % (sXM, sW))
        extra.setdefault((1, 1), []).append(setup)
        extra.setdefault((1, 2), []).append(setup2)
        P0 = self.o.get("att_poll_ks", 16)
        extra.setdefault((1, P0), []).append([("VM", "buffer_load_dwordx2 %s, v%d, %s, 0 offen offset:%d sc1" % (vr(vAT, 2), vAF, sr(sWS, 4), FLQ), "fq")])
        def chk():
            self.poll(vAF, vAT, "fq")
            A("v_mov_b32 v%d, v%d" % (vAT, vAT))
        extra.setdefault((1, P0 + 3), []).append(chk)
        def kv(i):
            def f():
                A("s_add_i32 s%d, s%d, %d" % (sT0, sTK, i)); A("s_max_i32 s%d, s%d, 0" % (sT0, sT0))
                A("s_mul_i32 s%d, s%d, %d" % (sT0, sT0, 168 * 512)); A("s_add_u32 s%d, s%d, s%d" % (sT0, sT0, sQO))
                A("s_add_u32 s%d, s%d, %d" % (sT1, sT0, 56 * 512)); A("s_add_u32 s%d, s%d, %d" % (sT2, sT0, 112 * 512))
                A("s_add_u32 m0, s%d, %d" % (sXM, XR + i * 2048)); A("s_nop 0")
                A.VM("buffer_load_dwordx4 v%d, %s, s%d offen sc1 lds" % (vL16, sr(sWS, 4), sT1), "kv")
                A.VM("buffer_load_dwordx4 v%d, %s, s%d offen offset:1024 sc1 lds" % (vL16, sr(sWS, 4), sT1), "kv")
                A("s_add_u32 m0, s%d, %d" % (sXM, XR + 24576 + i * 2048)); A("s_nop 0")
                A.VM("buffer_load_dwordx4 v%d, %s, s%d offen sc1 lds" % (vKD, sr(sWS, 4), sT2), "kv")
                A.VM("buffer_load_dwordx4 v%d, %s, s%d offen offset:1024 sc1 lds" % (vKD + 1, sr(sWS, 4), sT2), "kv")
            return f
        for i in range(3): extra.setdefault((1, P0 + 4 + i), []).append(kv(i))
        def q():
            A("s_lshl_b32 s%d, s%d, 2" % (sT0, sRA)); A("s_add_u32 s%d, s%d, s%d" % (sT0, sT0, sW))
            A("s_mul_i32 s%d, s%d, %d" % (sT0, sT0, 168 * 512)); A("s_add_u32 s%d, s%d, s%d" % (sT0, sT0, sQO))
            for i in range(2):
                A.VM("buffer_load_dwordx4 %s, v%d, %s, s%d offen offset:%d sc1" % (vr(vQ + 4 * i, 4), vL16, sr(sWS, 4), sT0, 1024 * i), "kv")
        extra.setdefault((1, P0 + 7), []).append(q)
        self.sTK = sTK

    def attention(self, env):
        A = self.A
        vL, vL16, vN, vFO = env["vL"], env["vL16"], env["vN"], env["vFO"]
        sHD, sRA, sTK, vQ = self.sHD, self.sRA, self.sTK, self.vQ
        put_flag = env["put_flag"]
        A.C("attention")
        vK = 4
        vV = 76
        vS = 128
        vO = 176
        vMA, vMB = 216, 232
        vPP = 92
        vT = 248
        vKA, vVA = 108, 109
        vM = 111
        mf32 = env["mf32"]
        A("s_and_b32 s%d, s%d, 1" % (sT3, sHD))
        A("s_lshl_b32 s%d, s%d, 11" % (sT0, sW)); A("v_add_u32 v%d, s%d, v%d" % (vKA, sT0, vL16))
        A("v_bfe_u32 v%d, v%d, 4, 1" % (vT, vL)); A("v_and_b32 v%d, 3, v%d" % (vT + 1, vL)); A("v_lshl_add_u32 v%d, v%d, 2, v%d" % (vT, vT, vT + 1))
        A("v_add_u32 v%d, s%d, v%d" % (vT, sT3, vT)); A("v_and_b32 v%d, 7, v%d" % (vT, vT))
        A("v_lshrrev_b32 v%d, 1, v%d" % (vT + 1, vT))
        A("v_and_b32 v%d, 1, v%d" % (vT, vT))
        A("v_lshrrev_b32 v%d, 5, v%d" % (vT + 2, vL)); A("v_bfe_u32 v%d, v%d, 2, 2" % (vT + 3, vL)); A("v_lshl_add_u32 v%d, v%d, 2, v%d" % (vT + 3, vT + 2, vT + 3))
        A("v_lshlrev_b32 v%d, 2, v%d" % (vT + 4, vT + 1)); A("v_xor_b32 v%d, v%d, v%d" % (vT + 3, vT + 3, vT + 4))
        A("v_lshlrev_b32 v%d, 9, v%d" % (vT + 1, vT + 1)); A("v_lshl_add_u32 v%d, v%d, 4, v%d" % (vT + 1, vT + 3, vT + 1)); A("v_lshl_add_u32 v%d, v%d, 3, v%d" % (vT + 1, vT, vT + 1))
        A("s_add_u32 s%d, s%d, %d" % (sT0, sT0, XR + 24576)); A("v_add_u32 v%d, s%d, v%d" % (vVA, sT0, vT + 1))
        A("v_xor_b32 v%d, 128, v%d" % (vVA + 1, vVA))
        A("v_and_b32 v%d, 31, v%d" % (vT, vL)); A("v_lshlrev_b32 v%d, 2, v%d" % (vT + 2, vT + 2)); A("v_sub_u32 v%d, v%d, v%d" % (vT, vT, vT + 2))
        NEG = "0xf149f2ca"
        A("v_mov_b32 v%d, %s" % (vT + 1, NEG))
        for j in range(16):
            aj = (j & 3) + 8 * (j >> 2)
            A("v_cmp_gt_i32 vcc, %d, v%d" % (aj, vT))
            A("v_cndmask_b32 v%d, v%d, 0, vcc" % (vMA + j, vT + 1) if False else "v_cndmask_b32 v%d, 0, v%d, vcc" % (vMB + j, vT + 1))
            A("v_sub_f32 v%d, v%d, v%d" % (vMA + j, vT + 1, vMB + j))
        A("s_cmp_eq_u32 s%d, 0" % sT3); A("s_cselect_b32 s%d, %d, 0" % (sT0, 3 * 512 + 8)); A("s_add_u32 s%d, s%d, s%d" % (sT0, sT0, sXM))
        A("v_and_b32 v%d, 31, v%d" % (vT, vL)); A("v_lshlrev_b32 v%d, 4, v%d" % (vT, vT)); A("v_lshrrev_b32 v%d, 5, v%d" % (vT + 2, vL))
        A("v_mul_u32_u24 v%d, 24576, v%d" % (vT + 3, vT + 2)); A("v_add3_u32 v%d, v%d, v%d, s%d" % (vT, vT, vT + 3, sT0))
        A("s_mov_b32 s%d, 0" % sM0); A("s_mov_b32 s%d, -1" % (sM0 + 1))
        A("v_mov_b32 v%d, 0x3f803f80" % (vT + 4))
        A.wait_vm("kv")
        for i in range(3):
            A("s_add_i32 s%d, s%d, %d" % (sT1, sTK, i)); A("s_cmp_lt_i32 s%d, 0" % sT1); A("s_cselect_b32 s%d, 0x3f80, 0" % sT1)
            A("v_mov_b32 v%d, s%d" % (vT + 5, sT1)); A("v_cndmask_b32 v%d, v%d, v%d, %s" % (vT + 5, vT + 5, vT + 4, sr(sM0, 2)))
            A("ds_write_b64 v%d, %s offset:%d" % (vT, vr(vT + 4, 2), XR + i * 2048))
        A("s_cmp_eq_u32 s%d, 0" % sT3)
        A("s_cselect_b32 s%d, -1, 0" % (sM0 + 1)); A("s_mov_b32 s%d, 0" % sM0)
        A("s_cselect_b32 s%d, 0, -1" % sM1); A("s_mov_b32 s%d, 0" % (sM1 + 1))
        A("v_mov_b32 v%d, 0xf14a" % (vT + 6))
        A("v_cndmask_b32 v%d, v%d, 0, %s" % (vQ + 6, vQ + 6, sr(sM0, 2))); A("v_cndmask_b32 v%d, v%d, v%d, %s" % (vQ + 7, vQ + 7, vT + 6, sr(sM0, 2)))
        A("v_cndmask_b32 v%d, v%d, 0, %s" % (vQ + 0, vQ + 0, sr(sM1, 2))); A("v_cndmask_b32 v%d, v%d, v%d, %s" % (vQ + 1, vQ + 1, vT + 6, sr(sM1, 2)))
        A("s_waitcnt lgkmcnt(0)"); A("s_barrier")
        self.stamp(8)
        self.k2_pre(env)
        def rdk(t): return ["ds_read_b128 %s, v%d offset:%d" % (vr(vK + 8 * t + 4 * i, 4), vKA, XR + t * 2048 + 1024 * i) for i in range(2)]
        def qk(t, buf):
            c = vr(vMA, 16) if t == 0 else vr(vMB, 16) if t == 8 else "0"
            return [mf32(buf, vr(vK + 8 * t, 4), vr(vQ, 4), c), mf32(buf, vr(vK + 8 * t + 4, 4), vr(vQ + 4, 4))]
        for t in range(4):
            for x in rdk(t): A(x)
        def mx(t, buf):
            out = []
            for i in range(8):
                if t == 0 and i == 0: out.append("v_max_f32 v%d, v%d, v%d" % (vM, buf, buf + 1))
                else: out.append("v_max3_f32 v%d, v%d, v%d, v%d" % (vM, buf + 2 * i, buf + 2 * i + 1, vM))
            return out
        nrd = 4
        for t in range(10):
            m = mx(t - 2 if False else t - 1, vS + 16 * ((t - 1) % 3)) if t >= 1 else []
            if t < 9:
                A("s_waitcnt lgkmcnt(%d)" % (2 * (nrd - t - 1)))
                q0, q1 = qk(t, vS + 16 * (t % 3))
                A(q0)
                if nrd < 9:
                    for x in rdk(nrd): A(x)
                    nrd += 1
                A(q1)
            for x in m: A(x)
            self.k2_slot()
        A.wait_vm("ep1"); A("s_barrier"); put_flag(FLH)
        A("v_mov_b32 v%d, v%d" % (vT, vM))
        A("v_permlane32_swap_b32 v%d, v%d" % (vM, vT)); A("v_max_f32 v%d, v%d, v%d" % (vM, vM, vT))
        A("v_cvt_pk_bf16_f32 v%d, -v%d, -v%d" % (vT, vM, vM)); A("v_lshlrev_b32 v%d, 16, v%d" % (vT, vT))
        A("v_sub_f32 v%d, -v%d, v%d" % (vT + 1, vM, vT) if False else "v_add_f32 v%d, v%d, v%d" % (vT + 1, vM, vT))
        A("v_cvt_pk_bf16_f32 v%d, v%d, -v%d" % (vT, vT, vT + 1))
        A("v_cndmask_b32 v%d, v%d, v%d, %s" % (vQ + 6, vQ + 6, vT, sr(sM0, 2))); A("v_cndmask_b32 v%d, v%d, v%d, %s" % (vQ + 0, vQ + 0, vT, sr(sM1, 2)))
        self.stamp(9)
        def rdv(t):
            d = vV + 8 * (t % 2)
            return ["ds_read_b64_tr_b16 %s, v%d offset:%d" % (vr(d + 4 * s + 2 * j, 2), vVA + j, t * 2048 + s * 256) for s in range(2) for j in range(2)]
        for x in qk(0, vS): A(x)
        for x in rdv(0): A(x)
        for t in range(10):
            buf = vS + 16 * (t % 2); pp = vPP + 8 * (t % 2); ppm = vPP + 8 * ((t - 1) % 2); vm = vV + 8 * ((t - 1) % 2)
            mm = []
            if t + 1 < 9: mm += qk(t + 1, vS + 16 * ((t + 1) % 2))
            pv = []
            if t >= 1:
                pv = [mf32(vO, vr(vm, 4), vr(ppm, 4), "0" if t == 1 else None), mf32(vO, vr(vm + 4, 4), vr(ppm + 4, 4))]
            if t == 9:
                A("s_waitcnt lgkmcnt(0)")
                for x in pv: A(x)
                break
            if pv: A("s_waitcnt lgkmcnt(0)"); A(pv[0])
            for i in range(4): A("v_exp_f32 v%d, v%d" % (buf + i, buf + i))
            if pv: A(pv[1])
            for i in range(4, 8): A("v_exp_f32 v%d, v%d" % (buf + i, buf + i))
            if mm: A(mm[0])
            for i in range(4): A("v_cvt_pk_bf16_f32 v%d, v%d, v%d" % (pp + i, buf + 2 * i, buf + 2 * i + 1))
            if t >= 1:
                for x in rdv(t): A(x)
            for i in range(8, 12): A("v_exp_f32 v%d, v%d" % (buf + i, buf + i))
            if mm: A(mm[1])
            for i in range(12, 16): A("v_exp_f32 v%d, v%d" % (buf + i, buf + i))
            self.k2_slot()
            if t == self.o.get("fh_t", 7): self.k2_flagload(env)
            for i in range(4, 8): A("v_cvt_pk_bf16_f32 v%d, v%d, v%d" % (pp + i, buf + 2 * i, buf + 2 * i + 1))
        A("s_mov_b32 s%d, 0" % sM0); A("s_mov_b32 s%d, -1" % (sM0 + 1))
        A("s_lshl_b32 s%d, s%d, 2" % (sT0, sRA)); A("s_add_u32 s%d, s%d, s%d" % (sT0, sT0, sW)); A("s_mul_i32 s%d, s%d, 72" % (sT1, sT0))
        A("s_add_u32 s%d, s%d, s%d" % (sT1, sT1, sHD)); A("s_lshl_b32 s%d, s%d, 11" % (sT1, sT1)); A("s_add_u32 s%d, s%d, %d" % (sT1, sT1, ACT + 112 * 1024))
        A("s_lshl_b32 s%d, s%d, 4" % (sH, sRA)); A("s_add_u32 s%d, s%d, s%d" % (sH, sH, sHD)); A("s_lshl_b32 s%d, s%d, 2" % (sH, sH)); A("s_add_u32 s%d, s%d, s%d" % (sH, sH, sW))
        A("s_lshl_b32 s%d, s%d, 3" % (sH, sH)); A("s_add_u32 s%d, s%d, %d" % (sH, sH, FLO))
        A("v_mov_b32 v%d, v%d" % (vT, vO + 12)); A("v_mov_b32 v%d, v%d" % (vT + 1, vO + 12))
        A("v_permlane32_swap_b32 v%d, v%d" % (vT, vT + 1))
        A("v_rcp_f32 v%d, v%d" % (vT, vT + 1))
        A("v_cndmask_b32 v%d, v%d, 0, %s" % (vT + 1, vT, sr(sM0, 2)))
        for i in range(16): A("v_mul_f32 v%d, v%d, v%d" % (vO + i, vT if i < 12 else vT + 1, vO + i))
        for i in range(8): A("v_cvt_pk_bf16_f32 v%d, v%d, v%d" % (vPP + i, vO + 2 * i, vO + 2 * i + 1))
        for i in range(2):
            A.VM("buffer_store_dwordx4 %s, v%d, %s, s%d offen offset:%d sc1" % (vr(vPP + 4 * i, 4), vL16, sr(sWS, 4), sT1, 1024 * i), "ost")
        self.stamp(10)

    def k2_pre(self, env):
        A = self.A
        vL, vL16 = env["vL"], env["vL16"]
        self.vWD = vWD = 196
        self.vTA = vTA = 198
        self.vAO = vAO = 206
        sR64, sCB, sWOF = 16, 17, 18
        self.sR64, self.sCB, self.sWOF = sR64, sCB, sWOF
        sK2 = 19; self.sK2 = sK2
        vT = 112 + 0
        vT = 200
        A("s_cmp_lt_u32 s%d, 28" % sIDX); A("s_cselect_b32 s%d, 1, 0" % sK2)
        A("s_min_u32 s%d, s%d, 27" % (sT0, sIDX)); A("s_mul_i32 s%d, s%d, 37" % (sT1, sT0)); A("s_lshr_b32 s%d, s%d, 8" % (sT1, sT1))
        A("s_mul_i32 s%d, s%d, 7" % (sT2, sT1)); A("s_sub_u32 s%d, s%d, s%d" % (sCB, sT0, sT2))
        A("s_lshl_b32 s%d, s%d, 2" % (sR64, sXCD)); A("s_add_u32 s%d, s%d, s%d" % (sR64, sR64, sT1))
        A("v_bfe_u32 v%d, v%d, 4, 1" % (vT, vL)); A("v_lshlrev_b32 v%d, 2, v%d" % (vT, vT)); A("v_and_b32 v%d, 7, v%d" % (vT + 1, vL)); A("v_xor_b32 v%d, v%d, v%d" % (vT, vT, vT + 1))
        A("v_lshrrev_b32 v%d, 3, v%d" % (vT + 1, vL)); A("v_mul_u32_u24 v%d, 896, v%d" % (vT + 1, vT + 1)); A("v_lshl_add_u32 v%d, v%d, 4, v%d" % (vWD, vT, vT + 1))
        A("v_add_u32 v%d, %d, v%d" % (vWD + 1, 8 * 896, vWD))
        A("v_bfe_u32 v%d, v%d, 2, 2" % (vT, vL)); A("v_lshrrev_b32 v%d, 5, v%d" % (vT + 1, vL)); A("v_lshl_add_u32 v%d, v%d, 2, v%d" % (vT + 1, vT + 1, vT))
        A("v_and_b32 v%d, 2, v%d" % (vT, vT)); A("v_bfe_u32 v%d, v%d, 4, 1" % (vT + 2, vL)); A("v_xor_b32 v%d, v%d, v%d" % (vT, vT, vT + 2))
        A("v_lshlrev_b32 v%d, 5, v%d" % (vT, vT)); A("v_lshl_add_u32 v%d, v%d, 7, v%d" % (vT, vT + 1, vT))
        A("v_and_b32 v%d, 3, v%d" % (vT + 1, vL)); A("v_lshl_add_u32 v%d, v%d, 3, v%d" % (vT, vT + 1, vT))
        NSL = self.NSL = self.o.get("k2_slots", 13)
        RB = self.RB = 49152
        assert RB + 4 * NSL * 2048 <= LDS_BYTES
        A("s_mul_i32 s%d, s%d, %d" % (sWM, sW, NSL * 2048)); A("s_add_u32 s%d, s%d, %d" % (sWM, sWM, RB))
        A("v_add_u32 v%d, s%d, v%d" % (vTA, sWM, vT)); A("v_xor_b32 v%d, 64, v%d" % (vTA + 1, vTA))
        A("s_mul_i32 s%d, s%d, %d" % (sWOF, sW, 448 * 896)); A("s_lshl_b32 s%d, s%d, 7" % (sT0, sCB)); A("s_add_u32 s%d, s%d, s%d" % (sWOF, sWOF, sT0))
        A("s_mul_i32 s%d, s%d, %d" % (sT0, sR64, 2 * 144 * 1024)); A("s_add_u32 s%d, s%d, %d" % (sT0, sT0, ACT))
        A("v_add_u32 v%d, s%d, v%d" % (vAO, sT0, vL16)); A("v_add_u32 v%d, %d, v%d" % (vAO + 1, 144 * 1024, vAO))
        self.wq = list(range(36))
        self.w_issued = 0
    def k2_flagload(self, env):
        A = self.A; vL = env["vL"]; sR64 = self.sR64
        vF = self.vF = 112
        vT = 118
        A("s_lshr_b32 s%d, s%d, 1" % (sT0, sR64)); A("s_lshl_b32 s%d, s%d, 7" % (sT1, sT0)); A("s_add_u32 s%d, s%d, %d" % (sT1, sT1, FLH))
        A("v_and_b32 v%d, 15, v%d" % (vF, vL)); A("v_lshl_add_u32 v%d, v%d, 3, s%d" % (vF, vF, sT1))
        A.VM("buffer_load_dwordx2 %s, v%d, %s, 0 offen sc1" % (vr(vF + 2, 2), vF, sr(sWS, 4)), "fh")
        A("s_lshl_b32 s%d, s%d, 2" % (sT0, sT0)); A("s_add_u32 s%d, s%d, s%d" % (sT0, sT0, sW)); A("s_lshl_b32 s%d, s%d, 4" % (sT0, sT0))
        A("s_and_b32 s%d, s%d, 1" % (sT1, sR64)); A("s_lshl_b32 s%d, s%d, 1" % (sT1, sT1)); A("s_add_u32 s%d, s%d, s%d" % (sT0, sT0, sT1))
        A("s_lshl_b32 s%d, s%d, 3" % (sT0, sT0)); A("s_add_u32 s%d, s%d, %d" % (sT0, sT0, FLO))
        A("v_bfe_u32 v%d, v%d, 1, 2" % (vT, vL)); A("v_and_b32 v%d, 1, v%d" % (vT + 1, vL)); A("v_lshl_add_u32 v%d, v%d, 2, v%d" % (vT, vT, vT + 1))
        A("v_lshl_add_u32 v%d, v%d, 3, s%d" % (vF + 1, vT, sT0))

    def k2_wdma(self, k):
        A = self.A; sWOF = self.sWOF
        if k == 28:
            A("s_mul_i32 s%d, s%d, %d" % (sWOF, sW, 112 * 896)); A("s_lshl_b32 s%d, s%d, 7" % (sT0, self.sCB)); A("s_add_u32 s%d, s%d, s%d" % (sWOF, sWOF, sT0))
        elif k > 28: A("s_add_u32 s%d, s%d, %d" % (sWOF, sWOF, (16 if (k - 28) % 2 == 1 else 12) * 896))
        elif k > 0: A("s_add_u32 s%d, s%d, %d" % (sWOF, sWOF, 16 * 896))
        srd_ = sWD if k < 28 else sWO
        for i in range(2):
            A("s_add_u32 m0, s%d, %d" % (sWM, (k % self.NSL) * 2048 + 1024 * i))
            A("s_nop 0")
            A.VM("buffer_load_dwordx4 v%d, %s, s%d offen lds" % (self.vWD + i, sr(srd_, 4), sWOF), "kw%d" % k)
    def k2_slot(self):
        if self.w_issued < self.NSL:
            self.k2_wdma(self.w_issued); self.w_issued += 1

    def k2(self, env):
        A = self.A
        vL, vL16, vN, vFO = env["vL"], env["vL16"], env["vN"], env["vFO"]
        mf32 = env["mf32"]
        sR64, sCB = self.sR64, self.sCB
        vTA, vAO, NSL = self.vTA, self.vAO, self.NSL
        A.C("K2")
        while self.w_issued < NSL: self.k2_slot()
        vF = self.vF
        vWF = 12
        vXL = 28
        vACC = 128
        vT = 40
        sAO = 20
        lk = self.lab()
        A("s_cmp_eq_u32 s%d, 1" % self.sK2); A("s_cbranch_scc1 %s" % lk)
        A("s_waitcnt vmcnt(0)")
        A("buffer_store_dwordx2 %s, v%d, %s, s%d offen sc1" % (vr(vN, 2), vFO, sr(sWS, 4), sH))
        A("s_branch L_END")
        A.label(lk)
        self.poll(vF, vF + 2, "fh")
        self.stamp(11)
        DA = self.o.get("k2_da", 12)
        AF = lambda k, j: ar(((k % 32) * 2 + j) * 4, 4)
        A("s_mul_i32 s%d, s%d, %d" % (sAO, sW, 28 * 1024))
        def act(k):
            if k == 28:
                self.poll(vF + 1, vF + 4, "fo")
                A("s_lshl_b32 s%d, s%d, 13" % (sAO, sW)); A("s_add_u32 s%d, s%d, %d" % (sAO, sAO, 112 * 1024))
            elif k > 0 and k % 4 == 0: A("s_add_u32 s%d, s%d, 4096" % (sAO, sAO))
            for j in range(2):
                A.VM("buffer_load_dwordx4 %s, v%d, %s, s%d offen offset:%d sc1" % (AF(k, j), vAO + j, sr(sWS, 4), sAO, (k % 4) * 1024), "ka%d" % k)
        for k in range(DA): act(k)
        A("v_lshrrev_b32 v%d, 3, v%d" % (vT, vL)); A("v_mul_u32_u24 v%d, 896, v%d" % (vT, vT)); A("v_and_b32 v%d, 7, v%d" % (vT + 1, vL)); A("v_lshl_add_u32 v%d, v%d, 4, v%d" % (vT + 2, vT + 1, vT))
        A("s_lshl_b32 s%d, s%d, 3" % (sT0, sR64)); A("s_add_u32 s%d, s%d, s%d" % (sT0, sT0, sW)); A("s_mul_i32 s%d, s%d, %d" % (sT0, sT0, 8 * 896))
        A("s_lshl_b32 s%d, s%d, 7" % (sT1, sCB)); A("s_add_u32 s%d, s%d, s%d" % (sXO, sT0, sT1))
        A("v_add_u32 v%d, %d, v%d" % (vT + 3, 32 * 896, vT + 2))
        vOO = vT + 2
        def rdw(k):
            d = vWF + (k % 2) * 8
            return ["ds_read_b64_tr_b16 %s, v%d offset:%d" % (vr(d + 4 * T + 2 * j, 2), vTA + T, (k % NSL) * 2048 + j * 1024) for T in range(2) for j in range(2)]
        A.wait_vm("kw0")
        for x in rdw(0): A(x)
        FOK = max(0, 28 - DA - 6)
        for k in range(36):
            z = "0" if k == 0 else None
            W0 = vr(vWF + (k % 2) * 8, 4); W1 = vr(vWF + (k % 2) * 8 + 4, 4)
            tags = ["ka%d" % k] + (["kw%d" % (k + 1)] if k < 35 else [])
            A.wait_vm(*tags, lgkm=0)
            if k == 0:
                A.VM("buffer_store_dwordx2 %s, v%d, %s, s%d offen sc1" % (vr(vN, 2), vFO, sr(sWS, 4), sH))
            A(mf32(vACC, W0, AF(k, 0), z))
            if k < 35:
                for x in rdw(k + 1)[:2]: A(x)
            A(mf32(vACC + 16, W0, AF(k, 1), z))
            if k < 35:
                for x in rdw(k + 1)[2:]: A(x)
            A(mf32(vACC + 32, W1, AF(k, 0), z))
            if k + NSL < 36: self.k2_wdma(k + NSL)
            A(mf32(vACC + 48, W1, AF(k, 1), z))
            if k == FOK: A.VM("buffer_load_dwordx2 %s, v%d, %s, 0 offen sc1" % (vr(vF + 4, 2), vF + 1, sr(sWS, 4)), "fo")
            if k + DA < 36: act(k + DA)
            if k == 24:
                for j in range(2): A.VM("buffer_load_dwordx4 %s, v%d, %s, s%d offen" % (vr(vXL + 4 * j, 4), vOO + j, sr(sX, 4), sXO), "xl")
        self.stamp(12)
        A.C("reduce")
        A("s_lshl_b32 s%d, s%d, 14" % (sT0, sW))
        A("v_and_b32 v%d, 31, v%d" % (vT + 4, vL)); A("v_lshrrev_b32 v%d, 5, v%d" % (vT + 5, vL)); A("v_and_b32 v%d, 7, v%d" % (vT + 6, vL))
        A("v_xor_b32 v%d, v%d, v%d" % (vT + 5, vT + 5, vT + 6))
        A("v_lshlrev_b32 v%d, 8, v%d" % (vT + 4, vT + 4)); A("v_add_u32 v%d, s%d, v%d" % (vT + 4, sT0, vT + 4))
        for i in range(4):
            A("v_xor_b32 v%d, %d, v%d" % (vT + 7, 2 * i, vT + 5)); A("v_lshl_add_u32 v%d, v%d, 4, v%d" % (vT + 8 + i, vT + 7, vT + 4))
        A("v_lshrrev_b32 v%d, 3, v%d" % (vT + 4, vL)); A("v_lshlrev_b32 v%d, 1, v%d" % (vT + 5, vT + 6)); A("v_xor_b32 v%d, v%d, v%d" % (vT + 5, vT + 5, vT + 4))
        A("s_lshl_b32 s%d, s%d, 11" % (sT1, sW)); A("v_lshlrev_b32 v%d, 8, v%d" % (vT + 4, vT + 4)); A("v_lshl_add_u32 v%d, v%d, 4, v%d" % (vT + 12, vT + 5, vT + 4))
        A("v_add_u32 v%d, s%d, v%d" % (vT + 12, sT1, vT + 12)); A("v_xor_b32 v%d, 16, v%d" % (vT + 13, vT + 12))
        A("s_barrier")
        for T in range(2):
            for j in range(2):
                for i in range(4):
                    A("ds_write_b128 v%d, %s offset:%d" % (vT + 8 + i, vr(vACC + 32 * T + 16 * j + 4 * i, 4), j * 8192 + T * 128))
        A("s_waitcnt lgkmcnt(0)"); A("s_barrier")
        vRD = 64
        for j in range(2):
            for w in range(4):
                for e in range(2):
                    A("ds_read_b128 %s, v%d offset:%d" % (vr(vRD + j * 32 + w * 8 + e * 4, 4), vT + 12 + e, w * 16384 + j * 8192))
        A.wait_vm("xl")
        for j in range(2):
            b = vRD + j * 32
            A("s_waitcnt lgkmcnt(%d)" % (8 if j == 0 else 0))
            for i in range(8): A("v_add_f32 v%d, v%d, v%d" % (b + i, b + i, b + 8 + i))
            for i in range(8): A("v_add_f32 v%d, v%d, v%d" % (b + 16 + i, b + 16 + i, b + 24 + i))
            for i in range(4):
                A("v_lshlrev_b32 v%d, 16, v%d" % (b + 8 + 2 * i, vXL + 4 * j + i)); A("v_and_b32 v%d, 0xffff0000, v%d" % (b + 9 + 2 * i, vXL + 4 * j + i))
            for i in range(8): A("v_add_f32 v%d, v%d, v%d" % (b + i, b + i, b + 16 + i))
            for i in range(8): A("v_add_f32 v%d, v%d, v%d" % (b + i, b + i, b + 8 + i))
            for i in range(4): A("v_cvt_pk_bf16_f32 v%d, v%d, v%d" % (b + 24 + i, b + 2 * i, b + 2 * i + 1))
            A.VM("buffer_store_dwordx4 %s, v%d, %s, s%d offen" % (vr(b + 24, 4), vOO + j, sr(sOUT, 4), sXO))
        self.stamp(13)

def generate(opts):
    g = G(opts); g.build()
    body, npad = pad_hazards(g.A.L, verbose=opts.get("verbose"))
    head = open("parallel_sum__sliding_block__glu_gated_bilinear__prompt.s.ref").read().split("; Override launch")[0]
    txt = head + "; @launch grid=(256,1,1) block=(256,1,1) lds=%d\n" % LDS_BYTES
    txt += '.amdgcn_target "amdgcn-amd-amdhsa--gfx950"\n.text\n.globl %s\n.p2align 8\n.type %s,@function\n%s:\n' % (KN, KN, KN)
    txt += "\n".join(("  " + l) if not l.endswith(":") else l for l in body) + "\n"
    txt += """.section .rodata,"a"
.p2align 6
.amdhsa_kernel %s
  .amdhsa_next_free_vgpr 512
  .amdhsa_next_free_sgpr 102
  .amdhsa_accum_offset 256
  .amdhsa_group_segment_fixed_size 0
  .amdhsa_kernarg_size 80
  .amdhsa_user_sgpr_count 2
  .amdhsa_user_sgpr_kernarg_segment_ptr 1
  .amdhsa_system_sgpr_workgroup_id_x 1
.end_amdhsa_kernel
""" % KN
    return txt, npad

if __name__ == "__main__":
    opts = {}
    out = "k.s"
    for a in sys.argv[1:]:
        if "=" in a:
            k, v = a.split("="); opts[k] = int(v)
        else: out = a
    txt, npad = generate(opts)
    open(out, "w").write(txt)
    print("written", out, "lines", txt.count("\n"), "pad states", npad)
```

```python
import re

class Asm:
    def __init__(self):
        self.L = []
        self.vmc = 0
        self.tags = {}
        self._br = []
        self.dsc = 0; self.dtags = {}; self.vm_done = -10**6; self.ds_done = 0
    def I(self, s):
        for x in s.split("\n"):
            x = x.strip()
            if x: self.L.append(x)
    __call__ = I
    def C(self, s): self.L.append("; " + s)
    def label(self, name): self.L.append(name + ":")
    def VM(self, s, tag=None):
        self.I(s); self.vmc += 1
        if tag is not None: self.tags[tag] = self.vmc
    def tag(self, tag): self.tags[tag] = self.vmc
    def vm_n(self, *tags):
        t = max(self.tags[x] for x in tags)
        n = self.vmc - t
        assert n >= 0
        return min(n, 63)
    def wait_vm(self, *tags, lgkm=None):
        n = self.vm_n(*tags)
        s = "s_waitcnt vmcnt(%d)" % n
        if lgkm is not None: s += " lgkmcnt(%d)" % lgkm
        self.I(s)
    def DS(self, s, tag=None):
        self.I(s); self.dsc += 1
        if tag is not None: self.dtags[tag] = self.dsc
    def wait(self, vm=(), ds=()):
        parts = []
        vm = [t for t in vm if t is not None]; ds = [t for t in ds if t is not None]
        if vm:
            n = self.vm_n(*vm)
            if n < self.vm_known(): parts.append("vmcnt(%d)" % n); self.vm_done = self.vmc - n
        if ds:
            n = self.dsc - max(self.dtags[x] for x in ds)
            if n < self.dsc - self.ds_done: parts.append("lgkmcnt(%d)" % min(n, 15)); self.ds_done = self.dsc - min(n, 15)
        if parts: self.I("s_waitcnt " + " ".join(parts))
    def vm_known(self): return self.vmc - self.vm_done
    def wait_all_ds(self):
        self.I("s_waitcnt lgkmcnt(0)"); self.ds_done = self.dsc
    def _state(self): return (self.vmc, dict(self.tags), self.dsc, dict(self.dtags), self.vm_done, self.ds_done)
    def br_begin(self): self._br.append([self._state(), []])
    def br_alt_end(self):
        b = self._br[-1]; b[1].append(self._state())
        self.vmc, t, self.dsc, d, self.vm_done, self.ds_done = b[0]; self.tags = dict(t); self.dtags = dict(d)
    def br_end(self):
        st0, alts = self._br.pop()
        def merge(c0, cs, ts):
            c = c0 + min(x - c0 for x in cs); out = {}
            keys = set().union(*[set(t) for t in ts])
            for k in keys:
                rel = min(ci - t[k] for ci, t in zip(cs, ts) if k in t)
                out[k] = c - rel
            return c, out
        self.vmc, self.tags = merge(st0[0], [a[0] for a in alts], [a[1] for a in alts])
        self.dsc, self.dtags = merge(st0[2], [a[2] for a in alts], [a[3] for a in alts])
        self.vm_done = -10**6; self.ds_done = -10**6

REG = re.compile(r"\b([vas])(\d+)\b|\b([vas])\[(\d+):(\d+)\]|\b(vcc|exec|m0)\b")
def regs(op):
    out = []
    for m in REG.finditer(op):
        if m.group(1): out.append((m.group(1), int(m.group(2))))
        elif m.group(3): out += [(m.group(3), i) for i in range(int(m.group(4)), int(m.group(5)) + 1)]
        else: out.append((m.group(6), 0))
    return out
TRANS = ("v_exp_f32", "v_log_f32", "v_rcp_f32", "v_rsq_f32", "v_sqrt_f32", "v_sin_f32", "v_cos_f32", "v_rcp_iflag_f32")
def split_ops(rest):
    ops = []; depth = 0; cur = ""
    for ch in rest:
        if ch == '[': depth += 1
        if ch == ']': depth -= 1
        if ch == ',' and depth == 0: ops.append(cur.strip()); cur = ""
        else: cur += ch
    if cur.strip(): ops.append(cur.strip())
    return ops

class Ins:
    def __init__(self, text):
        self.text = text
        t = text.split(";")[0].strip()
        p = t.split(None, 1)
        self.mn = p[0]; ops = split_ops(p[1]) if len(p) > 1 else []
        mn = self.mn
        self.mfma = mn.startswith("v_mfma")
        self.valu = mn.startswith("v_") and not self.mfma
        self.vmem = mn.startswith("buffer_") or mn.startswith("global_")
        self.ds = mn.startswith("ds_")
        self.salu = mn.startswith("s_")
        self.trans = any(mn.startswith(x) for x in TRANS)
        self.ldsdma = self.vmem and (" lds" in t or "load_lds" in mn)
        self.defs = []; self.uses = []; self.srcC = []; self.srcAB = []; self.sdata = []
        self.passes = 0
        R = [regs(o) for o in ops]
        if self.mfma:
            self.defs = R[0]; self.srcAB = R[1] + R[2]; self.srcC = R[3]; self.uses = self.srcAB + self.srcC
            self.passes = 8 if "32x32x16" in mn else 4 if "16x16x32" in mn else 2 if "4x4x4" in mn else 16
        elif self.valu:
            if mn.startswith("v_cmp"):
                self.defs = R[0]; self.uses = sum(R[1:], [])
            elif mn.startswith("v_permlane32_swap") or mn.startswith("v_permlane16_swap"):
                self.defs = R[0] + R[1]; self.uses = R[0] + R[1]
            elif mn.startswith("v_add_co") or mn.startswith("v_addc_co") or mn.startswith("v_sub_co"):
                self.defs = R[0] + R[1]; self.uses = sum(R[2:], [])
            elif mn == "v_nop": pass
            else:
                self.defs = R[0]; self.uses = sum(R[1:], [])
                if mn.startswith("v_fmac") or mn.startswith("v_dot2c") or mn.startswith("v_writelane"): self.uses += R[0]
                if mn.startswith("v_cndmask") and len(ops) == 3: self.uses.append(("vcc", 0))
            self.dpp = "_dpp" in mn or "row_" in t or "quad_perm" in t
        elif self.vmem:
            if "store" in mn or ("atomic" in mn):
                self.uses = sum(R, [])
                if mn.startswith("buffer_"): self.sdata = R[0]
                else: self.sdata = R[1]
                if not re.search(r"x[34]", mn): self.sdata = []
            elif self.ldsdma: self.uses = sum(R, []) + [("m0", 0)]
            elif mn in ("buffer_wbl2", "buffer_inv"): pass
            else: self.defs = R[0]; self.uses = sum(R[1:], [])
        elif self.ds:
            if "write" in mn: self.uses = sum(R, [])
            else: self.defs = R[0]; self.uses = sum(R[1:], [])
        elif self.salu:
            if mn.startswith("s_cmp") or mn.startswith("s_cbranch") or mn.startswith("s_wait") or mn.startswith("s_bitcmp") or mn in ("s_barrier", "s_nop", "s_branch", "s_endpgm", "s_sleep", "s_setprio"):
                self.uses = sum(R, [])
            else:
                self.defs = R[0] if R else []; self.uses = sum(R[1:], [])
        self.states = 1
        if mn == "s_nop": self.states = int(ops[0], 0) + 1

def need(p, c):
    n = 0
    pd = set(p.defs);
    isv = lambda s: {r for r in s if r[0] in "va" and len(r[0]) == 1}
    if p.valu:
        pv = isv(pd)
        if c.mfma and pv & set(c.uses): n = max(n, 2)
        if c.valu:
            if p.trans and not c.trans and pv & (set(c.uses)): n = max(n, 1)
            if p.trans and c.trans and pv & set(c.uses): n = max(n, 1)
            if c.mn.startswith("v_permlane") and pv & set(c.uses): n = max(n, 2)
            if getattr(c, "dpp", False) and pv & set(c.uses): n = max(n, 2)
            if (c.mn.startswith("v_readfirstlane") or c.mn.startswith("v_readlane")) and pv & set(c.uses): n = max(n, 1)
        ps = {r for r in pd if r[0] in ("s", "vcc")}
        if ps:
            if c.valu and ps & set(c.uses): n = max(n, 4 if "lane" in c.mn else 2)
            if c.vmem and ps & set(c.uses): n = max(n, 5)
            if c.salu and ps & set(c.uses): n = max(n, 1)
        if p.trans and (c.vmem or c.ds) and pv & set(c.uses): n = max(n, 1)
        if p.mn.startswith("v_dot"):
            if c.mn == p.mn:
                if pv & set(c.uses[:-1] if len(c.uses) > 1 else []) and not (c.uses[-1] in pv and len(pv & set(c.uses[:-1])) == 0): n = max(n, 3)
            elif pv & (set(c.uses) | set(c.defs)): n = max(n, 3)
    if p.mfma:
        big = {2: 5, 4: 8, 8: 12, 16: 20}[p.passes]
        if c.mfma:
            if pd & set(c.srcAB): n = max(n, big)
            if pd & set(c.srcC):
                if not (p.defs == c.srcC and p.passes == c.passes): n = max(n, big - 2 if p.passes > 2 else 4)
                elif p.passes == 2: n = max(n, 2)
            elif pd & set(c.defs): n = max(n, big)
        elif (c.valu or c.vmem or c.ds) and pd & (set(c.uses) | set(c.defs)): n = max(n, big)
        if c.valu and set(p.srcC) & set(c.defs): n = max(n, {2: 1, 4: 3, 8: 7, 16: 15}[p.passes])
    if p.salu and ("m0", 0) in pd and c.ldsdma: n = max(n, 1)
    if p.vmem and p.sdata:
        if set(p.sdata) & set(c.defs): n = max(n, 2)
    return n

def pad_hazards(lines, verbose=False):
    out = []; hist = []
    snaps = {}
    nins = 0
    for ln in lines:
        s = ln.split(";")[0].strip()
        if not s or s.startswith("."):
            out.append(ln); continue
        if s.endswith(":"):
            lab = s[:-1]
            for h in snaps.pop(lab, []): hist += [[i, d] for i, d in h]
            out.append(ln); continue
        c = Ins(s)
        req = 0
        for p, d in hist:
            k = need(p, c) - d
            if k > req: req = k; who = p
        if req > 0:
            if verbose: print("pad %d before '%s' (after '%s')" % (req, s, who.text))
            nins += req
            while req > 0:
                k = min(req, 16); out.append("s_nop %d" % (k - 1)); req -= k
                for h in hist: h[1] += k
        out.append(ln)
        for h in hist: h[1] += c.states
        hist.append([c, 0])
        hist = [h for h in hist if h[1] < 24]
        if c.mn.startswith("s_cbranch") or c.mn == "s_branch":
            tgt = s.split()[-1]
            snaps.setdefault(tgt, []).append([[i, d] for i, d in hist])
            if c.mn == "s_branch": hist = []
    return out, nins
```

```python
import sys
from asmlib import Asm, pad_hazards

KN = "parallel_sum__sliding_block__glu_gated_bilinear__prompt_kernel"
FLQ, FLV, FLH0, FLH1, FLO = 0, 2048, 4096, 12288, 20480
RS = 32768
CSR = 65536
QKV = 0x40000
ACT = QKV + 64 * 168 * 512
WS_BYTES = ACT + 64 * 144 * 1024
STAMP = WS_BYTES
XR = 0
CSL = 65536
R5 = 49152
WR = 98304
LDS_BYTES = 163840
SPIN_MAX = 200000

def vr(a, n=1): return "v%d" % a if n == 1 else "v[%d:%d]" % (a, a + n - 1)
def ar(a, n=1): return "a%d" % a if n == 1 else "a[%d:%d]" % (a, a + n - 1)
def sr(a, n=1): return "s%d" % a if n == 1 else "s[%d:%d]" % (a, a + n - 1)

sW, sA, sB, sIDX, sSPIN = 3, 4, 5, 6, 7
sX, sWQKV, sG1, sG2, sWS, sWD, sWO, sOUT, sDBG = 8, 12, 16, 20, 24, 28, 32, 36, 40
sCS = 36
TB = 44
sG1O, sG2O, sG1S, sG1S3, sSF, sS0, sS1, sCO, sCSS, sCSO, sWB0, sWB1, sWB2, sAB0, sAB1, sAB2, sKS0, sMX, sM5, sKM = \
    [TB + i for i in (0, 1, 2, 3, 4, 6, 10, 14, 15, 16, 20, 21, 22, 23, 24, 25, 26, 29, 30, 31)]
sG1ST, sG1R, sG2R, sKWB = TB + 20, TB + 21, TB + 22, TB + 23
sROT = 99
sT0, sT1, sT2, sT3 = 76, 77, 78, 79
sNON, sXO, sWO1, sXM, sWM, sG1Q, sACT, sM0, sM1 = 80, 82, 83, 84, 85, 86, 87, 88, 90
sL = 92
sXCD, sRB, sCG, sRT0 = 92, 93, 94, 95
STASH = ["FE", "FH", "FQ", "FO", "CST", "RSO", "RSC", "QO", "RSQ", "OST", "XO2", "RSK", "FB0", "FB2", "KF0", "KF1", "KF2", "RA", "ME", "MO", "ODD", "FXO", "QS", "G1STR"] + ["KW%d" % i for i in range(11)] + ["KA%d" % i for i in range(11)] + ["TG1", "TG2", "TW1"]
ROW = 81

ROTK = 1
ZDUM = 1
def table():
    rows = []
    for wg in range(256):
        xcd, idx = wg & 7, wg >> 3
        rb = 8 * (xcd & 1) + (idx & 7); cg = 4 * (xcd >> 1) + (idx >> 3)
        isq = 12 <= cg <= 14
        gu0 = 2 * cg if cg < 12 else 27; gu1 = 2 * cg + 1 if cg < 12 else 12 + cg
        h = 2 * xcd + (idx & 1); ra = idx >> 1; odd = h & 1
        i2 = min(idx, 27); r64 = 4 * xcd + i2 // 7; cb = i2 % 7
        for w in range(4):
            a, b = w >> 1, w & 1
            rt = [4 * rb + (w ^ j) for j in range(2)]
            st1 = 2688 if isq else 3584
            ud = min(2 * cg - 8 + a, 20); uc = min(2 * cg - 8 + b, 20)
            tt = 2 * b + a
            t = {}
            t[0] = (ud if isq else gu0) * 128 + 32 * b * st1
            t[1] = gu1 * 128 + 32 * b * 3584
            t[2] = 16 * st1; t[3] = 48 * st1
            for j in range(2):
                t[4 + j] = QKV + rt[j] * 86016 + (2 * cg + b) * 2048
                for tl in range(2):
                    t[6 + 2 * tl + j] = (QKV + rt[j] * 86016 + (2 * uc + (a ^ tl)) * 2048) if isq else (ACT + rt[j] * 147456 + ((4 * gu0 + tt) ^ tl) * 1024)
                    if ZDUM and (cg == 15 or (cg == 14 and b == 1)): t[6 + 2 * tl + j] = 0x40000000
                    t[10 + 2 * tl + j] = ACT + rt[j] * 147456 + ((4 * gu1 + tt) ^ tl) * 1024
            line, ps = idx & 1, (idx >> 1) & 1
            half = (xcd ^ (idx >> 2)) & 1
            cq = isq and ps == 0
            if cq: cu = min(2 * cg - 8 + line, 20); col = cu * 128; unit = cu + 40; cstr = 2688
            else: g_ = gu0 if ps == 0 else gu1; col = g_ * 128; unit = g_ + 28 * line; cstr = 3584
            t[14] = col + (4 * half + w) * 56 * cstr; t[15] = 8 * cstr
            for tl in range(2):
                t[16 + tl] = CSR + ((uc + 40) * 2048 + (a ^ tl) * 512 if isq else gu0 * 2048 + (tt ^ tl) * 256)
                t[18 + tl] = CSR + gu1 * 2048 + (tt ^ tl) * 256
            ab = ACT + r64 * 2 * 147456
            rr = (i2 // 7 + cb) if ROTK else 0
            E_ = [6 * w + 2 * ((i + rr) % 3) for i in range(3)]
            L_ = [[6 * w + 1, 6 * w + 3, 6 * w + 5, 24 + w][(i + rr) % 4] for i in range(4)]
            O_ = [4 * w + (i + rr) % 4 for i in range(4)]
            kwb = [g_ * 64 * 896 + cb * 128 for g_ in E_ + L_] + [hh * 28 * 896 + cb * 128 for hh in O_]
            kab = [ab + g_ * 4096 for g_ in E_ + L_] + [ab + (112 + 2 * hh) * 1024 for hh in O_]
            t[20] = 64 * st1; t[21] = t[22] = t[23] = t[24] = t[25] = 0
            c0 = (7 * h) >> 1; kt = 4 * ra - 8 + 3 * w; qt = 4 * ra + w
            for i in range(3): t[26 + i] = QKV + max(kt + i, 0) * 86016 + c0 * 512
            t[29] = w * 12288; t[30] = R5 + w * 10240; t[31] = w * 6144
            fb = ((r64 >> 1) * 64 + 2 * (r64 & 1)) * 8
            s = dict(FE=(FLV + (rb * 16 + (cg - 12) * 4 + w) * 8) if isq else (FLH0 + ((rb * 16 + cg) * 4 + w) * 8), FH=FLH1 + ((rb * 16 + cg) * 4 + w) * 8,
                     FQ=FLQ + (rb * 16 + cg) * 8, FO=FLO + ((ra * 16 + h) * 4 + w) * 8,
                     CST=CSR + unit * 2048 + half * 1024 + b * 512 + a * 8, RSO=RS + (128 * rb + 8 * cg + 2 * w) * 8, RSC=RS + (rt[0] & ~1) * 256,
                     QO=QKV + qt * 86016 + c0 * 512, RSQ=RS + qt * 256, OST=ACT + (qt * 144 + 112 + 2 * h) * 1024,
                     XO2=(64 * r64 + 8 * w) * 896 + cb * 128, RSK=RS + (64 * r64 + 8 * w) * 8, FB0=FLH0 + fb + w * 96, FB2=FLO + fb + w * 128,
                     KF0=0x3f80 if kt < 0 else 0, KF1=0x3f80 if kt + 1 < 0 else 0, KF2=0x3f80 if kt + 2 < 0 else 0, RA=ra,
                     ME=0 if odd else 0xffffffff, MO=0xffffffff if odd else 0, ODD=odd, FXO=(0 if odd else 3 * 512 + 8) + w * 6144, QS=0x3e8b98d6 if cg < 7 else 0x3f800000, G1STR=st1)
            s['TG1'] = (ud if isq else gu0) * 128 + (28 * rb + 14 * b) * st1; s['TG2'] = gu1 * 128 + (28 * rb + 14 * b) * 3584; s['TW1'] = cg * 128 + (192 + 16 * rb + 4 * w) * 2688
            for i in range(11): s['KW%d' % i] = kwb[i]; s['KA%d' % i] = kab[i]
            rows.append([t[i] for i in range(32)] + [s[k] for k in STASH])
    return rows

vL, vL16 = 1, 2
vWD, vN, vFO, vG2D, vAO1, vST = 4, 6, 8, 9, 10, 11
vG1D2, vG2D2 = 90, 91
vXA, vW1A, vG1D = 12, 20, 21
vF0, vF1, vF2, vAT, vVT = 12, 13, 14, 16, 18
vS2 = 21
vG1A, vG2A, vAF, vVF, vSEL, vWF = 22, 24, 26, 27, 28, 32
vCSF, vMF, vCF, vCFF, vR, vT = 48, 52, 60, 76, 80, 84
vKA, vVA, vFX = 92, 93, 95
vQ, vTA, vKD, vP = 96, 104, 110, 112
vXD, vW1D = 112, 116
ACA, ACB, ACF = 128, 192, 192
vFT, vRSD, vDUM, vCO, vRO, vRD2, vCD, vCA = 224, 232, 252, 244, 248, 250, 254, 255
vMA, vMB = 128, 144

def S(fmt, *a): return fmt % a

class G:
    def __init__(self, opts):
        self.o = opts; self.A = Asm(); self.nlab = 0; self.ool = []
    def lab(self, p="L"):
        self.nlab += 1; return "%s%d" % (p, self.nlab)
    def srd(self, d, ptr, size):
        A = self.A
        A("s_mov_b32 s%d, s%d" % (d, ptr)); A("s_and_b32 s%d, s%d, 0xffff" % (d + 1, ptr + 1))
        A("s_mov_b32 s%d, %d" % (d + 2, size)); A("s_mov_b32 s%d, 0x20000" % (d + 3))
    def stamp(self, i, light=False):
        if not self.o.get("stamps"): return
        if self.o.get("stamps") == 2 and i not in (0, 2, 6, 10, 12, 13): return
        if self.o.get("stamps") == 3 and i < 32 and i not in (0, 1, 2, 4, 6, 10, 13): return
        if i >= 32 and self.o.get("stamps") != 3: return
        A = self.A
        A("s_memtime s[100:101]"); A.wait_all_ds()
        A("v_writelane_b32 v0, s100, %d" % i)
        if not light:
            A("s_memrealtime s[100:101]"); A.wait_all_ds()
            A("v_writelane_b32 v3, s100, %d" % i)
    def stamp_flush(self):
        if not self.o.get("stamps"): return
        A = self.A
        A("s_lshl_b32 s100, s2, 2"); A("s_add_u32 s100, s100, s%d" % sW); A("s_lshl_b32 s100, s100, 9")
        A("s_add_u32 s100, s100, %d" % STAMP)
        A("v_lshlrev_b32 v2, 2, v%d" % vL)
        A("buffer_store_dword v0, v2, s[%d:%d], s100 offen" % (sWS, sWS + 3))
        A("buffer_store_dword v3, v2, s[%d:%d], s100 offen offset:256" % (sWS, sWS + 3))
    def spinlog(self, name):
        if not self.o.get("stamps"): return
        i = 24 + ["fq", "fv", "fh0", "fh1", "fo", "rs", "cs", "nonce"].index(name)
        self.A("v_writelane_b32 v0, s%d, %d" % (sSPIN, i))
    def put(self, x):
        A = self.A
        if callable(x): x()
        elif isinstance(x, list):
            for y in x: self.put(y)
        elif isinstance(x, tuple):
            if x[0] == "VM":
                tg = x[2] if len(x) > 2 else None
                import re as _re
                if self.o.get("dropvm") and _re.search(self.o["dropvm"], str(tg)): A.tag(tg)
                elif self.o.get("timevm") and _re.search(self.o["timevm"], str(tg)) and getattr(self, "ntv", 0) < 14:
                    n_ = getattr(self, "ntv", 0); self.ntv = n_ + 1
                    self.stamp(32 + 2 * n_, True); A.VM(x[1], tg); self.stamp(33 + 2 * n_, True)
                else: A.VM(x[1], tg)
            elif x[0] == "DS": A.DS(x[1], x[2] if len(x) > 2 else None)
            elif x[0] == "W": A.wait(vm=x[1], ds=x[2])
            elif x[0] == "L": A.label(x[1])
        else: A(x)
    def rl(self, dst, name): return "v_readlane_b32 s%d, v%d, %d" % (dst, vST, STASH.index(name))
    def flagload(self, voff, vt, tag, soff="0"):
        return ("VM", "buffer_load_dwordx2 %s, v%d, %s, %s offen sc1" % (vr(vt, 2), voff, sr(sWS, 4), soff), tag)
    def flagstore(self, soff):
        return ("VM", "buffer_store_dwordx2 %s, v%d, %s, s%d offen sc1" % (vr(vN, 2), vFO, sr(sWS, 4), soff))
    def spin(self, name, loads, check):
        ok = self.lab("OK"); sp = self.lab("SPIN")
        def slow():
            A = self.A
            A.label(sp)
            A("s_mov_b32 s%d, 0" % sSPIN)
            lp = sp + "L"; A.label(lp)
            A("s_sleep %d" % self.o.get("slp", 4))
            for l in loads: A(l[1])
            A("s_add_u32 s%d, s%d, 1" % (sSPIN, sSPIN))
            A("s_cmp_ge_u32 s%d, %d" % (sSPIN, self.o.get("spinmax", SPIN_MAX)))
            A("s_waitcnt vmcnt(0)")
            A("s_cbranch_scc1 %sX" % sp)
            for c in check: A(c); A("s_nop 1")
            A("s_cbranch_scc0 %s" % lp)
            A.label(sp + "X")
            self.spinlog(name)
            A("s_nop 4")
            A("s_branch %s" % ok)
        self.ool.append(slow)
        return [("W", [name], [])] + check[:-1] + [[check[-1], "s_cbranch_scc0 %s" % sp, ("L", ok)]]
    def poll(self, voff, vt, name, soff="0"):
        return self.spin(name, [self.flagload(voff, vt, name, soff)],
                         ["v_cmp_eq_u64 vcc, %s, %s" % (sr(sNON, 2), vr(vt, 2)), "s_cmp_eq_u64 vcc, exec"])
    def tagcheck(self, regs, t):
        o = []
        for i, r in enumerate(regs):
            if i == 0: o.append("v_xor_b32 v%d, s%d, v%d" % (t, sNON, r))
            else: o.append("v_bitop3_b32 v%d, v%d, s%d, v%d bitop3:0xbe" % (t, r, sNON, t))
        return o + ["v_cmp_eq_u32 vcc, 0, v%d" % t, "s_cmp_eq_u64 vcc, exec"]

    def XF(self, j, ks): return ar((j * 28 + ks) * 4, 4)
    def mf32(self, d, a_, b_, c=None): return "v_mfma_f32_32x32x16_bf16 %s, %s, %s, %s" % (vr(d, 16), a_, b_, c if c is not None else vr(d, 16))
    def mf16(self, d, a_, b_, c=None): return "v_mfma_f32_16x16x32_bf16 %s, %s, %s, %s" % (vr(d, 4), a_, b_, c if c is not None else vr(d, 4))
    def cfrag(self, dst, c, t):
        return ["v_cvt_pk_bf16_f32 v%d, v%d, v%d" % (t, c, c), "v_lshlrev_b32 v%d, 16, v%d" % (t, t),
                "v_sub_f32 v%d, v%d, v%d" % (t + 1, c, t), "v_cvt_pk_bf16_f32 v%d, v%d, v%d" % (dst, t, t + 1)]
    def qkv_epi(self, acc, vscale, soff, pk, tag):
        o = []
        for h in range(2):
            for i in range(8): o.append("v_mul_f32 v%d, v%d, v%d" % (acc + 8 * h + i, vscale, acc + 8 * h + i))
            for i in range(4): o.append("v_cvt_pk_bf16_f32 v%d, v%d, v%d" % (pk + 4 * h + i, acc + 8 * h + 2 * i, acc + 8 * h + 2 * i + 1))
        st = lambda h: ("VM", "buffer_store_dwordx4 %s, v%d, %s, s%d offen offset:%d sc1" % (vr(pk + 4 * h, 4), vL16, sr(sWS, 4), soff, 1024 * h), tag)
        sw = lambda r: "v_permlane32_swap_b32 v%d, v%d" % (r, r + 2)
        o += [sw(pk), sw(pk + 1), sw(pk + 4), st(0), sw(pk + 5), st(1)]
        return o
    def gu_epi(self, acc, soff, pk, tag):
        o = []
        for i in range(8): o.append("v_mul_f32 v%d, v%d, v%d" % (acc + i, acc + i, acc + 8 + i))
        for i in range(4): o.append("v_cvt_pk_bf16_f32 v%d, v%d, v%d" % (pk + i, acc + 2 * i, acc + 2 * i + 1))
        o.append(("VM", "buffer_store_dwordx4 %s, v%d, %s, s%d offen sc1" % (vr(pk, 4), vL16, sr(sWS, 4), soff), tag))
        return o

    def kw_loc(self, k):
        if 13 <= k <= 18: return ("X", k - 13)
        if 19 <= k <= 28: return ("5", (k - 19) % 5)
        if k <= 4: return ("5", k)
        if k <= 12: return ("W", k - 5)
        if k <= 31: return ("K", k - 29)
        return self.kw_loc(k - 32)
    def kw_off(self, k):
        r, i = self.kw_loc(k)
        if r == "W": return [2, 3, 0, 1][i // 2] * 16384 + (i % 2) * 2048
        return i * 2048
    def kw_dma(self, k):
        r, i = self.kw_loc(k)
        sm = {"X": sMX, "5": sM5, "W": sXM, "K": sKM}[r]
        grp, rows = (k // 4, 16 * (k % 4)) if k < 28 else (7 + (k - 28) // 2, 16 * (k % 2))
        srd_ = sWD if k < 28 else sWO
        if k in self.o.get("skipkw", []): return [lambda: self.A.tag("kw%d" % k)]
        def pre():
            if getattr(self, "kwg", None) != grp: self.A(self.rl(sKWB, "KW%d" % grp)); self.kwg = grp
        pre.wt = 0.5
        return [pre, "s_add_u32 m0, s%d, %d" % (sm, self.kw_off(k) + (WR if r == "W" else 0)), "s_add_u32 s%d, s%d, %d" % (sT3, sKWB, rows * 896),
                ("VM", "buffer_load_dwordx4 v%d, %s, s%d offen lds" % (vWD, sr(srd_, 4), sT3), "kw%d" % k),
                ("VM", "buffer_load_dwordx4 v%d, %s, s%d offen offset:1024 lds" % (vWD + 1, sr(srd_, 4), sT3), "kw%d" % k)]
    def kw_read(self, k, dst):
        r, i = self.kw_loc(k); va = vTA + {"X": 0, "5": 2, "W": 4, "K": 0}[r]
        return [("DS", "ds_read_b64_tr_b16 %s, v%d offset:%d" % (dst(T, j), va + T, self.kw_off(k) + j * 1024), "kr%d" % k) for T in range(2) for j in range(2)]
    def kw_drain(self, k):
        x = k - 13
        return [("W", ["kw%d" % k], [])] + self.kw_read(k, lambda T, j: ar((T * 28 + x) * 4 + 2 * j, 2))
    def AF(self, k, j):
        if k < 12: return self.XF(j, 16 + k)
        if k < 16: return ar(224 + (k - 12) * 8 + 4 * j, 4)
        if k < 26: return vr(24 + (k - 16) * 8 + 4 * j, 4)
        if k < 34: return vr(192 + (k - 26) * 8 + 4 * j, 4)
        return self.XF(j, 16 + k - 34)
    def act(self, k):
        o = []
        grp, i = (k // 4, k % 4) if k < 28 else (7 + (k - 28) // 2, k % 2)
        if i == 0: o += [self.rl(sT2, "KA%d" % grp), "s_nop 0", "s_mov_b32 s%d, s%d" % (sACT, sT2)]
        for j in range(2):
            o.append(("VM", "buffer_load_dwordx4 %s, v%d, %s, s%d offen offset:%d sc1" % (self.AF(k, j), vAO1 if j else vL16, sr(sWS, 4), sACT, i * 1024), "ka%d" % k))
        return o

    def build(self):
        A = self.A; o = self.o; put = self.put; rl = self.rl
        XF, mf32, mf16 = self.XF, self.mf32, self.mf16
        T = vT
        if o.get("stamps"): A("s_memrealtime s[90:91]")
        A("s_cmp_ge_u32 s2, 256"); A("s_cbranch_scc1 L_END")
        A("s_load_dwordx16 s[44:59], s[0:1], 0"); A("s_load_dwordx4 s[60:63], s[0:1], 64")
        A("v_lshrrev_b32 v3, 6, v0"); A("v_and_b32 v%d, 63, v0" % vL)
        A("v_readfirstlane_b32 s%d, v3" % sW)
        A("v_lshlrev_b32 v%d, 4, v%d" % (vL16, vL))
        A("s_and_b32 s%d, s2, 7" % sXCD); A("s_lshr_b32 s%d, s2, 3" % sIDX)
        A("s_and_b32 s%d, s%d, 1" % (sT0, sXCD)); A("s_lshl_b32 s%d, s%d, 3" % (sT0, sT0)); A("s_and_b32 s%d, s%d, 7" % (sT1, sIDX)); A("s_add_u32 s%d, s%d, s%d" % (sRB, sT0, sT1))
        A("s_lshr_b32 s%d, s%d, 1" % (sT0, sXCD)); A("s_lshl_b32 s%d, s%d, 2" % (sT0, sT0)); A("s_lshr_b32 s%d, s%d, 3" % (sT1, sIDX)); A("s_add_u32 s%d, s%d, s%d" % (sCG, sT0, sT1))
        vR8, vSW = vCD, vCA
        A("v_lshrrev_b32 v%d, 3, v%d" % (vR8, vL)); A("v_lshrrev_b32 v%d, 4, v%d" % (T + 1, vL)); A("v_and_b32 v%d, 7, v%d" % (T + 2, vL))
        A("v_xor_b32 v%d, v%d, v%d" % (T + 3, T + 2, T + 1))
        A("v_mul_u32_u24 v%d, 896, v%d" % (T + 4, vR8))
        A("v_lshl_add_u32 v%d, v%d, 4, v%d" % (vXD, T + 3, T + 4))
        A("v_xor_b32 v%d, 64, v%d" % (vXD + 1, vXD))
        A("v_add_u32 v%d, %d, v%d" % (vXD + 3, 24 * 896 - 3072, vXD + 1))
        A("v_add_u32 v%d, %d, v%d" % (vXD + 1, 8 * 896 - 1024, vXD + 1))
        A("v_add_u32 v%d, %d, v%d" % (vXD + 2, 16 * 896 - 2048, vXD))
        A("s_lshl_b32 s%d, s%d, 2" % (sRT0, sRB)); A("s_add_u32 s%d, s%d, s%d" % (sRT0, sRT0, sW)); A("s_mul_i32 s%d, s%d, %d" % (sXO, sRT0, 32 * 896))
        A("s_lshl_b32 s%d, s%d, 12" % (sXM, sW))
        A("v_and_b32 v%d, 1, v%d" % (vSW, T + 1)); A("v_lshlrev_b32 v%d, 2, v%d" % (vSW, vSW)); A("v_xor_b32 v%d, v%d, v%d" % (vSW, vSW, T + 2))
        A("v_lshlrev_b32 v%d, 4, v%d" % (vSW, vSW))
        A("s_movk_i32 s%d, 2688" % sT2)
        A("v_mad_u32_u24 v%d, v%d, s%d, v%d" % (vW1D, vR8, sT2, vSW))
        A("v_add_u32 v%d, %d, v%d" % (vW1D + 1, 8 * 2688 - 1024, vW1D))
        A("v_add_u32 v%d, v%d, v%d" % (vWD, T + 4, vSW)); A("v_add_u32 v%d, %d, v%d" % (vWD + 1, 8 * 896 - 1024, vWD))
        A("s_mul_i32 s%d, s%d, %d" % (sWO1, sW, 16 * 2688)); A("s_lshl_b32 s%d, s%d, 7" % (sT0, sCG)); A("s_add_u32 s%d, s%d, s%d" % (sWO1, sWO1, sT0))
        A("s_lshl_b32 s%d, s%d, 11" % (sWM, sW)); A("s_add_u32 s%d, s%d, %d" % (sWM, sWM, WR))
        A("s_lshl_b32 s%d, s%d, 4" % (sT3, sRB)); A("s_add_u32 s%d, s%d, s%d" % (sT3, sT3, sCG)); A("s_lshl_b32 s%d, s%d, 2" % (sT3, sT3)); A("s_add_u32 s%d, s%d, s%d" % (sT3, sT3, sW))
        A("s_mul_i32 s%d, s%d, 1792" % (sM0, sT3))
        A("v_cmp_gt_u32 vcc, 56, v%d" % vL); A("v_mov_b32 v%d, 0x10000000" % (T + 5))
        A("s_lshr_b32 s%d, s%d, 1" % (sA, sW)); A("s_and_b32 s%d, s%d, 1" % (sB, sW))
        A("s_getpc_b64 s[96:97]"); A.label("L_PFBASE")
        A("s_lshl_b32 s%d, s2, 2" % sT0); A("s_add_u32 s%d, s%d, s%d" % (sT0, sT0, sW)); A("s_mul_i32 s%d, s%d, %d" % (sT0, sT0, ROW * 4))
        A("s_add_u32 s%d, s%d, L_TABLE-L_PFBASE" % (sT0, sT0))
        A("s_add_u32 s%d, s96, s%d" % (sNON, sT0)); A("s_addc_u32 s%d, s97, 0" % (sNON + 1))
        A("v_cndmask_b32 v%d, v%d, v%d, vcc" % (T + 5, T + 5, vL16))
        A("v_min_u32 v%d, %d, v%d" % (vST, len(STASH) - 1, vL)); A("v_lshlrev_b32 v%d, 2, v%d" % (vST, vST))
        A("s_waitcnt lgkmcnt(0)")
        if o.get("stamps"): A("v_mov_b32 v%d, s90" % vCO); A("s_memrealtime s[100:101]"); A("s_waitcnt lgkmcnt(0)"); A("v_mov_b32 v%d, s100" % (vCO + 1))
        self.srd(sX, 44, 1835008); self.srd(sWQKV, 46, 1204224)
        def dma_x(s):
            out = []
            for h in range(2):
                it = ["s_add_u32 m0, s%d, %d" % (sXM, XR + (s % 4) * 16384), ("s_add_u32 s%d, s%d, 128" % (sXO, sXO)) if (s > 0 and h == 0) else "s_nop 0"]
                for i in (2 * h, 2 * h + 1):
                    it.append(("VM", "buffer_load_dwordx4 v%d, %s, s%d offen offset:%d lds" % (vXD + i, sr(sX, 4), sXO, 1024 * i), "x%d" % s))
                out.append(it)
            return out
        def dma_w1(s):
            return [["s_add_u32 m0, s%d, %d" % (sWM, s * 8192), ("s_add_u32 s%d, s%d, %d" % (sWO1, sWO1, 64 * 2688)) if s > 0 else "s_nop 0",
                     ("VM", "buffer_load_dwordx4 v%d, %s, s%d offen lds" % (vW1D, sr(sWQKV, 4), sWO1), "w%d" % s),
                     ("VM", "buffer_load_dwordx4 v%d, %s, s%d offen offset:1024 lds" % (vW1D + 1, sr(sWQKV, 4), sWO1), "w%d" % s)]]
        NUP = 3; NU0 = o.get("nu0", 2)
        put(dma_x(0) + dma_w1(0))
        for j in range(2): A.VM("buffer_load_dwordx4 %s, v%d, %s, s%d offen offset:%d" % (vr(vRSD + 4 * j, 4), T + 5, sr(sX, 4), sM0, 896 * j), "rsd")
        if o.get("tw1", 1):
            A("s_mul_i32 s%d, s%d, %d" % (sT0, sRT0, 6 * 2688)); A("s_lshl_b32 s%d, s%d, 7" % (sT1, sCG)); A("s_add_u32 s%d, s%d, s%d" % (sT0, sT0, sT1)); A("s_add_u32 s%d, s%d, %d" % (sT0, sT0, 64 * 2688))
            A("v_min_u32 v%d, 5, v%d" % (T + 6, vL)); A("v_mul_u32_u24 v%d, 2688, v%d" % (T + 6, T + 6))
            A.VM("buffer_load_dword v%d, v%d, %s, s%d offen" % (vDUM, T + 6, sr(sWQKV, 4), sT0))
        A.VM("global_load_dword v%d, v%d, s[%d:%d] offset:128" % (vST, vST, sNON, sNON + 1), "stash")
        for s in range(1, NU0): put(dma_x(s) + dma_w1(s))
        self.srd(sWS, 62, WS_BYTES + (1 << 20)); self.srd(sDBG, 60, 256); self.srd(sWD, 56, 1605632); self.srd(sWO, 48, 401408)
        if o.get("tlb", 0):
            A("v_min_u32 v%d, 7, v%d" % (T, vL)); A("v_lshlrev_b32 v%d, 21, v%d" % (T, T))
            A("v_mov_b32 v%d, s63" % (T + 3)); A("v_add_co_u32 v%d, vcc, s62, v%d" % (T + 2, T)); A("s_nop 1"); A("v_addc_co_u32 v%d, vcc, 0, v%d, vcc" % (T + 3, T + 3))
            for i, p_ in enumerate((48, 52, 54, 56, 58, 60)):
                A("v_writelane_b32 v%d, s%d, %d" % (T + 2, p_, 8 + i)); A("v_writelane_b32 v%d, s%d, %d" % (T + 3, p_ + 1, 8 + i))
            A.VM("global_load_dword v%d, v[%d:%d], off" % (vDUM, T + 2, T + 3))
        A("s_and_b32 s53, s53, 0xffff"); A("s_and_b32 s55, s55, 0xffff")
        A("s_cmp_eq_u32 s%d, 0" % sA); A("s_cselect_b32 s%d, s52, s54" % sG2); A("s_cselect_b32 s%d, s53, s55" % (sG2 + 1))
        A("s_mov_b32 s%d, 1605632" % (sG2 + 2)); A("s_mov_b32 s%d, 0x20000" % (sG2 + 3)); A("s_mov_b32 s%d, 0x20000" % (sG1 + 3)); A("s_mov_b32 s%d, 0x20000" % (sCS + 3))
        A("s_sub_u32 s%d, s%d, 12" % (sT0, sCG)); A("s_cmp_lt_u32 s%d, 3" % sT0); A("s_cselect_b32 s%d, 1, 0" % sG1Q)
        for i in range(3): A("s_cselect_b32 s%d, s%d, s%d" % (sG1 + i, sWQKV + i, sG2 + i))
        if o.get("zdum", 1):
            A("s_lshl_b32 s%d, s%d, 1" % (sT0, sCG)); A("s_add_u32 s%d, s%d, s%d" % (sT0, sT0, sA)); A("s_cmp_ge_u32 s%d, 29" % sT0); A("s_cselect_b32 s%d, 0, s%d" % (sG1 + 2, sG1 + 2))
        A("s_bitcmp0_b32 s%d, 0" % sIDX); A("s_cselect_b32 s%d, s52, s54" % sCS); A("s_cselect_b32 s%d, s53, s55" % (sCS + 1))
        A("s_lshr_b32 s%d, s%d, 1" % (sT0, sIDX)); A("s_andn2_b32 s%d, s%d, s%d" % (sT0, sG1Q, sT0))
        A("s_cselect_b32 s%d, s%d, s%d" % (sCS, sWQKV, sCS)); A("s_cselect_b32 s%d, s%d, s%d" % (sCS + 1, sWQKV + 1, sCS + 1)); A("s_cselect_b32 s%d, s%d, s%d" % (sCS + 2, sWQKV + 2, sG2 + 2))
        A("s_load_dwordx16 s[44:59], s[%d:%d], 0" % (sNON, sNON + 1)); A("s_load_dwordx16 s[60:75], s[%d:%d], 64" % (sNON, sNON + 1))
        A("v_lshlrev_b32 v%d, 28, v%d" % (vFO, vL))
        if o.get("stamps"):
            A("v_mov_b32 v0, 0"); A("v_mov_b32 v3, 0")
            A("v_readfirstlane_b32 s100, v%d" % vCO); A("v_readfirstlane_b32 s101, v%d" % (vCO + 1)); A("s_nop 3")
            A("v_writelane_b32 v3, s100, 22"); A("v_writelane_b32 v3, s101, 23")
        if o.get("codepf", 1):
            A("s_and_b32 s%d, s%d, 3" % (sT0, sIDX)); A("s_cmp_eq_u32 s%d, s%d" % (sT0, sW))
            l2 = self.lab(); A("s_cbranch_scc0 %s" % l2)
            A("s_lshl_b32 s%d, s%d, 13" % (sT0, sT0))
            A("v_lshlrev_b32 v%d, 7, v%d" % (T + 6, vL)); A("v_add_u32 v%d, s%d, v%d" % (T + 6, sT0, T + 6))
            A("v_min_u32 v%d, L_END-L_PFBASE, v%d" % (T + 6, T + 6))
            A("global_load_dword v%d, v%d, s[96:97]" % (vDUM, T + 6))
            A.label(l2)
        l1 = self.lab()
        A("s_or_b32 s%d, s%d, s%d" % (sT0, sIDX, sW)); A("s_cmp_lg_u32 s%d, 0" % sT0); A("s_cbranch_scc1 %s" % l1)
        A("s_memrealtime s[96:97]"); A("s_waitcnt lgkmcnt(0)")
        A("s_and_b32 s%d, s96, 0x3fff" % sT0); A("s_lshl_b32 s%d, s96, 2" % sT1); A("s_and_b32 s%d, s%d, 0x3fff0000" % (sT1, sT1))
        A("s_or_b32 s%d, s%d, s%d" % (sT0, sT0, sT1)); A("s_or_b32 s%d, s%d, 1" % (sT0, sT0))
        A("s_lshr_b64 s[90:91], s[96:97], 28"); A("s_or_b32 s%d, s90, 0x80000000" % sT1)
        A("v_mov_b32 v%d, s%d" % (T, sT0)); A("v_mov_b32 v%d, s%d" % (T + 1, sT1)); A("v_mov_b32 v%d, 0" % (T + 2)); A("v_mov_b32 v%d, 0" % (T + 3))
        A("v_lshlrev_b32 v%d, 8, v%d" % (T + 4, vL))
        A("buffer_atomic_cmpswap_x2 %s, v%d, %s, 0 offen sc1" % (vr(T, 4), T + 4, sr(sDBG, 4)))
        A("s_nop 1")
        A.label(l1)
        self.stamp(0)
        A("v_and_b32 v%d, 31, v%d" % (T, vL)); A("v_lshrrev_b32 v%d, 5, v%d" % (T + 1, vL))
        A("v_bfe_u32 v%d, v%d, 1, 3" % (T + 2, vL)); A("v_xor_b32 v%d, v%d, v%d" % (T + 2, T + 2, T + 1))
        A("v_lshlrev_b32 v%d, 7, v%d" % (T + 3, T)); A("v_add_u32 v%d, s%d, v%d" % (T + 3, sXM, T + 3))
        for s in range(4):
            A("v_xor_b32 v%d, %d, v%d" % (T + 4, 2 * s, T + 2))
            A("v_lshl_add_u32 v%d, v%d, 4, v%d" % (vXA + s, T + 4, T + 3))
            A("v_xor_b32 v%d, 4096, v%d" % (vXA + 4 + s, vXA + s))
        vB, vSG, vG = vG1A, vG1A + 1, vAF
        A("v_bfe_u32 v%d, v%d, 2, 2" % (T + 2, vL))
        A("v_lshl_add_u32 v%d, v%d, 3, v%d" % (T + 3, T + 1, T + 2))
        A("v_and_b32 v%d, 3, v%d" % (T + 4, vL)); A("v_lshlrev_b32 v%d, 3, v%d" % (T + 4, T + 4))
        A("v_lshl_add_u32 v%d, v%d, 7, v%d" % (T + 3, T + 3, T + 4))
        A("v_add_u32 v%d, %d, v%d" % (vB, WR, T + 3))
        A("v_and_b32 v%d, 2, v%d" % (T + 2, T + 2)); A("v_bfe_u32 v%d, v%d, 4, 1" % (vG, vL)); A("v_xor_b32 v%d, v%d, v%d" % (vSG, T + 2, vG))
        A("s_lshl_b32 s%d, s%d, 1" % (sT0, sB)); A("v_xor_b32 v%d, s%d, v%d" % (T + 5, sT0, vSG))
        A("v_lshl_add_u32 v%d, v%d, 5, v%d" % (vW1A, T + 5, vB))
        A("v_lshrrev_b32 v%d, 2, v%d" % (T + 5, vL)); A("v_xor_b32 v%d, v%d, v%d" % (T + 5, T + 5, vG)); A("v_and_b32 v%d, 1, v%d" % (T + 5, T + 5))
        A("v_and_or_b32 v%d, v%d, 3, v%d" % (T + 5, vL, T + 5))
        A("v_cmp_eq_u32 vcc, 0, v%d" % (T + 5)); A("v_mov_b32 v%d, 0x3f803f80" % (T + 6))
        A("v_add_u32 v%d, 147456, v%d" % (vAO1, vL16))
        for i in range(4): A("v_cndmask_b32 v%d, 0, v%d, vcc" % (vSEL + i, T + 6))

        def dma_g(g):
            p = g // 7; out = []
            so, vd, vd2, srd_ = (sG1O, vG1D, vG1D2, sG1) if p == 0 else (sG2O, vG2D, vG2D2, sG2)
            for i in range(2):
                it = ["s_add_u32 m0, s%d, %d" % (sXM, WR + (g % 4) * 16384 + i * 2048)]
                if i == 0 and g % 7 == 0: it.append("s_nop 0")
                elif p == 0: it.append("s_add_u32 s%d, s%d, s%d" % (so, so, sG1S if i > 0 else sG1S3))
                else: it.append("s_add_u32 s%d, s%d, %d" % (so, so, 16 * 3584 * (1 if i > 0 else 3)))
                it.append(("VM", "buffer_load_dwordx4 v%d, %s, s%d offen lds" % (vd, sr(srd_, 4), so), "g%d" % g))
                it.append(("VM", "buffer_load_dwordx4 v%d, %s, s%d offen offset:1024 lds" % (vd2, sr(srd_, 4), so), "g%d" % g))
                out.append(it); out.append([])
            return out
        W1SET = [((ks + 2) % 3) * 4 + 4 for ks in range(28)]
        def rd_x(ks):
            s, q = divmod(ks, 4)
            return [("DS", "ds_read_b128 %s, v%d offset:%d" % (XF(j, ks), vXA + 4 * j + q, XR + (s % 4) * 16384), "f%d" % ks) for j in range(2)]
        def rd_w1(ks):
            s, q = divmod(ks, 4); d = vWF + W1SET[ks]
            return [("DS", "ds_read_b64_tr_b16 %s, v%d offset:%d" % (vr(d + 2 * j, 2), vW1A, s * 8192 + (16 * q + 4 * j) * 128), "f%d" % ks) for j in range(2)]
        def rd_g(p, ks, t):
            s, q = divmod(ks, 4); g = p * 7 + s; d = vWF + (ks % 2) * 8 + t * 4
            va = (vG1A if p == 0 else vG2A) + t
            return [("DS", "ds_read_b64_tr_b16 %s, v%d offset:%d" % (vr(d + 2 * j, 2), va, (g % 4) * 16384 + (16 * q + 4 * j) * 128), "r%d_%d_%d" % (p, ks, t)) for j in range(2)]

        F = {}
        def add(p, ks, items): F.setdefault((p, ks), []).extend(items)
        def cnt(x):
            if isinstance(x, list): return sum(cnt(y) for y in x)
            if isinstance(x, tuple):
                if x[0] == "L": return 0
                if x[0] == "W": return 0.5
                if x[0] == "VM": return 3 if "store" in x[1] else 1.5
                return 1
            if callable(x): return getattr(x, "wt", 5)
            return 4 if "mfma" in x else 1
        def spread(p, k0, k1, items):
            n = k1 - k0 + 1; tot = cnt(items); i = 0; used = 0
            for x in items:
                while i < n - 1 and used + cnt(x) / 2 > tot * (i + 1) / n: i += 1
                add(p, k0 + i, [x]); used += cnt(x)
        P1 = -1
        a0, b0 = vRSD, vRSD + 4
        RSt = [("W", ["rsd", "stash"], []), S("s_mov_b32 s%d, 0x3f803f80", sT0)]
        for i in range(4):
            for (acc, x, y) in ((T, a0 + i, None), (T + 1, b0 + i, None), (T + 2, a0 + i, a0 + i), (T + 3, b0 + i, b0 + i)):
                RSt.append(S("v_dot2_f32_bf16 v%d, v%d, %s, %s", acc, x, ("s%d" % sT0) if y is None else ("v%d" % y), "0" if i == 0 else "v%d" % acc))
        dpp = lambda n: S("v_add_f32_dpp v%d, v%d, v%d row_ror:%d row_mask:0xf bank_mask:0xf", T, T, T, n)
        RSt += [S("v_and_b32 v%d, 31, v%d", vFT, vL), S("v_lshlrev_b32 v%d, 27, v%d", vRO, vFT), S("v_lshrrev_b32 v%d, 5, v%d", vFT + 1, vL),
                S("v_permlane32_swap_b32 v%d, v%d", T, T + 1), S("v_permlane32_swap_b32 v%d, v%d", T + 2, T + 3),
                S("v_add_f32 v%d, v%d, v%d", T, T, T + 1), S("v_add_f32 v%d, v%d, v%d", T + 2, T + 2, T + 3),
                S("v_lshl_add_u32 v%d, v%d, 3, v%d", vRO, vFT + 1, vRO), S("v_mov_b32 v%d, 0", vRO + 1),
                S("v_permlane16_swap_b32 v%d, v%d", T, T + 2), S("v_add_f32 v%d, v%d, v%d", T, T, T + 2),
                rl(sL, "RSO"), S("s_mov_b32 s%d, 0xffff", sT1), dpp(8), S("s_lshr_b32 s%d, s%d, 3", sL + 1, sCSS), rl(sL + 2, "G1STR"), dpp(4), rl(sL + 3, "RA"), rl(sL + 4, "ODD"), dpp(2),
                rl(sL + 5, "FXO"), S("v_mov_b32 v%d, 0", vCFF + 1), dpp(1),
                S("v_mov_b32 v%d, v%d", T + 2, T), S("v_mov_b32 v%d, 0", vCFF + 2), S("v_mov_b32 v%d, 0", vCFF + 3), S("v_permlane16_swap_b32 v%d, v%d", T, T + 2),
                S("v_mul_f32 v%d, 0x3b124925, v%d", T, T), S("v_mul_f32 v%d, 0x3b124925, v%d", T + 2, T + 2),
                S("v_fma_f32 v%d, -v%d, v%d, v%d", T + 2, T, T, T + 2), S("v_max_f32 v%d, 0, v%d", T + 2, T + 2),
                S("v_cvt_pk_bf16_f32 v%d, v%d, v%d", T, T, T + 2), S("v_and_b32 v%d, 0xffff0000, v%d", T + 2, T),
                S("v_add_f32 v%d, 0x3727c5ac, v%d", T + 2, T + 2), S("v_cvt_pk_bf16_f32 v%d, v%d, v%d", T + 2, T + 2, T + 2),
                S("v_lshlrev_b32 v%d, 16, v%d", T + 2, T + 2), S("v_sqrt_f32 v%d, v%d", T + 2, T + 2), S("v_mov_b32 v%d, 0", vMF + 1),
                S("v_cvt_pk_bf16_f32 v%d, v%d, v%d", T + 2, T + 2, T + 2), S("v_bfi_b32 v%d, s%d, v%d, v%d", vRD2, sT1, T, T + 2)]
        vL31, vHI = vFT, vFT + 1
        sRSO, sCSTR, sG1STR, sRA, sODD, sFXO = sL, sL + 1, sL + 2, sL + 3, sL + 4, sL + 5
        D = [S("s_lshl_b32 s%d, s%d, 5", sT0, sA), S("v_xor_b32 v%d, s%d, v%d", T, sT0, vSW), S("s_movk_i32 s%d, 3584", sT0),
             S("v_mad_u32_u24 v%d, v%d, s%d, v%d", vG1D, vR8, sG1STR, T), S("v_mad_u32_u24 v%d, v%d, s%d, v%d", vG2D, vR8, sT0, T),
             S("s_lshr_b32 s%d, s%d, 1", sT0, sG1S), S("s_sub_u32 s%d, s%d, 1024", sT0, sT0), S("v_add_u32 v%d, s%d, v%d", vG1D2, sT0, vG1D),
             S("v_add_u32 v%d, %d, v%d", vG2D2, 8 * 3584 - 1024, vG2D),
             S("v_min_u32 v%d, 55, v%d", vDUM + 1, vL), S("v_mul_lo_u32 v%d, s%d, v%d", vDUM + 1, sCSTR, vDUM + 1),
             S("v_mad_u32_u24 v%d, v%d, s%d, v%d", vCD, vR8, sCSTR, vSW),
             S("s_mul_i32 s%d, s%d, 14336", sT0, sA), S("s_add_u32 s%d, s%d, %d", sT0, sT0, (CSL - WR) & 0xffffffff), S("v_add_u32 v%d, s%d, v%d", vCA, sT0, vW1A),
             S("s_lshl_b32 s%d, s%d, 1", sT0, sB), S("s_add_u32 s%d, s%d, s%d", sT1, sT0, sA),
             S("v_xor_b32 v%d, s%d, v%d", T, sT1, vSG), S("v_lshl_add_u32 v%d, v%d, 13, v%d", T + 1, vG, vB),
             S("v_lshl_add_u32 v%d, v%d, 5, v%d", vG2A, T, T + 1), S("v_xor_b32 v%d, 32, v%d", vG2A + 1, vG2A),
             S("s_lshl_b32 s%d, s%d, 1", sT1, sA), S("s_xor_b32 s%d, s%d, s%d", sT1, sT1, sB), S("v_xor_b32 v%d, s%d, v%d", T, sT1, vSG),
             S("s_lshl_b32 s%d, s%d, 13", sT2, sB), S("v_add_u32 v%d, s%d, v%d", T + 1, sT2, vB),
             S("v_lshl_add_u32 v%d, v%d, 5, v%d", T, T, T + 1), S("v_xor_b32 v%d, 64, v%d", T + 1, T),
             S("v_lshlrev_b32 v%d, 9, v%d", T + 2, vHI), S("v_sub_u32 v%d, v%d, v%d", T + 2, vB, T + 2), S("v_lshl_add_u32 v%d, v%d, 5, v%d", T + 2, vSG, T + 2),
             S("v_add_u32 v%d, s%d, v%d", vTA + 4, sXM, T + 2), S("v_xor_b32 v%d, 64, v%d", vTA + 5, vTA + 4), S("v_subrev_u32 v%d, %d, v%d", T + 2, WR, T + 2),
             S("v_add_u32 v%d, s%d, v%d", vTA, sMX, T + 2), S("v_xor_b32 v%d, 64, v%d", vTA + 1, vTA),
             S("v_add_u32 v%d, s%d, v%d", vTA + 2, sM5, T + 2), S("v_xor_b32 v%d, 64, v%d", vTA + 3, vTA + 2),
             [S("s_cmp_eq_u32 s%d, 1", sG1Q), "s_cselect_b64 vcc, -1, 0"],
             S("v_cndmask_b32 v%d, v%d, v%d, vcc", vG1A, vG2A, T), S("v_cndmask_b32 v%d, v%d, v%d, vcc", vG1A + 1, vG2A + 1, T + 1),
             S("v_lshlrev_b32 v%d, 10, v%d", T, vHI), S("v_lshl_add_u32 v%d, v%d, 4, v%d", T, vL31, T),
             S("v_mul_u32_u24 v%d, %d, v%d", T + 1, 57344 - 256, vG), S("v_add_u32 v%d, v%d, v%d", vCO + 1, T, T + 1),
             S("v_cndmask_b32 v%d, v%d, v%d, vcc", vCO, vCO + 1, T),
             S("v_lshlrev_b32 v%d, 3, v%d", vCO + 2, vL31), S("s_lshl_b32 s%d, s%d, 8", sT0, sB), S("v_add_u32 v%d, s%d, v%d", vCO + 2, sT0, vCO + 2), S("v_xor_b32 v%d, 256, v%d", vCO + 3, vCO + 2),
             S("v_lshrrev_b32 v%d, 4, v%d", T, vL), S("v_min_u32 v%d, 2, v%d", T, T), S("v_sub_u32 v%d, s%d, v%d", T, sRA, T), S("v_max_i32 v%d, 0, v%d", T, T),
             S("v_and_b32 v%d, 15, v%d", T + 1, vL), S("v_lshlrev_b32 v%d, 7, v%d", T, T), S("v_lshl_add_u32 v%d, v%d, 3, v%d", vAF, T + 1, T),
             S("v_min_u32 v%d, 11, v%d", T + 1, T + 1), S("v_lshl_add_u32 v%d, v%d, 3, v%d", vVF, T + 1, T), S("v_add_u32 v%d, %d, v%d", vVF, FLV, vVF),
             S("v_lshlrev_b32 v%d, 6, v%d", vKD, vHI), S("v_xor_b32 v%d, v%d, v%d", vKD, vKD, vL16), S("v_xor_b32 v%d, 128, v%d", vKD + 1, vKD),
             S("s_lshl_b32 s%d, s%d, 11", sT0, sW), S("v_add_u32 v%d, s%d, v%d", vKA, sT0, vL16),
             S("v_bfe_u32 v%d, v%d, 4, 1", T, vL), S("v_and_b32 v%d, 3, v%d", T + 1, vL), S("v_lshl_add_u32 v%d, v%d, 2, v%d", T, T, T + 1),
             S("v_add_u32 v%d, s%d, v%d", T, sODD, T), S("v_bfe_u32 v%d, v%d, 1, 2", T + 1, T), S("v_and_b32 v%d, 1, v%d", T, T),
             S("v_bfe_u32 v%d, v%d, 2, 2", T + 3, vL), S("v_xor_b32 v%d, v%d, v%d", T + 4, vHI, T + 1), S("v_lshl_add_u32 v%d, v%d, 2, v%d", T + 3, T + 4, T + 3),
             S("v_lshlrev_b32 v%d, 9, v%d", T + 1, T + 1), S("v_lshl_add_u32 v%d, v%d, 4, v%d", T + 1, T + 3, T + 1), S("v_lshl_add_u32 v%d, v%d, 3, v%d", T + 1, T, T + 1),
             S("s_add_u32 s%d, s%d, %d", sT0, sT0, XR + 24576), S("v_add_u32 v%d, s%d, v%d", vVA, sT0, T + 1), S("v_xor_b32 v%d, 128, v%d", vVA + 1, vVA),
             S("v_lshl_add_u32 v%d, v%d, 4, s%d", vFX, vL31, sFXO),
             S("v_and_b32 v%d, 1, v%d", T, vL), S("v_lshlrev_b32 v%d, 3, v%d", T, T), S("v_bfe_u32 v%d, v%d, 1, 2", T + 1, vL),
             S("v_lshl_add_u32 v%d, v%d, 5, v%d", vFT + 4, T + 1, T), S("v_min_u32 v%d, 2, v%d", T + 2, T + 1), S("v_lshl_add_u32 v%d, v%d, 5, v%d", vFT + 2, T + 2, T),
             S("s_lshl_b32 s%d, s%d, 6", sT0, sW), S("s_sub_u32 s%d, 384, s%d", sT0, sT0), S("v_cmp_eq_u32 vcc, 3, v%d", T + 1), S("v_add_u32 v%d, s%d, v%d", T, sT0, T),
             S("v_mov_b32 v%d, 0", vMF + 3), S("v_cndmask_b32 v%d, v%d, v%d, vcc", vFT + 3, vFT + 4, T),
             S("v_mov_b32 v%d, 0", vMF + 5), S("v_mov_b32 v%d, 0", vMF + 7)]
        spread(P1, 0, 26, RSt + D)
        nload = ("VM", "buffer_load_dwordx2 %s, v%d, %s, 0 offen sc1" % (vr(vN, 2), vRO + 1, sr(sDBG, 4)), "nonce")
        add(P1, o.get("nonce_ld", 10), [nload])
        add(P1, o.get("nonce_ck", 19), self.spin("nonce", [nload], [S("v_readfirstlane_b32 s%d, v%d", sNON, vN), S("v_readfirstlane_b32 s%d, v%d", sNON + 1, vN + 1),
                     [S("s_min_u32 s%d, s%d, s%d", sSPIN, sNON, sNON + 1)][0].replace("s%d," % sSPIN, "s%d," % sM1, 1), S("s_cmp_lg_u32 s%d, 0", sM1)]) + [S("v_mov_b32 v%d, v%d", vRD2 + 1, vN),
                     ("VM", S("buffer_store_dwordx2 %s, v%d, %s, s%d offen sc1", vr(vRD2, 2), vRO, sr(sWS, 4), sRSO))])
        def cond_cs(items, inv=False):
            def f():
                l = self.lab()
                A("s_bitcmp1_b32 s%d, 2" % sIDX); A("s_cbranch_scc%d %s" % (0 if inv else 1, l))
                A.br_begin(); put(items); A.br_alt_end(); A.br_alt_end(); A.br_end()
                A.label(l)
            f.wt = cnt(items) / 2 + 2
            return f
        CK = o.get("cs_dma", 20)
        if o.get("gtouch", 1): add(P1, CK, [cond_cs([("VM", S("buffer_load_dword v%d, v%d, %s, s%d offen%s", vDUM, vDUM + 1, sr(sCS, 4), sCO, " nt" if o.get("csnt") else ""))], True)])
        csd = [S("s_mul_i32 s%d, s%d, 7168", sT3, sW)]
        for i in range(7):
            csd += [S("s_add_u32 m0, s%d, %d", sT3, CSL + i * 1024), S("s_add_u32 s%d, s%d, s%d", sCO, sCO, sCSS) if i else "s_nop 0",
                    ("VM", S("buffer_load_dwordx4 v%d, %s, s%d offen%s lds", vCD, sr(sCS, 4), sCO, " nt" if o.get("csnt") else ""), "csd")]
        add(P1, CK, [cond_cs(csd[:10])]); add(P1, CK + 1, [cond_cs([csd[0]] + csd[10:])])
        vTC = vFT + 6
        if o.get("t_g1", 3) >= 0:
            add(P1, o.get("t_g1", 3), [[("W", ["stash"], []), rl(sM0, "TG1"), rl(sM0 + 1, "G1STR"), S("v_min_u32 v%d, 13, v%d", vTC, vL), "s_nop 0", S("v_mul_lo_u32 v%d, s%d, v%d", vTC + 1, sM0 + 1, vTC),
                                        ("VM", S("buffer_load_dword v%d, v%d, %s, s%d offen", vDUM, vTC + 1, sr(sG1, 4), sM0)),
                                        ]])
        if o.get("t_g2", -1) >= 0:
            add(P1, o.get("t_g2", -1), [[rl(sM0, "TG2"), S("v_min_u32 v%d, 13, v%d", vTC, vL), S("v_mul_u32_u24 v%d, 3584, v%d", vTC, vTC), "s_nop 1",
                                         ("VM", S("buffer_load_dword v%d, v%d, %s, s%d offen", vDUM, vTC, sr(sG2, 4), sM0))]])
        def touch_wd():
            l = self.lab(); l3 = self.lab()
            A("s_cmp_eq_u32 s%d, 3" % sW); A("s_cbranch_scc1 %s" % l)
            A("v_min_u32 v%d, 24, v%d" % (vDUM + 1, vL)); A("v_lshlrev_b32 v%d, 7, v%d" % (vDUM + 1, vDUM + 1))
            A("s_cmp_eq_u32 s%d, 2" % sW); A("s_cbranch_scc1 %s" % l3)
            A("s_lshl_b32 s%d, s2, 1" % sT3); A("s_add_u32 s%d, s%d, s%d" % (sT3, sT3, sW)); A("s_mul_i32 s%d, s%d, 3136" % (sT3, sT3)); A("s_and_b32 s%d, s%d, 0xffffff80" % (sT3, sT3))
            A("buffer_load_dword v%d, v%d, %s, s%d offen" % (vDUM, vDUM + 1, sr(sWD, 4), sT3)); A("s_branch %s" % l)
            A.label(l3)
            A("s_mul_i32 s%d, s2, 1664" % sT3); A("v_min_u32 v%d, 1536, v%d" % (vDUM + 1, vDUM + 1))
            A("buffer_load_dword v%d, v%d, %s, s%d offen" % (vDUM, vDUM + 1, sr(sWO, 4), sT3))
            A.label(l)
        if o.get("pf_wd", 24) >= 0: add(P1, o.get("pf_wd", 24), [touch_wd])

        A.C("FIRST pass")
        if o.get("strip1"):
            for k_ in list(F):
                if k_[0] == P1: F[k_] = [x for x in F[k_] if not (isinstance(x, str) and not "readlane" in x and not "readfirst" in x and (o["strip1"] == 1 or "dot2" in x))]
        for s in range(NU0, NUP): put(dma_x(s) + dma_w1(s))
        A.wait_all_ds()
        A.wait(vm=["x0", "w0"]); A("s_barrier")
        self.stamp(1)
        put(rd_x(0) + rd_w1(0) + rd_x(1) + rd_w1(1))
        pend = []
        for ks in range(28):
            s, q = divmod(ks, 4); z = "0" if ks == 0 else None
            W = vr(vWF + W1SET[ks], 4)
            if o.get("finep", 0) == -1: self.stamp(32 + ks, True)
            A.wait(ds=["f%d" % ks])
            fill = F.get((P1, ks), []); tot = cnt(fill); g1 = []; g2 = []; u = 0
            for x in fill:
                (g1 if u < tot * 0.6 else g2).append(x); u += cnt(x)
            A(mf32(ACF, W, XF(0, ks), z))
            put(rd_x(ks + 2) if ks < 26 else rd_g(0, 0, 0) if ks == 27 else [])
            A(mf32(ACF + 16, W, XF(1, ks), z))
            put(rd_w1(ks + 2) if ks < 26 else rd_g(0, 0, 1) if ks == 27 else [])
            left = (1 - q) % 4 + 1
            if pend and ks < 26:
                for _ in range(-(-len(pend) // left)): put(pend.pop(0))
            if ks == 27: put(pend.pop(0))
            put(g1)
            if not o.get("nomf16"): A(mf16(vCSF, vr(vSEL, 4), W, z))
            put(g2)
            if q == 1 and s < 6:
                A.wait(vm=["x%d" % (s + 1), "w%d" % (s + 1)])
                A("s_barrier")
                assert not pend
                pend = (dma_x(s + NUP) + dma_w1(s + NUP) if s + NUP < 7 else []) + (dma_g(s - 3) if s in (3, 4) else [])
                pend = [x for x in pend if x]
            if ks == 26:
                A.wait(vm=["g0"], ds=["f27"])
                A("s_barrier")
                pend = [x for x in dma_g(2) + dma_g(3) if x]
            if ks == 27: pass
        self.stamp(2)

        self.bar_ds = {}; self.bar_vm = {}
        add(0, 0, [S("v_mov_b32 v%d, v%d", vF0 + i, vFT + 2 + i) for i in range(3)] + [S("v_mul_f32 v%d, 0.5, v%d", T + 2, vCSF)])
        add(0, 1, self.cfrag(vCFF, T + 2, T))
        CSB = o.get("cs_bar", 3)
        self.bar_vm[(0, CSB)] = ["csd"]
        tmp = [224, 228, 232, 236, 240, 112, 116]
        crd = [("DS", S("ds_read_b64_tr_b16 %s, v%d offset:%d", vr(tmp[s_] + 2 * j, 2), vCA, (16 * s_ + 4 * j) * 128), "csr") for s_ in range(7) for j in range(2)]
        add(0, CSB + 1, [cond_cs(crd[:4]), cond_cs(crd[4:8])]); add(0, CSB + 2, [cond_cs(crd[8:11]), cond_cs(crd[11:])])
        cm = [("W", [], ["csr"])] + [mf16(vCSF, vr(vSEL, 4), vr(tmp[s_], 4), "0" if s_ == 0 else None) for s_ in range(7)]
        add(0, CSB + 3, [cond_cs(cm)])
        cst = [rl(sCO, "CST"), S("v_lshrrev_b32 v%d, 5, v%d", 224, vL), S("v_lshl_add_u32 v%d, v%d, 27, v%d", 224, 224, vL16),
               S("v_mov_b32 v%d, v%d", 229, vN)] + self.cfrag(228, vCSF, 230) + \
              [("VM", S("buffer_store_dwordx2 v[228:229], v224, %s, s%d offen sc1", sr(sWS, 4), sCO))]
        add(0, CSB + 5, [cond_cs(cst[:4]), cond_cs(cst[4:])])
        self.bar_ds[(0, 11)] = ["csr"]
        RK = o.get("rs_ld", 6)
        vRL = 232
        add(0, RK - 2, [rl(sL, "RSC")])
        rld = [("VM", S("buffer_load_dwordx2 %s, v%d, %s, s%d offen sc1", vr(vRL + 2 * j, 2), vCO + 2 + j, sr(sWS, 4), sL), "rs") for j in range(2)]
        add(0, RK, rld)
        E0 = o.get("e0_ks", 10)
        rc = self.spin("rs", rld, self.tagcheck([vRL + 1, vRL + 3], T)) + [S("s_mov_b32 s%d, 0x01000100", sT1),
              rl(sT2, "QS")]
        for j in range(2):
            rc += [S("v_xor_b32 v%d, 0x8000, v%d", T, vRL + 2 * j), S("v_and_b32 v%d, 0xffff0000, v%d", T + 1, vRL + 2 * j), S("v_perm_b32 v%d, v%d, v%d, s%d", vMF + 4 * j, T, T, sT1),
                   S("v_rcp_f32 v%d, v%d", vR + j, T + 1), S("v_mov_b32 v%d, v%d", vMF + 4 * j + 2, vMF + 4 * j),
                   S("v_mul_f32 v%d, s%d, v%d", vR + 2 + j, sT2, vR + j)]
        spread(0, E0 - 1, E0 + 1, rc)
        add(0, E0 + 2, [mf32(ACF, vr(vCFF, 4), vr(vMF, 4)), mf32(ACF + 16, vr(vCFF, 4), vr(vMF + 4, 4))])
        spread(0, E0 + 3, E0 + o.get("e0_len", 10), self.qkv_epi(ACF, vR + 2, sSF, vP, "st0") + self.qkv_epi(ACF + 16, vR + 3, sSF + 1, vP + 8, "st0"))
        kss = o.get("kw_ks0", {13: 0, 14: 2, 15: 4, 16: 8, 17: 10, 18: 12, 19: 16, 20: 18, 21: 20, 22: 24, 23: 26})
        for k, ks in kss.items(): add(0, ks, [self.kw_dma(k)])
        cl = [("VM", S("buffer_load_dwordx4 %s, v%d, %s, s%d offen sc1", vr(vCF + 4 * i, 4), vCO + i // 2, sr(sWS, 4), sCSO + i), "cs") for i in range(4)]
        add(0, o.get("cs_ld", 22), cl)
        spread(0, 26, 27, self.spin("cs", cl, self.tagcheck([vCF + 1 + 2 * i for i in range(8)], T)))
        add(0, 25, [rl(sL, "FQ"), rl(sL + 1, "FE"), rl(sL + 2, "QO"), rl(sL + 3, "RSQ"), rl(sL + 4, "FB0"), rl(sL + 5, "FH")])
        sFQo, sFE, sQO, sRSQ = sL, sL + 1, sL + 2, sL + 3
        self.sFB0, self.sFH = sL + 4, sL + 5

        FQB = o.get("fq_bar", (0, 27))
        self.bar_vm[FQB] = ["st0"]
        def put_fq():
            l = self.lab()
            A("s_cmp_lg_u32 s%d, 0" % sW); A("s_cbranch_scc1 %s" % l)
            A("buffer_store_dwordx2 %s, v%d, %s, s%d offen sc1" % (vr(vN, 2), vFO, sr(sWS, 4), sFQo))
            A.label(l)
        put_fq.wt = 3
        F.setdefault(FQB, []).insert(0, put_fq)
        def ep0(isq):
            E = {}
            def a2(ks, items): E.setdefault(ks, []).extend(items)
            r1 = [mf32(ACA + 32 * t + 16 * j, vr(vCF + 4 * t, 4), vr(vMF + 4 * j, 4)) for t in range(2) for j in range(2)]
            a2(0, r1[:2]); a2(1, r1[2:])
            tl = []
            for t in range(2):
                for j in range(2):
                    if isq: tl += self.qkv_epi(ACA + 32 * t + 16 * j, vR + j, sS0 + 2 * t + j, vP + 8 * j, "ep0")
                    else: tl += self.gu_epi(ACA + 32 * t + 16 * j, sS0 + 2 * t + j, vP + 4 * (2 * t + j), "ep0")
            n = 8; per = -(-len(tl) // n)
            for i in range(n): a2(2 + i, tl[i * per:(i + 1) * per])
            return E
        add(1, o.get("ep0_flag_ks", 14), [("W", ["ep0"], []), self.flagstore(sFE)])
        dr = {13: 5, 14: 6, 15: 7, 16: 8, 17: 9, 18: 10, 19: 11, 20: 12, 21: 13, 22: 14, 23: 15, 24: 21, 25: 22, 26: 23, 27: 24, 28: 25}
        for k, ks in dr.items(): add(1, ks, [self.kw_drain(k)])
        self.bar_ds[(1, 11)] = ["kr18"]
        for k in range(24, 29): add(1, dr[k - 5] + 1, [[("W", [], ["kr%d" % (k - 5)])] + self.kw_dma(k)])
        for k in range(0, 5): add(1, dr[24 + k] + 1, [[("W", [], ["kr%d" % (24 + k)])] + self.kw_dma(k)])
        for k, ks in {5: 17, 6: 18, 7: 20, 8: 27}.items(): add(1, ks, [self.kw_dma(k)])
        add(1, o.get("fq_ld", 17), [self.flagload(vAF, vAT, "fq")])
        FQC = o.get("fq_ck", 21)
        add(1, FQC, self.poll(vAF, vAT, "fq"))
        def kvdma(i, sec, v0_, v1_, tag):
            return [S("s_add_u32 m0, s%d, %d", sKM, XR + (sec - 1) * 24576 + i * 2048), S("s_add_u32 s%d, s%d, %d", sKS0 + i, sKS0 + i, 56 * 512),
                    ("VM", S("buffer_load_dwordx4 v%d, %s, s%d offen sc1 lds", v0_, sr(sWS, 4), sKS0 + i), tag),
                    ("VM", S("buffer_load_dwordx4 v%d, %s, s%d offen offset:1024 sc1 lds", v1_, sr(sWS, 4), sKS0 + i), tag)]
        for i in range(3): add(1, FQC + 2 + i, [kvdma(i, 1, vL16, vL16, "kq")])
        add(1, FQC + 1, [S("v_and_b32 v%d, 31, v%d", vS2, vL), S("v_lshlrev_b32 v%d, 3, v%d", vS2, vS2)]
            + [("VM", S("buffer_load_dwordx4 %s, v%d, %s, s%d offen offset:%d sc1", vr(vQ + 4 * i, 4), vL16, sr(sWS, 4), sQO, 1024 * i), "kq") for i in range(2)]
            + [("VM", S("buffer_load_dword v%d, v%d, %s, s%d offen sc1", vS2, vS2, sr(sWS, 4), sRSQ), "kq")])
        self.vdma = lambda i: kvdma(i, 2, vKD, vKD + 1, "vv")
        add(1, o.get("fv_ld", 23), [self.flagload(vVF, vVT, "fv")])
        M = [S("v_lshrrev_b32 v%d, 5, v%d", T + 2, vL), S("v_and_b32 v%d, 31, v%d", T, vL),
             S("v_lshlrev_b32 v%d, 2, v%d", T + 2, T + 2), S("v_sub_u32 v%d, v%d, v%d", T, T, T + 2), S("v_mov_b32 v%d, 0xf149f2ca", T + 1)]
        cp = [sr(sM0, 2), sr(sM1, 2), sr(sS0, 2)]
        aj = lambda j: (j & 3) + 8 * (j >> 2)
        M += [S("v_cmp_gt_i32 %s, %d, v%d", cp[j % 3], aj(j), T) for j in range(2)]
        for j in range(16):
            if j + 2 < 16: M.append(S("v_cmp_gt_i32 %s, %d, v%d", cp[(j + 2) % 3], aj(j + 2), T))
            M.append(S("v_cndmask_b32 v%d, 0, v%d, %s", vMB + j, T + 1, cp[j % 3]))
            M.append(S("v_sub_f32 v%d, v%d, v%d", vMA + j, T + 1, vMB + j))
        M += [rl(sM0 + 1, "ME"), rl(sM1, "MO"), S("s_mov_b32 s%d, 0", sM0), S("s_mov_b32 s%d, 0", sM1 + 1),
              rl(sL, "KF0"), rl(sL + 1, "KF1"), rl(sL + 2, "KF2"), S("v_mov_b32 v%d, 0x3f803f80", T)]
        spread(1, 10, 27, M)

        def g2_step(p, ks, fill):
            nonlocal pend
            s, q = divmod(ks, 4); g = p * 7 + s; z = "0" if ks == 0 else None
            acc = ACA if p == 0 else ACB
            W0 = vr(vWF + (ks % 2) * 8, 4); W1 = vr(vWF + (ks % 2) * 8 + 4, 4)
            last = (p == 1 and ks == 27)
            r1 = "r%d_%d_1" % (p, ks)
            if p == o.get("finep", 0): self.stamp(32 + ks, True)
            bar = (q == 2 and not (p == 1 and s == 6))
            A.wait(ds=["r%d_%d_0" % (p, ks)])
            nx = (p, ks + 1) if ks < 27 else (p + 1, 0)
            willp = bool(pend and pend[0])
            cap = [2, 1.5, 0.5 if willp else 4, 0.01 if bar else 3.5]
            tot = cnt(fill); sc = max(1.0, tot / sum(cap))
            gaps = [[] for _ in range(4)]; gi = 0; used = 0.0; lim = cap[0] * sc
            for x in fill:
                while gi < (2 if bar else 3) and used + cnt(x) / 2 > lim: gi += 1; lim += cap[gi] * sc
                gaps[gi].append(x); used += cnt(x)
            A(mf32(acc, W0, XF(0, ks), z))
            if not last: put(rd_g(nx[0], nx[1], 0))
            put(gaps[0])
            A(mf32(acc + 16, W0, XF(1, ks), z))
            if not last: put(rd_g(nx[0], nx[1], 1))
            put(gaps[1])
            A.wait(ds=[r1])
            A(mf32(acc + 32, W1, XF(0, ks), z))
            if pend: put(pend.pop(0))
            put(gaps[2])
            A(mf32(acc + 48, W1, XF(1, ks), z))
            put(gaps[3])
            if bar:
                if o.get("finep") == 5: self.stamp(32 + 2 * g, True)
                A.wait(vm=["g%d" % (g + 1)] + self.bar_vm.get((p, ks + 1), []), ds=["r%d_%d_1" % nx] + self.bar_ds.get((p, ks + 1), []))
                if o.get("finep") == 6: self.stamp(32 + 2 * g, True)
                A("s_barrier")
                if o.get("finep") in (5, 6): self.stamp(33 + 2 * g, True)
                assert not any(pend)
                pend = dma_g(g + 4) if g + 4 < 14 else []
        if o.get("verbose"): print("fill counts:", {k: cnt(v) for k, v in sorted(F.items())})
        if o.get("strip"):
            def flt(x):
                if isinstance(x, list): return [y for y in (flt(z) for z in x) if y is not None]
                if isinstance(x, str) and x.startswith("v_") and "mfma" not in x and "readlane" not in x: return None
                return x
            for k_ in list(F):
                if k_[0] >= 0: F[k_] = flt(F[k_])
            ep0_ = ep0
            ep0 = lambda isq: {k_: flt(v_) for k_, v_ in ep0_(isq).items()}
        A.C("G2 pass 0")
        for ks in range(28): g2_step(0, ks, F.get((0, ks), []))
        self.stamp(4)
        A.C("G2 pass 1")
        lq = self.lab("LQ"); lj = self.lab("LJ")
        NV = 10
        A.br_begin()
        A("s_cmp_eq_u32 s%d, 1" % sG1Q); A("s_cbranch_scc1 %s" % lq)
        pend0 = list(pend)
        for isq in (0, 1):
            if isq: A.label(lq)
            pend = list(pend0)
            E = ep0(isq)
            for ks in range(NV): g2_step(1, ks, E.get(ks, []) + F.get((1, ks), []))
            if not isq: A("s_branch %s" % lj)
            A.br_alt_end()
        A.br_end(); A.label(lj)
        self.stamp(5)
        for ks in range(NV, 28): g2_step(1, ks, F.get((1, ks), []))
        self.stamp(6)
        self.tail()
        A.label("L_END")
        A("s_endpgm")
        for f in self.ool: f()

    def tail(self):
        A = self.A; o = self.o; put = self.put; mf32 = self.mf32; T = vT
        sFB0, sFH = self.sFB0, self.sFH; rl = self.rl
        KP = [28, 32, 36, 40, 44, 48, 52, 56, 60, 64, 68, 72, 76, 80, 84, 88, 120, 124]
        vS = [160, 176, 192]; vO = 208; vV = 224; vPP = 240; vM = 22; vU = 23; vWK = 112
        A.C("ep1")
        r1 = [mf32(ACB + 32 * t + 16 * j, vr(vCF + 8 + 4 * t, 4), vr(vMF + 4 * j, 4)) for t in range(2) for j in range(2)]
        A(r1[0]); A.wait(vm=["kq"])
        for i in range(3):
            A("v_mov_b32 v%d, s%d" % (T + 1, sL + i))
            A.DS("ds_write_b64 v%d, %s offset:%d" % (vFX, vr(T, 2), XR + i * 2048), "kfix")
            A(r1[1 + i])
        A("v_mov_b32 v%d, 0xf14a" % vM)
        A("v_cndmask_b32 v%d, v%d, 0, %s" % (vQ + 6, vQ + 6, sr(sM0, 2))); A("v_cndmask_b32 v%d, v%d, v%d, %s" % (vQ + 7, vQ + 7, vM, sr(sM0, 2)))
        A("v_cndmask_b32 v%d, v%d, 0, %s" % (vQ + 0, vQ + 0, sr(sM1, 2))); A("v_cndmask_b32 v%d, v%d, v%d, %s" % (vQ + 1, vQ + 1, vM, sr(sM1, 2)))
        put(self.poll(vVF, vVT, "fv"))
        A.wait(ds=["kfix"]); A("s_barrier")
        def rdk(t): return [("DS", "ds_read_b128 %s, v%d offset:%d" % (vr(KP[2 * t + i], 4), vKA, XR + t * 2048 + 1024 * i), "k%d" % t) for i in range(2)]
        for t in range(3): put(rdk(t))
        for i in range(3): put(self.vdma(i))
        put(self.flagload(vF0, vAT, "fh0", "s%d" % sFB0))
        ee = [self.gu_epi(ACB + 16 * i, sS1 + i, vP + 4 * i, "ep1") for i in range(4)]
        NE = o.get("ne_pre", 3)
        for i in range(NE): put(ee[i])
        self.stamp(7)
        def qk(t, buf):
            c = vr(vMA, 16) if t == 0 else vr(vMB, 16) if t == 8 else "0"
            return [mf32(buf, vr(KP[2 * t], 4), vr(vQ, 4), c), mf32(buf, vr(KP[2 * t + 1], 4), vr(vQ + 4, 4))]
        def mx(t, buf):
            return [("v_max_f32 v%d, v%d, v%d" % (vM, buf, buf + 1)) if (t == 0 and i == 0) else
                    ("v_max3_f32 v%d, v%d, v%d, v%d" % (vM, buf + 2 * i, buf + 2 * i + 1, vM)) for i in range(8)]
        XA = {}
        for i in range(NE, 4): XA[i - NE] = ee[i]
        for i in range(4): XA.setdefault(4 + i, []).extend(self.kw_dma(9 + i))
        one = T
        XA.setdefault(8, []).extend([S("v_mov_b32 v%d, 0x3f803f80", vWK), S("v_mov_b32 v%d, 0x3f803f80", vWK + 1), ("W", ["vv"], [])]
                                    + [("DS", "ds_write_b64 v%d, %s offset:%d" % (vFX, vr(vWK, 2), XR + 24576 + i * 2048), "vfix") for i in range(3)])
        XA.setdefault(9, []).extend(self.poll(vF0, vAT, "fh0", "s%d" % sFB0) + [S("v_and_b32 v%d, 0xffff0000, v%d", vS2, vS2)])
        nrd = 3
        for t in range(11):
            m = (mx(t - 2, vS[(t - 2) % 3]) if t >= 2 else []) + XA.get(t, [])
            h = len(m) // 2
            if t < 9:
                A.wait(ds=["k%d" % t])
                q0, q1 = qk(t, vS[t % 3])
                A(q0)
                put(m[:h])
                if nrd < 9: put(rdk(nrd)); nrd += 1
                A(q1)
                put(m[h:])
            else: put(m)
        self.stamp(8)
        A("v_mov_b32 v%d, v%d" % (vU, vM))
        A.wait(ds=["vfix"]); A("s_barrier")
        def rdv(t):
            d = vV + 8 * (t % 2)
            return [("DS", "ds_read_b64_tr_b16 %s, v%d offset:%d" % (vr(d + 4 * s + 2 * j, 2), vVA + j, t * 2048 + s * 256), "v%d" % t) for s in range(2) for j in range(2)]
        A("v_permlane32_swap_b32 v%d, v%d" % (vM, vU))
        A("v_max_f32 v%d, v%d, v%d" % (vM, vM, vU))
        A("v_cvt_pk_bf16_f32 v%d, -v%d, -v%d" % (vU, vM, vM)); A("v_lshlrev_b32 v%d, 16, v%d" % (vU, vU))
        A("v_add_f32 v%d, v%d, v%d" % (vM, vM, vU))
        A("v_cvt_pk_bf16_f32 v%d, v%d, -v%d" % (vU, vU, vM))
        A("v_cndmask_b32 v%d, v%d, v%d, %s" % (vQ + 0, vQ + 0, vU, sr(sM1, 2))); A("v_cndmask_b32 v%d, v%d, v%d, %s" % (vQ + 6, vQ + 6, vU, sr(sM0, 2)))
        A("v_mul_f32 v%d, v%d, v%d" % (vS2, vS2, vS2))
        q0, q1 = qk(0, vS[0])
        A(q0); put(rdv(0)[:2]); A(q1); put(rdv(0)[2:])
        self.stamp(9)
        X = {}
        def ax(t, it): X.setdefault(t, []).append(it)
        NA0 = o.get("na0", 3)
        for i in range(NA0): put(self.act(i))
        for i in range(NA0, 12): ax((i - NA0) * 6 // (12 - NA0), self.act(i))
        X.setdefault(o.get("h1_t", 0), []).insert(0, [("W", ["ep1"], []), self.flagstore(sFH)])
        ax(1, [S("s_add_u32 s%d, s%d, %d", sFB0, sFB0, FLH1 - FLH0), rl(sL, "OST"), rl(sL + 1, "FO"), rl(sL + 2, "FB2")])
        ax(o.get("fh1_ld", 8), self.flagload(vF1, vAT, "fh1", "s%d" % sFB0))
        ax(5, [S("s_sub_u32 s%d, s%d, s%d", sT0, sMX, sKM), S("v_subrev_u32 v%d, s%d, v%d", vTA, sT0, vTA), S("v_subrev_u32 v%d, s%d, v%d", vTA + 1, sT0, vTA + 1)])
        for i in range(3): ax(6 + i // 2, self.kw_dma(29 + i))
        H1T = o.get("fh1_t", 7); H1K = o.get("fh1_k", 3)
        if H1K < 0:
            ax(H1T, self.poll(vF1, vAT, "fh1", "s%d" % sFB0))
            for i in range(4): ax(H1T + i // 2 if H1T < 8 else 8, self.act(12 + i))
        inreg = lambda k: 13 <= k <= 28
        def WK(k, T_):
            if inreg(k): return self.XF(T_, k - 13)
            return vr(vWK + (k % 2) * 8 + 4 * T_, 4)
        def rdw(k): return self.kw_read(k, lambda T_, j: vr(vWK + (k % 2) * 8 + 4 * T_ + 2 * j, 2))
        ax(8, [("W", ["kw0"], [])] + rdw(0))
        for t in range(10):
            buf = vS[t % 2]; pp = vPP + 8 * (t % 2); ppm = vPP + 8 * ((t - 1) % 2); vm = vV + 8 * ((t - 1) % 2)
            mm = qk(t + 1, vS[(t + 1) % 2]) if t + 1 < 9 else []
            pv = [mf32(vO, vr(vm, 4), vr(ppm, 4), "0" if t == 1 else None), mf32(vO, vr(vm + 4, 4), vr(ppm + 4, 4))] if t >= 1 else []
            if o.get("finep") == 2: self.stamp(32 + t, True)
            if pv: A.wait(ds=["v%d" % (t - 1)])
            if t == 9:
                put(pv); break
            if pv: A(pv[0])
            for i in range(4): A("v_exp_f32 v%d, v%d" % (buf + i, buf + i))
            if mm: A(mm[0])
            for i in range(4, 8): A("v_exp_f32 v%d, v%d" % (buf + i, buf + i))
            if pv: A(pv[1])
            for i in range(4): A("v_cvt_pk_bf16_f32 v%d, v%d, v%d" % (pp + i, buf + 2 * i, buf + 2 * i + 1))
            if t >= 1: put(rdv(t))
            if mm: A(mm[1])
            for i in range(8, 16): A("v_exp_f32 v%d, v%d" % (buf + i, buf + i))
            put(X.get(t, []))
            for i in range(4, 8): A("v_cvt_pk_bf16_f32 v%d, v%d, v%d" % (pp + i, buf + 2 * i, buf + 2 * i + 1))
        sFO = sL + 1; sFB2 = sL + 2
        OE = [S("s_mov_b32 s%d, 0", sM0), S("s_mov_b32 s%d, -1", sM0 + 1), S("v_mov_b32 v%d, v%d", vM, vO + 12), S("v_mov_b32 v%d, v%d", vU, vO + 12),
              "s_nop 1", S("v_permlane32_swap_b32 v%d, v%d", vM, vU), S("v_rcp_f32 v%d, v%d", vM, vU), "s_nop 0", S("v_mul_f32 v%d, v%d, v%d", vM, vM, vS2),
              S("v_cndmask_b32 v%d, v%d, 0, %s", vU, vM, sr(sM0, 2))]
        for hh in range(2):
            OE += [S("v_mul_f32 v%d, v%d, v%d", vO + i, vM if i < 12 else vU, vO + i) for i in range(8 * hh, 8 * hh + 8)]
            OE += [S("v_cvt_pk_bf16_f32 v%d, v%d, v%d", vPP + i, vO + 2 * i, vO + 2 * i + 1) for i in range(4 * hh, 4 * hh + 4)]
            OE.append(("VM", "buffer_store_dwordx4 %s, v%d, %s, s%d offen offset:%d sc1" % (vr(vPP + 4 * hh, 4), vL16, sr(sWS, 4), sL, 1024 * hh), "ost"))
        self.stamp(10)
        A.C("K2")
        lk = self.lab()
        A("s_cmp_lt_u32 s%d, 28" % sIDX)
        A("s_cbranch_scc1 %s" % lk)
        A.br_begin(); put(OE); A.br_alt_end(); A.br_alt_end(); A.br_end()
        A("s_waitcnt vmcnt(0)")
        A("buffer_store_dwordx2 %s, v%d, %s, s%d offen sc1" % (vr(vN, 2), vFO, sr(sWS, 4), sFO))
        self.stamp_flush()
        A("s_branch L_END")
        A.label(lk)
        ACC = 128
        FOK = o.get("fo_k", 20); FOC = o.get("fo_c", 24); OFK = o.get("oflag_k", 7)
        asch = {k: [16 + k] for k in range(12)}
        if H1K >= 0:
            asch = {}; na = 12
            for k in range(H1K, 30):
                n = 0
                while na < 28 and n < (2 if na <= k + 10 else 1): asch.setdefault(k, []).append(na); na += 1; n += 1
        for i in range(8): asch.setdefault(FOC + i // 2, []).append(28 + i)
        wsch = o.get('wsch', {19: 32, 20: 33, 22: 34, 23: 35})
        vXL, vOO, vT3, vR2 = 24, 32, 34, 44
        for k in range(36):
            z = "0" if k == 0 else None
            nxt = k < 35 and not inreg(k + 1)
            A.wait(vm=["ka%d" % k] + (["kw%d" % (k + 1)] if nxt else []), ds=["kr%d" % k])
            r = rdw(k + 1) if nxt else []
            ex = []
            if k < 2: ex += OE[:23] if k == 0 else OE[23:]
            if k == H1K: ex += self.poll(vF1, vAT, "fh1", "s%d" % sFB0)
            if k in wsch: ex.append(self.kw_dma(wsch[k]))
            if k == OFK: ex.append([("W", ["ost"], []), self.flagstore(sFO)])
            if k == FOK: ex.append(self.flagload(vF2, vVT, "fo", "s%d" % sFB2))
            if k == FOC: ex.append(self.poll(vF2, vVT, "fo", "s%d" % sFB2))
            for a_ in asch.get(k, []): ex.append(self.act(a_))
            if k == 13: ex.append("s_load_dwordx2 s[%d:%d], s[0:1], 56" % (sOUT, sOUT + 1))
            if k == 18: ex.append([A.wait_all_ds, S("s_and_b32 s%d, s%d, 0xffff", sOUT + 1, sOUT + 1), S("s_mov_b32 s%d, 1835008", sOUT + 2), S("s_mov_b32 s%d, 0x20000", sOUT + 3)])
            if k == 19:
                ex.append([S("v_lshrrev_b32 v%d, 3, v%d", vT3, vL), S("v_mul_u32_u24 v%d, 896, v%d", vT3 + 2, vT3), S("v_and_b32 v%d, 7, v%d", vT3 + 1, vL),
                           S("v_lshl_add_u32 v%d, v%d, 4, v%d", vOO, vT3 + 1, vT3 + 2), S("v_add_u32 v%d, %d, v%d", vOO + 1, 32 * 896, vOO), S("v_lshlrev_b32 v%d, 3, v%d", 46, vT3),
                           rl(sXO, "XO2"), rl(sM1, "RSK")])
            if k == 21:
                ex.append([("VM", S("buffer_load_dwordx4 %s, v%d, %s, s%d offen", vr(vXL + 4 * j, 4), vOO + j, sr(sX, 4), sXO), "xl") for j in range(2)]
                          + [("VM", S("buffer_load_dword v%d, v%d, %s, s%d offen offset:%d sc1", vR2 + j, 46, sr(sWS, 4), sM1, 256 * j), "xl") for j in range(2)])
            if k == 20:
                ex.append([S("v_bfe_u32 v%d, v%d, 4, 1", vT3, vL), S("v_and_b32 v%d, 15, v%d", vT3 + 1, vL), S("v_lshlrev_b32 v%d, 14, v%d", vT3, vT3),
                           S("v_lshl_add_u32 v%d, v%d, 8, v%d", vT3, vT3 + 1, vT3), S("v_add_u32 v%d, s%d, v%d", vT3, sXM, vT3), S("v_add_u32 v%d, %d, v%d", vT3, WR, vT3),
                           S("v_lshrrev_b32 v%d, 5, v%d", vT3 + 1, vL), S("v_and_b32 v%d, 7, v%d", vT3 + 2, vL), S("v_xor_b32 v%d, v%d, v%d", vT3 + 1, vT3 + 1, vT3 + 2)])
            if k == 22:
                ex.append(sum([[S("v_xor_b32 v%d, %d, v%d", vT3 + 3, 2 * i, vT3 + 1), S("v_lshl_add_u32 v%d, v%d, 4, v%d", vT3 + 6 + i, vT3 + 3, vT3)] for i in range(4)], []))
            if k == 23:
                ex.append([S("v_lshrrev_b32 v%d, 3, v%d", vT3, vL), S("v_lshlrev_b32 v%d, 1, v%d", vT3 + 1, vT3 + 2), S("v_xor_b32 v%d, v%d, v%d", vT3 + 1, vT3 + 1, vT3),
                           S("s_lshl_b32 s%d, s%d, 14", sT0, sA), S("s_lshl_b32 s%d, s%d, 11", sT1, sB), S("s_add_u32 s%d, s%d, s%d", sT0, sT0, sT1), S("s_add_u32 s%d, s%d, %d", sT0, sT0, WR),
                           S("v_lshlrev_b32 v%d, 8, v%d", vT3, vT3), S("v_lshl_add_u32 v%d, v%d, 4, v%d", vT3, vT3 + 1, vT3),
                           S("v_add_u32 v%d, s%d, v%d", vT3 + 4, sT0, vT3), S("v_xor_b32 v%d, 16, v%d", vT3 + 5, vT3 + 4)])
            if k == 30:
                ex.append([("W", ["xl"], [])] + [S("v_and_b32 v%d, 0xffff0000, v%d", vR2 + j, vR2 + j) for j in range(2)] + [S("v_mul_f32 v%d, v%d, v%d", vR2 + j, vR2 + j, vR2 + j) for j in range(2)]
                          + [S("v_rcp_f32 v%d, v%d", vR2 + j, vR2 + j) for j in range(2)])
            if k in (31, 32):
                j = k - 31
                ex.append(sum([[S("v_lshlrev_b32 v%d, 16, v%d", 48 + 8 * j + 2 * i, vXL + 4 * j + i), S("v_and_b32 v%d, 0xffff0000, v%d", 49 + 8 * j + 2 * i, vXL + 4 * j + i)] for i in range(4)], []))
            h = (len(ex) + 1) // 2
            if o.get("finep") == 3 and k < 28: self.stamp(32 + k, True)
            if o.get("finep") == 4 and k >= 8: self.stamp(32 + k - 8, True)
            if k == 34:
                tl = [(0, 0), (0, 1), (1, 0), (1, 1)]
                wr = lambda T_, j: [("DS", "ds_write_b128 v%d, %s offset:%d" % (vT3 + 6 + i, vr(ACC + 32 * T_ + 16 * j + 4 * i, 4), j * 32768 + T_ * 128), "rw") for i in range(4)]
                A(mf32(ACC, WK(34, 0), self.AF(34, 0))); put(r)
                A(mf32(ACC + 16, WK(34, 0), self.AF(34, 1)))
                A.wait(vm=["ka35"], ds=["kr35"])
                A(mf32(ACC, WK(35, 0), self.AF(35, 0)))
                A(mf32(ACC + 16, WK(35, 0), self.AF(35, 1)))
                A(mf32(ACC + 32, WK(34, 1), self.AF(34, 0)))
                A(mf32(ACC + 32, WK(35, 1), self.AF(35, 0))); A("s_nop 7"); put(wr(0, 0))
                A(mf32(ACC + 48, WK(34, 1), self.AF(34, 1))); put(wr(0, 1))
                A(mf32(ACC + 48, WK(35, 1), self.AF(35, 1))); put(wr(1, 0)); put(wr(1, 1))
                break
            def isdma(x): return isinstance(x, list) and any(isinstance(y, str) and y.startswith("s_add_u32 m0") for y in x)
            fl = []
            for x in ex:
                if isinstance(x, list) and not isdma(x) and not any(isinstance(y, str) and "cbranch" in y for y in x): fl += x
                else: fl.append(x)
            def c_(x):
                if isinstance(x, list): return sum(c_(y) for y in x)
                if isinstance(x, tuple): return {"VM": 16, "DS": 8, "W": 4, "L": 0}[x[0]]
                return 5
            cap = [8, 8, 24, 20] if r else [24, 24, 24, 20]
            if k == 0: cap = [0, 0.01, 24, 20]
            tot = c_(fl); sc = max(1.0, tot / sum(cap)); gp = [[] for _ in range(4)]; gi = 0; used = 0.0; lim = cap[0] * sc
            for x in fl:
                while gi < 3 and used + c_(x) / 2 > lim: gi += 1; lim += cap[gi] * sc
                gp[gi].append(x); used += c_(x)
            A(mf32(ACC, WK(k, 0), self.AF(k, 0), z)); put(r[:2]); put(gp[0])
            A(mf32(ACC + 16, WK(k, 0), self.AF(k, 1), z)); put(r[2:]); put(gp[1])
            A(mf32(ACC + 32, WK(k, 1), self.AF(k, 0), z)); put(gp[2])
            A(mf32(ACC + 48, WK(k, 1), self.AF(k, 1), z)); put(gp[3])
            if k in (0, 6, 12, 18, 24, 30): self.stamp(16 + k // 6)
        self.stamp(12)
        A.C("reduce")
        A.wait(ds=["rw"]); A("s_barrier")
        self.stamp(11)
        vRD = 192
        for j in range(2):
            for w in range(4):
                for e in range(2):
                    A.DS("ds_read_b128 %s, v%d offset:%d" % (vr(vRD + j * 32 + w * 8 + e * 4, 4), vT3 + 4 + e, w * 4096 + j * 32768), "rr%d_%d" % (j, w))
        for j in range(2):
            b = vRD + j * 32; xb = 48 + 8 * j
            for w in range(1, 4):
                A.wait(ds=["rr%d_%d" % (j, w)])
                for i in range(8): A("v_add_f32 v%d, v%d, v%d" % (b + i, b + i, b + 8 * w + i))
            for i in range(8): A("v_fmac_f32 v%d, v%d, v%d" % (xb + i, vR2 + j, b + i))
            for i in range(4): A("v_cvt_pk_bf16_f32 v%d, v%d, v%d" % (b + i, xb + 2 * i, xb + 2 * i + 1))
            A.VM("buffer_store_dwordx4 %s, v%d, %s, s%d offen%s" % (vr(b, 4), vOO + j, sr(sOUT, 4), sXO, o.get("outfl", "")))
        self.stamp(13); self.stamp_flush()

def generate(opts):
    global ROTK, ZDUM
    ZDUM = opts.get('zdum', 1)
    ROTK = opts.get('rotk', 0)
    g = G(opts); g.build()
    body, npad = pad_hazards(g.A.L, verbose=opts.get("verbose"))
    head = open("parallel_sum__sliding_block__glu_gated_bilinear__prompt.s.ref").read().split("; Override launch")[0]
    txt = head + "; @launch grid=(256,1,1) block=(256,1,1) lds=%d\n" % LDS_BYTES
    txt += '.amdgcn_target "amdgcn-amd-amdhsa--gfx950"\n.text\n.globl %s\n.p2align 8\n.type %s,@function\n%s:\n' % (KN, KN, KN)
    txt += "\n".join(("  " + l) if not l.endswith(":") else l for l in body) + "\n"
    txt += ".p2align 8\n.type L_TABLE,@object\nL_TABLE:\n" + "".join(".long " + ",".join(str(v) for v in r) + "\n" for r in table())
    txt += """.section .rodata,"a"
.p2align 6
.amdhsa_kernel %s
  .amdhsa_next_free_vgpr 512
  .amdhsa_next_free_sgpr 102
  .amdhsa_accum_offset 256
  .amdhsa_group_segment_fixed_size 0
  .amdhsa_kernarg_size 80
  .amdhsa_user_sgpr_count 2
  .amdhsa_user_sgpr_kernarg_segment_ptr 1
  .amdhsa_system_sgpr_workgroup_id_x 1
.end_amdhsa_kernel
""" % KN
    return txt, npad

if __name__ == "__main__":
    opts = {}
    out = "k7.s"
    for a in sys.argv[1:]:
        if "=" in a:
            k, v = a.split("=", 1); opts[k] = eval(v)
        else: out = a
    txt, npad = generate(opts)
    open(out, "w").write(txt)
    print("written", out, "lines", txt.count("\n"), "pad states", npad)
```

```python
import sys
from asmlib import Asm, pad_hazards

KN = "parallel_sum__sliding_block__glu_gated_bilinear__prompt_kernel"
FLQ, FLV, FLH0, FLH1, FLO = 0, 2048, 4096, 12288, 20480
RS = 32768
CSR = 65536
QKV = 0x40000
ACT = QKV + 64 * 168 * 512
WS_BYTES = ACT + 64 * 144 * 1024
STAMP = WS_BYTES
XR = 0
CSL = 65536
R5 = 49152
WR = 98304
LDS_BYTES = 163840
SPIN_MAX = 200000

def vr(a, n=1): return "v%d" % a if n == 1 else "v[%d:%d]" % (a, a + n - 1)
def ar(a, n=1): return "a%d" % a if n == 1 else "a[%d:%d]" % (a, a + n - 1)
def sr(a, n=1): return "s%d" % a if n == 1 else "s[%d:%d]" % (a, a + n - 1)

sW, sA, sB, sIDX, sSPIN = 3, 4, 5, 6, 7
sX, sWQKV, sG1, sG2, sWS, sWD, sWO, sOUT, sDBG = 8, 12, 16, 20, 24, 28, 32, 36, 40
sCS = 36
TB = 44
sG1O, sG2O, sG1S, sG1S3, sSF, sS0, sS1, sCO, sCSS, sCSO, sWB0, sWB1, sWB2, sAB0, sAB1, sAB2, sKS0, sMX, sM5, sKM = \
    [TB + i for i in (0, 1, 2, 3, 4, 6, 10, 14, 15, 16, 20, 21, 22, 23, 24, 25, 26, 29, 30, 31)]
sG1ST, sG1R, sG2R, sKWB = TB + 20, TB + 21, TB + 22, TB + 23
sPRD = 99
sT0, sT1, sT2, sT3 = 76, 77, 78, 79
sNON, sXO, sWO1, sXM, sWM, sG1Q, sACT, sM0, sM1 = 80, 82, 83, 84, 85, 86, 87, 88, 90
sL = 92
sXCD, sRB, sCG, sRT0 = 92, 93, 94, 95
STASH = ["FE", "FH", "FQ", "FO", "CST", "RSO", "RSC", "QO", "RSQ", "OST", "XO2", "RSK", "FB0", "FB2", "KF0", "KF1", "KF2", "RA", "ME", "MO", "ODD", "FXO", "QS", "G1STR"] + ["KW%d" % i for i in range(11)] + ["KA%d" % i for i in range(11)] + ["TG1", "TG2", "TW1"]
ROW = 81

ROTK = 1
ZDUM = 1
MAPB = 3
def table():
    rows = []
    for wg in range(256):
        xcd, idx = wg & 7, wg >> 3
        nb = MAPB; rb = ((xcd & ((1 << (4 - nb)) - 1)) << nb) + (idx & ((1 << nb) - 1)); cg = ((xcd >> (4 - nb)) << (5 - nb)) + (idx >> nb)
        isq = 12 <= cg <= 14
        gu0 = 2 * cg if cg < 12 else 27; gu1 = 2 * cg + 1 if cg < 12 else 12 + cg
        h = 2 * xcd + (idx & 1); ra = idx >> 1; odd = h & 1
        i2 = min(idx, 27); r64 = 4 * xcd + i2 // 7; cb = i2 % 7
        for w in range(4):
            a, b = w >> 1, w & 1
            rt = [4 * rb + (w ^ j) for j in range(2)]
            st1 = 2688 if isq else 3584
            ud = min(2 * cg - 8 + a, 20); uc = min(2 * cg - 8 + b, 20)
            tt = 2 * b + a
            t = {}
            t[0] = (ud if isq else gu0) * 128 + 32 * b * st1
            t[1] = gu1 * 128 + 32 * b * 3584
            t[2] = 16 * st1; t[3] = 48 * st1
            for j in range(2):
                t[4 + j] = QKV + rt[j] * 86016 + (2 * cg + b) * 2048
                for tl in range(2):
                    t[6 + 2 * tl + j] = (QKV + rt[j] * 86016 + (2 * uc + (a ^ tl)) * 2048) if isq else (ACT + rt[j] * 147456 + ((4 * gu0 + tt) ^ tl) * 1024)
                    if ZDUM and (cg == 15 or (cg == 14 and b == 1)): t[6 + 2 * tl + j] = 0x40000000
                    t[10 + 2 * tl + j] = ACT + rt[j] * 147456 + ((4 * gu1 + tt) ^ tl) * 1024
            line, ps = idx & 1, (idx >> 1) & 1
            half = ((xcd ^ (idx >> 2)) & 1) if MAPB == 3 else ((rb >> 2) ^ (rb >> 3)) & 1
            cq = isq and ps == 0
            if cq: cu = min(2 * cg - 8 + line, 20); col = cu * 128; unit = cu + 40; cstr = 2688
            else: g_ = gu0 if ps == 0 else gu1; col = g_ * 128; unit = g_ + 28 * line; cstr = 3584
            t[14] = col + (4 * half + w) * 56 * cstr; t[15] = 8 * cstr
            for tl in range(2):
                t[16 + tl] = CSR + ((uc + 40) * 2048 + (a ^ tl) * 512 if isq else gu0 * 2048 + (tt ^ tl) * 256)
                t[18 + tl] = CSR + gu1 * 2048 + (tt ^ tl) * 256
            ab = ACT + r64 * 2 * 147456
            rr = (i2 // 7 + cb) if ROTK else 0
            E_ = [6 * w + 2 * ((i + rr) % 3) for i in range(3)]
            L_ = [[6 * w + 1, 6 * w + 3, 6 * w + 5, 24 + w][(i + rr) % 4] for i in range(4)]
            O_ = [4 * w + (i + rr) % 4 for i in range(4)]
            kwb = [g_ * 64 * 896 + cb * 128 for g_ in E_ + L_] + [hh * 28 * 896 + cb * 128 for hh in O_]
            kab = [ab + g_ * 4096 for g_ in E_ + L_] + [ab + (112 + 2 * hh) * 1024 for hh in O_]
            t[20] = 64 * st1; t[21] = t[22] = t[23] = t[24] = t[25] = 0
            c0 = (7 * h) >> 1; kt = 4 * ra - 8 + 3 * w; qt = 4 * ra + w
            for i in range(3): t[26 + i] = QKV + max(kt + i, 0) * 86016 + c0 * 512
            t[29] = w * 12288; t[30] = R5 + w * 10240; t[31] = w * 6144
            fb = ((r64 >> 1) * 64 + 2 * (r64 & 1)) * 8
            s = dict(FE=(FLV + (rb * 16 + (cg - 12) * 4 + w) * 8) if isq else (FLH0 + ((rb * 16 + cg) * 4 + w) * 8), FH=FLH1 + ((rb * 16 + cg) * 4 + w) * 8,
                     FQ=FLQ + (rb * 16 + cg) * 8, FO=FLO + ((ra * 16 + h) * 4 + w) * 8,
                     CST=CSR + unit * 2048 + half * 1024 + b * 512 + a * 8, RSO=RS + (128 * rb + 8 * cg + 2 * w) * 8, RSC=RS + (rt[0] & ~1) * 256,
                     QO=QKV + qt * 86016 + c0 * 512, RSQ=RS + qt * 256, OST=ACT + (qt * 144 + 112 + 2 * h) * 1024,
                     XO2=(64 * r64 + 8 * w) * 896 + cb * 128, RSK=RS + (64 * r64 + 8 * w) * 8, FB0=FLH0 + fb + w * 96, FB2=FLO + fb + w * 128,
                     KF0=0x3f80 if kt < 0 else 0, KF1=0x3f80 if kt + 1 < 0 else 0, KF2=0x3f80 if kt + 2 < 0 else 0, RA=ra,
                     ME=0 if odd else 0xffffffff, MO=0xffffffff if odd else 0, ODD=odd, FXO=(0 if odd else 3 * 512 + 8) + w * 6144, QS=0x3e8b98d6 if cg < 7 else 0x3f800000, G1STR=st1)
            s['TG1'] = (ud if isq else gu0) * 128 + (28 * rb + 14 * b) * st1; s['TG2'] = gu1 * 128 + (28 * rb + 14 * b) * 3584; s['TW1'] = cg * 128 + (192 + 16 * rb + 4 * w) * 2688
            for i in range(11): s['KW%d' % i] = kwb[i]; s['KA%d' % i] = kab[i]
            rows.append([t[i] for i in range(32)] + [s[k] for k in STASH])
    return rows

vL, vL16 = 1, 2
vWD, vN, vFO, vG2D, vAO1, vST = 4, 6, 8, 9, 10, 11
vG1D2, vG2D2 = 90, 91
vXA, vW1A, vG1D = 12, 20, 21
vF0, vF1, vF2, vAT, vVT = 12, 13, 14, 16, 18
vS2 = 21
vG1A, vG2A, vAF, vVF, vSEL, vWF = 22, 24, 26, 27, 28, 32
vCSF, vMF, vCF, vCFF, vR, vT = 48, 52, 60, 76, 80, 84
vKA, vVA, vFX = 92, 93, 95
vQ, vTA, vKD, vP = 96, 104, 110, 112
vXD, vW1D = 112, 116
ACA, ACB, ACF = 128, 192, 192
vFT, vRSD, vDUM, vCO, vRO, vRD2, vCD, vCA = 224, 232, 252, 244, 248, 250, 254, 255
vMA, vMB = 128, 144
vXA2 = 176

def S(fmt, *a): return fmt % a

def icost(x):
    if isinstance(x, list): return sum(icost(y) for y in x)
    if isinstance(x, tuple):
        if x[0] == "L": return 0
        if x[0] == "W": return 4
        if x[0] == "VM": return 24 if "store" in x[1] else 16
        return 8
    if callable(x): return getattr(x, "cy", 24)
    if "mfma" in x: return 8
    if x.startswith(("v_permlane", "v_exp", "v_rcp", "v_sqrt")): return 8
    import re
    lit = any(abs(int(m_, 0)) > 64 for m_ in re.findall(r"(?<![\w\[:])(-?0x[0-9a-fA-F]+|-?\d+)(?![\w\]:.])", x.split(None, 1)[1] if " " in x else ""))
    four = x.startswith(("v_mul_f32", "v_mov_b32", "v_sub_f32", "v_add_f32", "v_and_b32", "v_xor_b32", "v_lshlrev", "v_lshrrev", "v_add_u32", "v_min_u32", "s_"))
    return 4 if four and not lit else 5.3

class G:
    def __init__(self, opts):
        self.o = opts; self.A = Asm(); self.nlab = 0; self.ool = []
    def lab(self, p="L"):
        self.nlab += 1; return "%s%d" % (p, self.nlab)
    def srd(self, d, ptr, size):
        A = self.A
        A("s_mov_b32 s%d, s%d" % (d, ptr)); A("s_and_b32 s%d, s%d, 0xffff" % (d + 1, ptr + 1))
        A("s_mov_b32 s%d, %d" % (d + 2, size)); A("s_mov_b32 s%d, 0x20000" % (d + 3))
    def stamp(self, i, light=False):
        if not self.o.get("stamps"): return
        if self.o.get("stamps") == 2 and i not in (0, 2, 6, 10, 12, 13): return
        if self.o.get("stamps") == 3 and i < 32 and i not in (0, 1, 2, 4, 6, 10, 13): return
        if i >= 32 and self.o.get("stamps") != 3: return
        A = self.A
        A("s_memtime s[100:101]"); A.wait_all_ds()
        A("v_writelane_b32 v0, s100, %d" % i)
        if not light:
            A("s_memrealtime s[100:101]"); A.wait_all_ds()
            A("v_writelane_b32 v3, s100, %d" % i)
    def stamp_flush(self):
        if not self.o.get("stamps"): return
        A = self.A
        A("s_lshl_b32 s100, s2, 2"); A("s_add_u32 s100, s100, s%d" % sW); A("s_lshl_b32 s100, s100, 9")
        A("s_add_u32 s100, s100, %d" % STAMP)
        A("v_lshlrev_b32 v2, 2, v%d" % vL)
        A("buffer_store_dword v0, v2, s[%d:%d], s100 offen" % (sWS, sWS + 3))
        A("buffer_store_dword v3, v2, s[%d:%d], s100 offen offset:256" % (sWS, sWS + 3))
    def spinlog(self, name):
        if not self.o.get("stamps"): return
        i = 24 + ["fq", "fv", "fh0", "fh1", "fo", "rs", "cs", "nonce"].index(name)
        self.A("v_writelane_b32 v0, s%d, %d" % (sSPIN, i))
    def put(self, x):
        A = self.A
        if callable(x): x()
        elif isinstance(x, list):
            for y in x: self.put(y)
        elif isinstance(x, tuple):
            if x[0] == "VM":
                tg = x[2] if len(x) > 2 else None
                import re as _re
                if self.o.get("dropvm") and _re.search(self.o["dropvm"], str(tg)): A.tag(tg)
                elif self.o.get("timevm") and _re.search(self.o["timevm"], str(tg)) and getattr(self, "ntv", 0) < 14:
                    n_ = getattr(self, "ntv", 0); self.ntv = n_ + 1
                    self.stamp(32 + 2 * n_, True); A.VM(x[1], tg); self.stamp(33 + 2 * n_, True)
                else: A.VM(x[1], tg)
            elif x[0] == "DS": A.DS(x[1], x[2] if len(x) > 2 else None)
            elif x[0] == "W": A.wait(vm=x[1], ds=x[2])
            elif x[0] == "L": A.label(x[1])
        else: A(x)
    def rl(self, dst, name): return "v_readlane_b32 s%d, v%d, %d" % (dst, vST, STASH.index(name))
    def flagload(self, voff, vt, tag, soff="0"):
        return ("VM", "buffer_load_dwordx2 %s, v%d, %s, %s offen sc1" % (vr(vt, 2), voff, sr(sWS, 4), soff), tag)
    def flagstore(self, soff):
        return ("VM", "buffer_store_dwordx2 %s, v%d, %s, s%d offen sc1" % (vr(vN, 2), vFO, sr(sWS, 4), soff))
    def spin(self, name, loads, check):
        ok = self.lab("OK"); sp = self.lab("SPIN")
        def slow():
            A = self.A
            A.label(sp)
            A("s_mov_b32 s%d, 0" % sSPIN)
            lp = sp + "L"; A.label(lp)
            A("s_sleep %d" % self.o.get("slp", 4))
            for l in loads: A(l[1])
            A("s_add_u32 s%d, s%d, 1" % (sSPIN, sSPIN))
            A("s_cmp_ge_u32 s%d, %d" % (sSPIN, self.o.get("spinmax", SPIN_MAX)))
            A("s_waitcnt vmcnt(0)")
            A("s_cbranch_scc1 %sX" % sp)
            for c in check: A(c); A("s_nop 1")
            A("s_cbranch_scc0 %s" % lp)
            A.label(sp + "X")
            self.spinlog(name)
            A("s_nop 4")
            A("s_branch %s" % ok)
        self.ool.append(slow)
        return [("W", [name], [])] + check[:-1] + [[check[-1], "s_cbranch_scc0 %s" % sp, ("L", ok)]]
    def poll(self, voff, vt, name, soff="0"):
        return self.spin(name, [self.flagload(voff, vt, name, soff)],
                         ["v_cmp_eq_u64 vcc, %s, %s" % (sr(sNON, 2), vr(vt, 2)), "s_cmp_eq_u64 vcc, exec"])
    def tagcheck(self, regs, t):
        o = []
        for i, r in enumerate(regs):
            if i == 0: o.append("v_xor_b32 v%d, s%d, v%d" % (t, sNON, r))
            else: o.append("v_bitop3_b32 v%d, v%d, s%d, v%d bitop3:0xbe" % (t, r, sNON, t))
        return o + ["v_cmp_eq_u32 vcc, 0, v%d" % t, "s_cmp_eq_u64 vcc, exec"]

    def XF(self, j, ks): return ar((j * 28 + ks) * 4, 4)
    def mf32(self, d, a_, b_, c=None): return "v_mfma_f32_32x32x16_bf16 %s, %s, %s, %s" % (vr(d, 16), a_, b_, c if c is not None else vr(d, 16))
    def mf16(self, d, a_, b_, c=None): return "v_mfma_f32_16x16x32_bf16 %s, %s, %s, %s" % (vr(d, 4), a_, b_, c if c is not None else vr(d, 4))
    def cfrag(self, dst, c, t):
        return ["v_cvt_pk_bf16_f32 v%d, v%d, v%d" % (t, c, c), "v_lshlrev_b32 v%d, 16, v%d" % (t, t),
                "v_sub_f32 v%d, v%d, v%d" % (t + 1, c, t), "v_cvt_pk_bf16_f32 v%d, v%d, v%d" % (dst, t, t + 1)]
    def qkv_epi(self, acc, vscale, soff, pk, tag):
        o = []
        for h in range(2):
            for i in range(8): o.append("v_mul_f32 v%d, v%d, v%d" % (acc + 8 * h + i, vscale, acc + 8 * h + i))
            for i in range(4): o.append("v_cvt_pk_bf16_f32 v%d, v%d, v%d" % (pk + 4 * h + i, acc + 8 * h + 2 * i, acc + 8 * h + 2 * i + 1))
        st = lambda h: ("VM", "buffer_store_dwordx4 %s, v%d, %s, s%d offen offset:%d sc1" % (vr(pk + 4 * h, 4), vL16, sr(sWS, 4), soff, 1024 * h), tag)
        sw = lambda r: "v_permlane32_swap_b32 v%d, v%d" % (r, r + 2)
        o += [sw(pk), sw(pk + 1), sw(pk + 4), st(0), sw(pk + 5), st(1)]
        return o
    def gu_epi(self, acc, soff, pk, tag):
        o = []
        for i in range(8): o.append("v_mul_f32 v%d, v%d, v%d" % (acc + i, acc + i, acc + 8 + i))
        for i in range(4): o.append("v_cvt_pk_bf16_f32 v%d, v%d, v%d" % (pk + i, acc + 2 * i, acc + 2 * i + 1))
        o.append(("VM", "buffer_store_dwordx4 %s, v%d, %s, s%d offen sc1" % (vr(pk, 4), vL16, sr(sWS, 4), soff), tag))
        return o

    def kw_loc(self, k):
        NA = self.o.get("na", 16)
        if 13 <= k <= 18: return ("X", k - 13)
        if 19 <= k < 13 + NA: return ("5", (k - 19) % 5)
        if k <= 4: return ("5", k)
        if k <= 12: return ("W", k - 5)
        return self.kw_loc(k - 13 - NA)
    def kw_off(self, k):
        r, i = self.kw_loc(k)
        if r == "W": return [2, 3, 0, 1][i // 2] * 16384 + (i % 2) * 2048
        return i * 2048
    def kw_dma(self, k):
        r, i = self.kw_loc(k)
        sm = {"X": sMX, "5": sM5, "W": sXM, "K": sKM}[r]
        grp, rows = (k // 4, 16 * (k % 4)) if k < 28 else (7 + (k - 28) // 2, 16 * (k % 2))
        srd_ = sWD if k < 28 else sWO
        if k in self.o.get("skipkw", []): return [lambda: self.A.tag("kw%d" % k)]
        def pre():
            if getattr(self, "kwg", None) != grp: self.A(self.rl(sKWB, "KW%d" % grp)); self.kwg = grp
        pre.wt = 0.5; pre.cy = 2
        return [pre, "s_add_u32 m0, s%d, %d" % (sm, self.kw_off(k) + (WR if r == "W" else 0)), "s_add_u32 s%d, s%d, %d" % (sT3, sKWB, rows * 896),
                ("VM", "buffer_load_dwordx4 v%d, %s, s%d offen lds" % (vWD, sr(srd_, 4), sT3), "kw%d" % k),
                ("VM", "buffer_load_dwordx4 v%d, %s, s%d offen offset:1024 lds" % (vWD + 1, sr(srd_, 4), sT3), "kw%d" % k)]
    def kw_read(self, k, dst):
        r, i = self.kw_loc(k); va = vTA + {"X": 0, "5": 2, "W": 4, "K": 0}[r]
        return [("DS", "ds_read_b64_tr_b16 %s, v%d offset:%d" % (dst(T, j), va + T, self.kw_off(k) + j * 1024), "kr%d" % k) for T in range(2) for j in range(2)]
    def kw_drain(self, k):
        x = self.xs[k]
        return [("W", ["kw%d" % k], [])] + self.kw_read(k, lambda T, j: ar((T * 28 + x) * 4 + 2 * j, 2))
    def AF(self, k, j):
        if k < 12: return self.XF(j, 16 + k)
        if k < 16: return ar(224 + (k - 12) * 8 + 4 * j, 4)
        if k < 26: return vr(24 + (k - 16) * 8 + 4 * j, 4)
        if k < 34: return vr(192 + (k - 26) * 8 + 4 * j, 4)
        return self.XF(j, 16 + k - 34)
    def act(self, k):
        o = []
        grp, i = (k // 4, k % 4) if k < 28 else (7 + (k - 28) // 2, k % 2)
        if i == 0: o += [self.rl(sT2, "KA%d" % grp), "s_nop 0", "s_mov_b32 s%d, s%d" % (sACT, sT2)]
        for j in range(2):
            o.append(("VM", "buffer_load_dwordx4 %s, v%d, %s, s%d offen offset:%d sc1" % (self.AF(k, j), vAO1 if j else vL16, sr(sWS, 4), sACT, i * 1024), "ka%d" % k))
        return o

    def build(self):
        A = self.A; o = self.o; put = self.put; rl = self.rl
        XF, mf32, mf16 = self.XF, self.mf32, self.mf16
        T = vT
        if o.get("stamps"): A("s_memrealtime s[90:91]")
        A("s_cmp_ge_u32 s2, 256"); A("s_cbranch_scc1 L_END")
        A("s_load_dwordx16 s[44:59], s[0:1], 0"); A("s_load_dwordx4 s[60:63], s[0:1], 64")
        A("v_lshrrev_b32 v3, 6, v0"); A("v_and_b32 v%d, 63, v0" % vL)
        A("v_readfirstlane_b32 s%d, v3" % sW)
        A("v_lshlrev_b32 v%d, 4, v%d" % (vL16, vL))
        A("s_and_b32 s%d, s2, 7" % sXCD); A("s_lshr_b32 s%d, s2, 3" % sIDX)
        A("s_getpc_b64 s[96:97]"); A.label("L_PFBASE")
        A("s_lshl_b32 s%d, s2, 2" % sT0); A("s_add_u32 s%d, s%d, s%d" % (sT0, sT0, sW)); A("s_mul_i32 s%d, s%d, %d" % (sT0, sT0, ROW * 4))
        A("s_add_u32 s%d, s%d, L_TABLE-L_PFBASE" % (sT0, sT0))
        A("s_add_u32 s%d, s96, s%d" % (sNON, sT0)); A("s_addc_u32 s%d, s97, 0" % (sNON + 1))
        A("v_min_u32 v%d, %d, v%d" % (vST, len(STASH) - 1, vL)); A("v_lshlrev_b32 v%d, 2, v%d" % (vST, vST))
        if o.get("early", 1):
            A.VM("global_load_dword v%d, v%d, s[%d:%d]" % (vDUM, vST, sNON, sNON + 1))
        A.VM("global_load_dword v%d, v%d, s[%d:%d] offset:128" % (vST, vST, sNON, sNON + 1), "stash")
        if o.get("codepf", 1):
            A("s_and_b32 s%d, s%d, 3" % (sT0, sIDX)); A("s_cmp_eq_u32 s%d, s%d" % (sT0, sW))
            l2 = self.lab(); A("s_cbranch_scc0 %s" % l2)
            A("s_lshl_b32 s%d, s%d, 13" % (sT0, sT0))
            A("v_lshlrev_b32 v%d, 7, v%d" % (T + 6, vL)); A("v_add_u32 v%d, s%d, v%d" % (T + 6, sT0, T + 6))
            A("v_min_u32 v%d, L_END-L_PFBASE, v%d" % (T + 6, T + 6))
            A("global_load_dword v%d, v%d, s[96:97]" % (vDUM, T + 6))
            A.label(l2)
        if o.get("padtest") == 1:
            for i in range(256): A("s_mov_b32 s98, 0x12345678")
        if o.get("padtest") == 2:
            A("s_mov_b32 s99, 0"); A.label("L_PADL")
            for i in range(31): A("s_mov_b32 s98, 0x12345678")
            A("s_add_u32 s99, s99, 1"); A("s_cmp_lt_u32 s99, 8"); A("s_cbranch_scc1 L_PADL")
        nb = MAPB
        A("s_and_b32 s%d, s%d, %d" % (sT0, sXCD, (1 << (4 - nb)) - 1)); A("s_lshl_b32 s%d, s%d, %d" % (sT0, sT0, nb)); A("s_and_b32 s%d, s%d, %d" % (sT1, sIDX, (1 << nb) - 1)); A("s_add_u32 s%d, s%d, s%d" % (sRB, sT0, sT1))
        A("s_lshr_b32 s%d, s%d, %d" % (sT0, sXCD, 4 - nb)); A("s_lshl_b32 s%d, s%d, %d" % (sT0, sT0, 5 - nb)); A("s_lshr_b32 s%d, s%d, %d" % (sT1, sIDX, nb)); A("s_add_u32 s%d, s%d, s%d" % (sCG, sT0, sT1))
        if nb != 3: A("s_mov_b32 s%d, s%d" % (sPRD, sRB))
        vR8, vSW = vCD, vCA
        A("v_lshrrev_b32 v%d, 3, v%d" % (vR8, vL)); A("v_lshrrev_b32 v%d, 4, v%d" % (T + 1, vL)); A("v_and_b32 v%d, 7, v%d" % (T + 2, vL))
        A("v_xor_b32 v%d, v%d, v%d" % (T + 3, T + 2, T + 1))
        A("v_mul_u32_u24 v%d, 896, v%d" % (T + 4, vR8))
        A("v_lshl_add_u32 v%d, v%d, 4, v%d" % (vXD, T + 3, T + 4))
        A("v_xor_b32 v%d, 64, v%d" % (vXD + 1, vXD))
        A("v_add_u32 v%d, %d, v%d" % (vXD + 3, 24 * 896 - 3072, vXD + 1))
        A("v_add_u32 v%d, %d, v%d" % (vXD + 1, 8 * 896 - 1024, vXD + 1))
        A("v_add_u32 v%d, %d, v%d" % (vXD + 2, 16 * 896 - 2048, vXD))
        A("s_lshl_b32 s%d, s%d, 2" % (sRT0, sRB)); A("s_add_u32 s%d, s%d, s%d" % (sRT0, sRT0, sW)); A("s_mul_i32 s%d, s%d, %d" % (sXO, sRT0, 32 * 896))
        A("s_lshl_b32 s%d, s%d, 12" % (sXM, sW))
        A("v_and_b32 v%d, 1, v%d" % (vSW, T + 1)); A("v_lshlrev_b32 v%d, 2, v%d" % (vSW, vSW)); A("v_xor_b32 v%d, v%d, v%d" % (vSW, vSW, T + 2))
        A("v_lshlrev_b32 v%d, 4, v%d" % (vSW, vSW))
        A("s_movk_i32 s%d, 2688" % sT2)
        A("v_mad_u32_u24 v%d, v%d, s%d, v%d" % (vW1D, vR8, sT2, vSW))
        A("v_add_u32 v%d, %d, v%d" % (vW1D + 1, 8 * 2688 - 1024, vW1D))
        A("v_add_u32 v%d, v%d, v%d" % (vWD, T + 4, vSW)); A("v_add_u32 v%d, %d, v%d" % (vWD + 1, 8 * 896 - 1024, vWD))
        A("s_mul_i32 s%d, s%d, %d" % (sWO1, sW, 16 * 2688)); A("s_lshl_b32 s%d, s%d, 7" % (sT0, sCG)); A("s_add_u32 s%d, s%d, s%d" % (sWO1, sWO1, sT0))
        A("s_lshl_b32 s%d, s%d, 11" % (sWM, sW)); A("s_add_u32 s%d, s%d, %d" % (sWM, sWM, WR))
        A("s_lshl_b32 s%d, s%d, 4" % (sT3, sRB)); A("s_add_u32 s%d, s%d, s%d" % (sT3, sT3, sCG)); A("s_lshl_b32 s%d, s%d, 2" % (sT3, sT3)); A("s_add_u32 s%d, s%d, s%d" % (sT3, sT3, sW))
        A("s_mul_i32 s%d, s%d, 1792" % (sM0, sT3))
        A("v_cmp_gt_u32 vcc, 56, v%d" % vL); A("v_mov_b32 v%d, 0x10000000" % (T + 5))
        A("s_lshr_b32 s%d, s%d, 1" % (sA, sW)); A("s_and_b32 s%d, s%d, 1" % (sB, sW))
        A("v_cndmask_b32 v%d, v%d, v%d, vcc" % (T + 5, T + 5, vL16))
        A("s_waitcnt lgkmcnt(0)")
        if o.get("stamps"): A("v_mov_b32 v%d, s90" % vCO); A("s_memrealtime s[100:101]"); A("s_waitcnt lgkmcnt(0)"); A("v_mov_b32 v%d, s100" % (vCO + 1))
        self.srd(sX, 44, 1835008); self.srd(sWQKV, 46, 1204224)
        def dma_x(s):
            out = []
            for h in range(2):
                it = ["s_add_u32 m0, s%d, %d" % (sXM, XR + (s % 4) * 16384), ("s_add_u32 s%d, s%d, 128" % (sXO, sXO)) if (s > 0 and h == 0) else "s_nop 0"]
                for i in (2 * h, 2 * h + 1):
                    it.append(("VM", "buffer_load_dwordx4 v%d, %s, s%d offen offset:%d lds" % (vXD + i, sr(sX, 4), sXO, 1024 * i), "x%d" % s))
                out.append(it)
            return out
        def dma_w1(s):
            return [["s_add_u32 m0, s%d, %d" % (sWM, s * 8192), ("s_add_u32 s%d, s%d, %d" % (sWO1, sWO1, 64 * 2688)) if s > 0 else "s_nop 0",
                     ("VM", "buffer_load_dwordx4 v%d, %s, s%d offen lds" % (vW1D, sr(sWQKV, 4), sWO1), "w%d" % s),
                     ("VM", "buffer_load_dwordx4 v%d, %s, s%d offen offset:1024 lds" % (vW1D + 1, sr(sWQKV, 4), sWO1), "w%d" % s)]]
        NUP = 3; NU0 = o.get("nu0", 1)
        put(dma_x(0) + dma_w1(0))
        for j in range(2): A.VM("buffer_load_dwordx4 %s, v%d, %s, s%d offen offset:%d" % (vr(vRSD + 4 * j, 4), T + 5, sr(sX, 4), sM0, 896 * j), "rsd")
        if o.get("tw1", 1):
            A("s_mul_i32 s%d, s%d, %d" % (sT0, sRT0, 6 * 2688)); A("s_lshl_b32 s%d, s%d, 7" % (sT1, sCG)); A("s_add_u32 s%d, s%d, s%d" % (sT0, sT0, sT1)); A("s_add_u32 s%d, s%d, %d" % (sT0, sT0, 64 * 2688))
            A("v_min_u32 v%d, 5, v%d" % (T + 6, vL)); A("v_mul_u32_u24 v%d, 2688, v%d" % (T + 6, T + 6))
            A.VM("buffer_load_dword v%d, v%d, %s, s%d offen" % (vDUM, T + 6, sr(sWQKV, 4), sT0))
        for s in range(1, NU0): put(dma_x(s) + dma_w1(s))
        self.srd(sWS, 62, WS_BYTES + (1 << 20)); self.srd(sDBG, 60, 256); self.srd(sWD, 56, 1605632); self.srd(sWO, 48, 401408)
        if o.get("tlb", 1):
            A("v_min_u32 v%d, 7, v%d" % (T, vL)); A("v_lshlrev_b32 v%d, 21, v%d" % (T, T))
            A("v_mov_b32 v%d, s63" % (T + 3)); A("v_add_co_u32 v%d, vcc, s62, v%d" % (T + 2, T)); A("s_nop 1"); A("v_addc_co_u32 v%d, vcc, 0, v%d, vcc" % (T + 3, T + 3))
            for i, p_ in enumerate((48, 52, 54, 56, 58, 60)):
                A("v_writelane_b32 v%d, s%d, %d" % (T + 2, p_, 8 + i)); A("v_writelane_b32 v%d, s%d, %d" % (T + 3, p_ + 1, 8 + i))
            A.VM("global_load_dword v%d, v[%d:%d], off" % (vDUM, T + 2, T + 3))
        A("s_and_b32 s53, s53, 0xffff"); A("s_and_b32 s55, s55, 0xffff")
        A("s_cmp_eq_u32 s%d, 0" % sA); A("s_cselect_b32 s%d, s52, s54" % sG2); A("s_cselect_b32 s%d, s53, s55" % (sG2 + 1))
        A("s_mov_b32 s%d, 1605632" % (sG2 + 2)); A("s_mov_b32 s%d, 0x20000" % (sG2 + 3)); A("s_mov_b32 s%d, 0x20000" % (sG1 + 3)); A("s_mov_b32 s%d, 0x20000" % (sCS + 3))
        A("s_sub_u32 s%d, s%d, 12" % (sT0, sCG)); A("s_cmp_lt_u32 s%d, 3" % sT0); A("s_cselect_b32 s%d, 1, 0" % sG1Q)
        for i in range(3): A("s_cselect_b32 s%d, s%d, s%d" % (sG1 + i, sWQKV + i, sG2 + i))
        if o.get("zdum", 1):
            A("s_lshl_b32 s%d, s%d, 1" % (sT0, sCG)); A("s_add_u32 s%d, s%d, s%d" % (sT0, sT0, sA)); A("s_cmp_ge_u32 s%d, 29" % sT0); A("s_cselect_b32 s%d, 0, s%d" % (sG1 + 2, sG1 + 2))
        A("s_bitcmp0_b32 s%d, 0" % sIDX); A("s_cselect_b32 s%d, s52, s54" % sCS); A("s_cselect_b32 s%d, s53, s55" % (sCS + 1))
        A("s_lshr_b32 s%d, s%d, 1" % (sT0, sIDX)); A("s_andn2_b32 s%d, s%d, s%d" % (sT0, sG1Q, sT0))
        A("s_cselect_b32 s%d, s%d, s%d" % (sCS, sWQKV, sCS)); A("s_cselect_b32 s%d, s%d, s%d" % (sCS + 1, sWQKV + 1, sCS + 1)); A("s_cselect_b32 s%d, s%d, s%d" % (sCS + 2, sWQKV + 2, sG2 + 2))
        A("s_load_dwordx16 s[44:59], s[%d:%d], 0" % (sNON, sNON + 1)); A("s_load_dwordx16 s[60:75], s[%d:%d], 64" % (sNON, sNON + 1))
        A("v_lshlrev_b32 v%d, 28, v%d" % (vFO, vL))
        if o.get("stamps"):
            A("v_mov_b32 v0, 0"); A("v_mov_b32 v3, 0")
            A("v_readfirstlane_b32 s100, v%d" % vCO); A("v_readfirstlane_b32 s101, v%d" % (vCO + 1)); A("s_nop 3")
            A("v_writelane_b32 v3, s100, 22"); A("v_writelane_b32 v3, s101, 23")
        l1 = self.lab()
        A("s_or_b32 s%d, s%d, s%d" % (sT0, sIDX, sW)); A("s_cmp_lg_u32 s%d, 0" % sT0); A("s_cbranch_scc1 %s" % l1)
        A("s_memrealtime s[96:97]"); A("s_waitcnt lgkmcnt(0)")
        A("s_and_b32 s%d, s96, 0x3fff" % sT0); A("s_lshl_b32 s%d, s96, 2" % sT1); A("s_and_b32 s%d, s%d, 0x3fff0000" % (sT1, sT1))
        A("s_or_b32 s%d, s%d, s%d" % (sT0, sT0, sT1)); A("s_or_b32 s%d, s%d, 1" % (sT0, sT0))
        A("s_lshr_b64 s[90:91], s[96:97], 28"); A("s_or_b32 s%d, s90, 0x80000000" % sT1)
        A("v_mov_b32 v%d, s%d" % (T, sT0)); A("v_mov_b32 v%d, s%d" % (T + 1, sT1)); A("v_mov_b32 v%d, 0" % (T + 2)); A("v_mov_b32 v%d, 0" % (T + 3))
        A("v_lshlrev_b32 v%d, 8, v%d" % (T + 4, vL))
        A("buffer_atomic_cmpswap_x2 %s, v%d, %s, 0 offen sc1" % (vr(T, 4), T + 4, sr(sDBG, 4)))
        A("s_nop 1")
        A.label(l1)
        self.stamp(0)
        A("v_and_b32 v%d, 31, v%d" % (T, vL)); A("v_lshrrev_b32 v%d, 5, v%d" % (T + 1, vL))
        A("v_bfe_u32 v%d, v%d, 1, 3" % (T + 2, vL)); A("v_xor_b32 v%d, v%d, v%d" % (T + 2, T + 2, T + 1))
        A("v_lshlrev_b32 v%d, 7, v%d" % (T + 3, T)); A("v_add_u32 v%d, s%d, v%d" % (T + 3, sXM, T + 3))
        for s in range(4):
            A("v_xor_b32 v%d, %d, v%d" % (T + 4, 2 * s, T + 2))
            A("v_lshl_add_u32 v%d, v%d, 4, v%d" % (vXA + s, T + 4, T + 3))
            A("v_xor_b32 v%d, 4096, v%d" % (vXA + 4 + s, vXA + s))
        vB, vSG, vG = vG1A, vG1A + 1, vAF
        A("v_bfe_u32 v%d, v%d, 2, 2" % (T + 2, vL))
        A("v_lshl_add_u32 v%d, v%d, 3, v%d" % (T + 3, T + 1, T + 2))
        A("v_and_b32 v%d, 3, v%d" % (T + 4, vL)); A("v_lshlrev_b32 v%d, 3, v%d" % (T + 4, T + 4))
        A("v_lshl_add_u32 v%d, v%d, 7, v%d" % (T + 3, T + 3, T + 4))
        A("v_add_u32 v%d, %d, v%d" % (vB, WR, T + 3))
        A("v_and_b32 v%d, 2, v%d" % (T + 2, T + 2)); A("v_bfe_u32 v%d, v%d, 4, 1" % (vG, vL)); A("v_xor_b32 v%d, v%d, v%d" % (vSG, T + 2, vG))
        A("s_lshl_b32 s%d, s%d, 1" % (sT0, sB)); A("v_xor_b32 v%d, s%d, v%d" % (T + 5, sT0, vSG))
        A("v_lshl_add_u32 v%d, v%d, 5, v%d" % (vW1A, T + 5, vB))
        A("v_lshrrev_b32 v%d, 2, v%d" % (T + 5, vL)); A("v_xor_b32 v%d, v%d, v%d" % (T + 5, T + 5, vG)); A("v_and_b32 v%d, 1, v%d" % (T + 5, T + 5))
        A("v_and_or_b32 v%d, v%d, 3, v%d" % (T + 5, vL, T + 5))
        A("v_cmp_eq_u32 vcc, 0, v%d" % (T + 5)); A("v_mov_b32 v%d, 0x3f803f80" % (T + 6))
        A("v_add_u32 v%d, 147456, v%d" % (vAO1, vL16))
        for i in range(4): A("v_cndmask_b32 v%d, 0, v%d, vcc" % (vSEL + i, T + 6))

        def dma_g(g):
            p = g // 7; out = []
            so, vd, vd2, srd_ = (sG1O, vG1D, vG1D2, sG1) if p == 0 else (sG2O, vG2D, vG2D2, sG2)
            for i in range(2):
                it = ["s_add_u32 m0, s%d, %d" % (sXM, WR + (g % 4) * 16384 + i * 2048)]
                if i == 0 and g % 7 == 0: it.append("s_nop 0")
                elif p == 0: it.append("s_add_u32 s%d, s%d, s%d" % (so, so, sG1S if i > 0 else sG1S3))
                else: it.append("s_add_u32 s%d, s%d, %d" % (so, so, 16 * 3584 * (1 if i > 0 else 3)))
                it.append(("VM", "buffer_load_dwordx4 v%d, %s, s%d offen lds" % (vd, sr(srd_, 4), so), "g%d" % g))
                it.append(("VM", "buffer_load_dwordx4 v%d, %s, s%d offen offset:1024 lds" % (vd2, sr(srd_, 4), so), "g%d" % g))
                out.append(it); out.append([])
            return out
        W1SET = [((ks + 2) % 3) * 4 + 4 for ks in range(28)]
        def rd_x(ks):
            s, q = divmod(ks, 4)
            return [("DS", "ds_read_b128 %s, v%d offset:%d" % (XF(j, ks), vXA + 4 * j + q, XR + (s % 4) * 16384), "f%d" % ks) for j in range(2)]
        def rd_w1(ks):
            s, q = divmod(ks, 4); d = vWF + W1SET[ks]
            return [("DS", "ds_read_b64_tr_b16 %s, v%d offset:%d" % (vr(d + 2 * j, 2), vW1A, s * 8192 + (16 * q + 4 * j) * 128), "f%d" % ks) for j in range(2)]
        def rd_g(p, ks, t):
            s, q = divmod(ks, 4); g = p * 7 + s; d = vWF + (ks % 2) * 8 + t * 4
            va = (vG1A if p == 0 else vG2A) + t
            return [("DS", "ds_read_b64_tr_b16 %s, v%d offset:%d" % (vr(d + 2 * j, 2), va, (g % 4) * 16384 + (16 * q + 4 * j) * 128), "r%d_%d_%d" % (p, ks, t)) for j in range(2)]

        F = {}
        def add(p, ks, items): F.setdefault((p, ks), []).extend(items)
        def cnt(x):
            if isinstance(x, list): return sum(cnt(y) for y in x)
            if isinstance(x, tuple):
                if x[0] == "L": return 0
                if x[0] == "W": return 0.5
                if x[0] == "VM": return 3 if "store" in x[1] else 1.5
                return 1
            if callable(x): return getattr(x, "wt", 5)
            return 4 if "mfma" in x else 1
        def spread0(p, k0, k1, items):
            n = k1 - k0 + 1; tot = cnt(items); i = 0; used = 0
            for x in items:
                while i < n - 1 and used + cnt(x) / 2 > tot * (i + 1) / n: i += 1
                add(p, k0 + i, [x]); used += cnt(x)
        DEF = []
        def spread(p, k0, k1, items):
            if p < 0 or not o.get("capsp", 1): spread0(p, k0, k1, items)
            else: DEF.append((p, k0, k1, items))
        def room(p, ks):
            q = ks % 4; own = (p == 0) or ks <= 14
            c = 56 - (20 if q == 2 else 0) - (43 if own and q in (1, 3) else 0)
            ex_ = F.get((p, ks), [])
            c += 32 * sum(1 for x in ex_ if isinstance(x, str) and "32x32x16" in x)
            return c - icost(ex_)
        def place(p, k0, k1, items, addf=None, roomf=None):
            addf = addf or (lambda ks, x: add(p, ks, [x])); roomf = roomf or (lambda ks: room(p, ks))
            tot = icost(items); r = [roomf(k) for k in range(k0, k1 + 1)]
            lo, hi = -200.0, 200.0
            for _ in range(30):
                mid = (lo + hi) / 2
                if sum(max(0.0, x + mid) for x in r) > tot: hi = mid
                else: lo = mid
            w = [max(0.0, x + hi) for x in r]; i = 0; used = 0.0; lim = w[0]
            for x in items:
                c = icost(x)
                while i < len(w) - 1 and used + c / 2 > lim: i += 1; lim += w[i]
                addf(k0 + i, x); used += c
        P1 = -1
        a0, b0 = vRSD, vRSD + 4
        RSt = [("W", ["rsd", "stash"], []), S("s_mov_b32 s%d, 0x3f803f80", sT0)]
        for i in range(4):
            for (acc, x, y) in ((T, a0 + i, None), (T + 1, b0 + i, None), (T + 2, a0 + i, a0 + i), (T + 3, b0 + i, b0 + i)):
                RSt.append(S("v_dot2_f32_bf16 v%d, v%d, %s, %s", acc, x, ("s%d" % sT0) if y is None else ("v%d" % y), "0" if i == 0 else "v%d" % acc))
        dpp = lambda n: S("v_add_f32_dpp v%d, v%d, v%d row_ror:%d row_mask:0xf bank_mask:0xf", T, T, T, n)
        RSt += [S("v_and_b32 v%d, 31, v%d", vFT, vL), S("v_lshlrev_b32 v%d, 27, v%d", vRO, vFT), S("v_lshrrev_b32 v%d, 5, v%d", vFT + 1, vL),
                S("v_permlane32_swap_b32 v%d, v%d", T, T + 1), S("v_permlane32_swap_b32 v%d, v%d", T + 2, T + 3),
                S("v_add_f32 v%d, v%d, v%d", T, T, T + 1), S("v_add_f32 v%d, v%d, v%d", T + 2, T + 2, T + 3),
                S("v_lshl_add_u32 v%d, v%d, 3, v%d", vRO, vFT + 1, vRO), S("v_mov_b32 v%d, 0", vRO + 1),
                S("v_permlane16_swap_b32 v%d, v%d", T, T + 2), S("v_add_f32 v%d, v%d, v%d", T, T, T + 2),
                rl(sL, "RSO"), S("s_mov_b32 s%d, 0xffff", sT1), dpp(8), "s_nop 1", dpp(4), rl(sL + 3, "RA"), rl(sL + 4, "ODD"), dpp(2),
                rl(sL + 5, "FXO"), S("v_mov_b32 v%d, 0", vCFF + 1), dpp(1),
                S("v_mov_b32 v%d, v%d", T + 2, T), S("v_mov_b32 v%d, 0", vCFF + 2), S("v_mov_b32 v%d, 0", vCFF + 3), S("v_permlane16_swap_b32 v%d, v%d", T, T + 2),
                S("v_mul_f32 v%d, 0x3b124925, v%d", T + 1, T), S("v_mul_f32 v%d, 0x3b124925, v%d", T + 2, T + 2),
                S("v_fmac_f32 v%d, 0xc3e00000, v%d", T, T + 1), S("v_fmamk_f32 v%d, v%d, 0x3b124925, v%d", T, T, T + 1),
                S("v_fma_f32 v%d, -v%d, v%d, v%d", T + 2, T, T, T + 2), S("v_max_f32 v%d, 0, v%d", T + 2, T + 2),
                S("v_cvt_pk_bf16_f32 v%d, v%d, v%d", T, T, T + 2), S("v_and_b32 v%d, 0xffff0000, v%d", T + 2, T),
                S("v_add_f32 v%d, 0x3727c5ac, v%d", T + 2, T + 2), S("v_cvt_pk_bf16_f32 v%d, v%d, v%d", T + 2, T + 2, T + 2),
                S("v_lshlrev_b32 v%d, 16, v%d", T + 2, T + 2), S("v_sqrt_f32 v%d, v%d", T + 2, T + 2), S("v_mov_b32 v%d, 0", vMF + 1),
                S("v_cvt_pk_bf16_f32 v%d, v%d, v%d", T + 2, T + 2, T + 2), S("v_bfi_b32 v%d, s%d, v%d, v%d", vRD2, sT1, T, T + 2)]
        vL31, vHI = vFT, vFT + 1
        sRSO, sCSTR, sG1STR, sRA, sODD, sFXO = sL, sL + 1, sL + 2, sL + 3, sL + 4, sL + 5
        D = [S("s_lshl_b32 s%d, s%d, 5", sT0, sA), S("v_xor_b32 v%d, s%d, v%d", T, sT0, vSW), S("s_movk_i32 s%d, 3584", sT0),
             S("v_mad_u32_u24 v%d, v%d, s%d, v%d", vG1D, vR8, sG1STR, T), S("v_mad_u32_u24 v%d, v%d, s%d, v%d", vG2D, vR8, sT0, T),
             S("s_lshr_b32 s%d, s%d, 1", sT0, sG1S), S("s_sub_u32 s%d, s%d, 1024", sT0, sT0), S("v_add_u32 v%d, s%d, v%d", vG1D2, sT0, vG1D),
             S("v_add_u32 v%d, %d, v%d", vG2D2, 8 * 3584 - 1024, vG2D),
             S("v_min_u32 v%d, 55, v%d", vDUM + 1, vL), S("v_mul_lo_u32 v%d, s%d, v%d", vDUM + 1, sCSTR, vDUM + 1),
             S("v_mad_u32_u24 v%d, v%d, s%d, v%d", vCD, vR8, sCSTR, vSW),
             S("s_mul_i32 s%d, s%d, 14336", sT0, sA), S("s_add_u32 s%d, s%d, %d", sT0, sT0, (CSL - WR) & 0xffffffff), S("v_add_u32 v%d, s%d, v%d", vCA, sT0, vW1A),
             S("s_lshl_b32 s%d, s%d, 1", sT0, sB), S("s_add_u32 s%d, s%d, s%d", sT1, sT0, sA),
             S("v_xor_b32 v%d, s%d, v%d", T, sT1, vSG), S("v_lshl_add_u32 v%d, v%d, 13, v%d", T + 1, vG, vB),
             S("v_lshl_add_u32 v%d, v%d, 5, v%d", vG2A, T, T + 1), S("v_xor_b32 v%d, 32, v%d", vG2A + 1, vG2A),
             S("s_lshl_b32 s%d, s%d, 1", sT1, sA), S("s_xor_b32 s%d, s%d, s%d", sT1, sT1, sB), S("v_xor_b32 v%d, s%d, v%d", T, sT1, vSG),
             S("s_lshl_b32 s%d, s%d, 13", sT2, sB), S("v_add_u32 v%d, s%d, v%d", T + 1, sT2, vB),
             S("v_lshl_add_u32 v%d, v%d, 5, v%d", T, T, T + 1), S("v_xor_b32 v%d, 64, v%d", T + 1, T),
             S("v_lshlrev_b32 v%d, 9, v%d", T + 2, vHI), S("v_sub_u32 v%d, v%d, v%d", T + 2, vB, T + 2), S("v_lshl_add_u32 v%d, v%d, 5, v%d", T + 2, vSG, T + 2),
             S("v_add_u32 v%d, s%d, v%d", vTA + 4, sXM, T + 2), S("v_xor_b32 v%d, 64, v%d", vTA + 5, vTA + 4), S("v_subrev_u32 v%d, %d, v%d", T + 2, WR, T + 2),
             S("v_add_u32 v%d, s%d, v%d", vTA, sMX, T + 2), S("v_xor_b32 v%d, 64, v%d", vTA + 1, vTA),
             S("v_add_u32 v%d, s%d, v%d", vTA + 2, sM5, T + 2), S("v_xor_b32 v%d, 64, v%d", vTA + 3, vTA + 2),
             [S("s_cmp_eq_u32 s%d, 1", sG1Q), "s_cselect_b64 vcc, -1, 0"],
             S("v_cndmask_b32 v%d, v%d, v%d, vcc", vG1A, vG2A, T), S("v_cndmask_b32 v%d, v%d, v%d, vcc", vG1A + 1, vG2A + 1, T + 1),
             S("v_lshlrev_b32 v%d, 10, v%d", T, vHI), S("v_lshl_add_u32 v%d, v%d, 4, v%d", T, vL31, T),
             S("v_mul_u32_u24 v%d, %d, v%d", T + 1, 57344 - 256, vG), S("v_add_u32 v%d, v%d, v%d", vCO + 1, T, T + 1),
             S("v_cndmask_b32 v%d, v%d, v%d, vcc", vCO, vCO + 1, T),
             S("v_lshlrev_b32 v%d, 3, v%d", vCO + 2, vL31), S("s_lshl_b32 s%d, s%d, 8", sT0, sB), S("v_add_u32 v%d, s%d, v%d", vCO + 2, sT0, vCO + 2), S("v_xor_b32 v%d, 256, v%d", vCO + 3, vCO + 2),
             S("v_lshrrev_b32 v%d, 4, v%d", T, vL), S("v_min_u32 v%d, 2, v%d", T, T), S("v_sub_u32 v%d, s%d, v%d", T, sRA, T), S("v_max_i32 v%d, 0, v%d", T, T),
             S("v_and_b32 v%d, 15, v%d", T + 1, vL), S("v_lshlrev_b32 v%d, 7, v%d", T, T), S("v_lshl_add_u32 v%d, v%d, 3, v%d", vAF, T + 1, T),
             S("v_min_u32 v%d, 11, v%d", T + 1, T + 1), S("v_lshl_add_u32 v%d, v%d, 3, v%d", vVF, T + 1, T), S("v_add_u32 v%d, %d, v%d", vVF, FLV, vVF),
             S("v_lshlrev_b32 v%d, 6, v%d", vKD, vHI), S("v_xor_b32 v%d, v%d, v%d", vKD, vKD, vL16), S("v_xor_b32 v%d, 128, v%d", vKD + 1, vKD),
             S("s_lshl_b32 s%d, s%d, 11", sT0, sW), S("v_add_u32 v%d, s%d, v%d", vKA, sT0, vL16),
             S("v_bfe_u32 v%d, v%d, 4, 1", T, vL), S("v_and_b32 v%d, 3, v%d", T + 1, vL), S("v_lshl_add_u32 v%d, v%d, 2, v%d", T, T, T + 1),
             S("v_add_u32 v%d, s%d, v%d", T, sODD, T), S("v_bfe_u32 v%d, v%d, 1, 2", T + 1, T), S("v_and_b32 v%d, 1, v%d", T, T),
             S("v_bfe_u32 v%d, v%d, 2, 2", T + 3, vL), S("v_xor_b32 v%d, v%d, v%d", T + 4, vHI, T + 1), S("v_lshl_add_u32 v%d, v%d, 2, v%d", T + 3, T + 4, T + 3),
             S("v_lshlrev_b32 v%d, 9, v%d", T + 1, T + 1), S("v_lshl_add_u32 v%d, v%d, 4, v%d", T + 1, T + 3, T + 1), S("v_lshl_add_u32 v%d, v%d, 3, v%d", T + 1, T, T + 1),
             S("s_add_u32 s%d, s%d, %d", sT0, sT0, XR + 24576), S("v_add_u32 v%d, s%d, v%d", vVA, sT0, T + 1), S("v_xor_b32 v%d, 128, v%d", vVA + 1, vVA),
             S("v_lshl_add_u32 v%d, v%d, 4, s%d", vFX, vL31, sFXO),
             S("v_and_b32 v%d, 1, v%d", T, vL), S("v_lshlrev_b32 v%d, 3, v%d", T, T), S("v_bfe_u32 v%d, v%d, 1, 2", T + 1, vL),
             S("v_lshl_add_u32 v%d, v%d, 5, v%d", vFT + 4, T + 1, T), S("v_min_u32 v%d, 2, v%d", T + 2, T + 1), S("v_lshl_add_u32 v%d, v%d, 5, v%d", vFT + 2, T + 2, T),
             S("s_lshl_b32 s%d, s%d, 6", sT0, sW), S("s_sub_u32 s%d, 384, s%d", sT0, sT0), S("v_cmp_eq_u32 vcc, 3, v%d", T + 1), S("v_add_u32 v%d, s%d, v%d", T, sT0, T),
             S("v_mov_b32 v%d, 0", vMF + 3), S("v_cndmask_b32 v%d, v%d, v%d, vcc", vFT + 3, vFT + 4, T),
             S("v_mov_b32 v%d, 0", vMF + 5), S("v_mov_b32 v%d, 0", vMF + 7)]
        spread(P1, 0, 26, [('W', ['stash'], []), rl(sL + 2, 'G1STR'), S('s_lshr_b32 s%d, s%d, 3', sL + 1, sCSS)] + D[:15] + RSt + D[15:])
        nload = ("VM", "buffer_load_dwordx2 %s, v%d, %s, 0 offen sc1" % (vr(vN, 2), vRO + 1, sr(sDBG, 4)), "nonce")
        add(P1, o.get("nonce_ld", 10), [nload])
        add(P1, o.get("nonce_ck", 19), self.spin("nonce", [nload], [S("v_readfirstlane_b32 s%d, v%d", sNON, vN), S("v_readfirstlane_b32 s%d, v%d", sNON + 1, vN + 1),
                     [S("s_min_u32 s%d, s%d, s%d", sSPIN, sNON, sNON + 1)][0].replace("s%d," % sSPIN, "s%d," % sM1, 1), S("s_cmp_lg_u32 s%d, 0", sM1)]) + [S("v_mov_b32 v%d, v%d", vRD2 + 1, vN),
                     ("VM", S("buffer_store_dwordx2 %s, v%d, %s, s%d offen sc1", vr(vRD2, 2), vRO, sr(sWS, 4), sRSO))])
        def cond_cs(items, inv=False):
            def f():
                l = self.lab()
                A("s_bitcmp1_b32 s%d, 2" % sIDX if MAPB == 3 else "s_bitcmp1_b32 s%d, 3" % sPRD); A("s_cbranch_scc%d %s" % (0 if inv else 1, l))
                A.br_begin(); put(items); A.br_alt_end(); A.br_alt_end(); A.br_end()
                A.label(l)
            f.wt = cnt(items) / 2 + 2
            return f
        CK = o.get("cs_dma", 16)
        if o.get("gtouch", 1): add(P1, CK, [cond_cs([("VM", S("buffer_load_dword v%d, v%d, %s, s%d offen%s", vDUM, vDUM + 1, sr(sCS, 4), sCO, " nt" if o.get("csnt") else ""))], True)])
        csd = [S("s_mul_i32 s%d, s%d, 7168", sT3, sW)]
        for i in range(7):
            csd += [S("s_add_u32 m0, s%d, %d", sT3, CSL + i * 1024), S("s_add_u32 s%d, s%d, s%d", sCO, sCO, sCSS) if i else "s_nop 0",
                    ("VM", S("buffer_load_dwordx4 v%d, %s, s%d offen%s lds", vCD, sr(sCS, 4), sCO, " nt" if o.get("csnt") else ""), "csd")]
        add(P1, CK, [cond_cs(csd[:10])]); add(P1, CK + 1, [cond_cs([csd[0]] + csd[10:])])
        vTC = vFT + 6
        if o.get("t_g1", 0) >= 0:
            add(P1, o.get("t_g1", 0), [[("W", ["stash"], []), rl(sM0, "TG1"), rl(sM0 + 1, "G1STR"), S("v_min_u32 v%d, 13, v%d", vTC, vL), "s_nop 0", S("v_mul_lo_u32 v%d, s%d, v%d", vTC + 1, sM0 + 1, vTC),
                                        ("VM", S("buffer_load_dword v%d, v%d, %s, s%d offen", vDUM, vTC + 1, sr(sG1, 4), sM0)),
                                        ]])
        if o.get("t_g2", -1) >= 0:
            add(P1, o.get("t_g2", -1), [[rl(sM0, "TG2"), S("v_min_u32 v%d, 13, v%d", vTC, vL), S("v_mul_u32_u24 v%d, 3584, v%d", vTC, vTC), "s_nop 1",
                                         ("VM", S("buffer_load_dword v%d, v%d, %s, s%d offen", vDUM, vTC, sr(sG2, 4), sM0))]])
        def touch_wd():
            l = self.lab(); l3 = self.lab()
            A("s_cmp_eq_u32 s%d, 3" % sW); A("s_cbranch_scc1 %s" % l)
            A("v_min_u32 v%d, 24, v%d" % (vDUM + 1, vL)); A("v_lshlrev_b32 v%d, 7, v%d" % (vDUM + 1, vDUM + 1))
            A("s_cmp_eq_u32 s%d, 2" % sW); A("s_cbranch_scc1 %s" % l3)
            A("s_lshl_b32 s%d, s2, 1" % sT3); A("s_add_u32 s%d, s%d, s%d" % (sT3, sT3, sW)); A("s_mul_i32 s%d, s%d, 3136" % (sT3, sT3)); A("s_and_b32 s%d, s%d, 0xffffff80" % (sT3, sT3))
            A("buffer_load_dword v%d, v%d, %s, s%d offen" % (vDUM, vDUM + 1, sr(sWD, 4), sT3)); A("s_branch %s" % l)
            A.label(l3)
            A("s_mul_i32 s%d, s2, 1664" % sT3); A("v_min_u32 v%d, 1536, v%d" % (vDUM + 1, vDUM + 1))
            A("buffer_load_dword v%d, v%d, %s, s%d offen" % (vDUM, vDUM + 1, sr(sWO, 4), sT3))
            A.label(l)
        if o.get("pf_wd", 24) >= 0: add(P1, o.get("pf_wd", 24), [touch_wd])

        CSF1 = o.get("csf1", 22)
        if CSF1:
            tmp = [128 + 4 * i for i in range(7)]; vC2 = 156; vU_ = 160
            crd = [("DS", S("ds_read_b64_tr_b16 %s, v%d offset:%d", vr(tmp[s_] + 2 * j, 2), vCA, (16 * s_ + 4 * j) * 128), "csr") for s_ in range(7) for j in range(2)]
            cm = [("W", [], ["csr"])] + [mf16(vC2, vr(vSEL, 4), vr(tmp[s_], 4), "0" if s_ == 0 else None) for s_ in range(7)]
            cst = [rl(sCO, "CST"), S("v_lshrrev_b32 v%d, 5, v%d", vU_, vL), S("v_lshl_add_u32 v%d, v%d, 27, v%d", vU_, vU_, vL16),
                   S("v_mov_b32 v%d, v%d", vU_ + 3, vN)] + self.cfrag(vU_ + 2, vC2, vU_ + 4) + \
                  [("VM", S("buffer_store_dwordx2 %s, v%d, %s, s%d offen sc1", vr(vU_ + 2, 2), vU_, sr(sWS, 4), sCO))]
            add(P1, CSF1, [cond_cs(crd[:7])]); add(P1, CSF1 + 1, [cond_cs(crd[7:])]); add(P1, CSF1 + 2, [cond_cs(cm)]); add(P1, CSF1 + 4, [cond_cs(cst)])
        A.C("FIRST pass")
        if o.get("strip1"):
            for k_ in list(F):
                if k_[0] == P1: F[k_] = [x for x in F[k_] if not (isinstance(x, str) and not "readlane" in x and not "readfirst" in x and (o["strip1"] == 1 or "dot2" in x))]
        NU1 = o.get('nu1', 2)
        for s in range(NU0, NU1): put(dma_x(s) + dma_w1(s))
        A.wait_all_ds()
        A.wait(vm=["x0", "w0"]); A("s_barrier")
        self.stamp(1)
        put(rd_x(0) + rd_w1(0) + rd_x(1) + rd_w1(1))
        pend = [it for s in range(NU1, NUP) for it in dma_x(s) + dma_w1(s)]
        for ks in range(28):
            s, q = divmod(ks, 4); z = "0" if ks == 0 else None
            W = vr(vWF + W1SET[ks], 4)
            if o.get("finep", 0) == -1: self.stamp(32 + ks, True)
            A.wait(ds=["f%d" % ks])
            fill = F.get((P1, ks), []); tot = cnt(fill); g1 = []; g2 = []; u = 0
            for x in fill:
                (g1 if u < tot * 0.6 else g2).append(x); u += cnt(x)
            A(mf32(ACF, W, XF(0, ks), z))
            put(rd_x(ks + 2) if ks < 26 else rd_g(0, 0, 0) if ks == 27 else [])
            A(mf32(ACF + 16, W, XF(1, ks), z))
            put(rd_w1(ks + 2) if ks < 26 else rd_g(0, 0, 1) if ks == 27 else [])
            left = (1 - q) % 4 + 1
            if pend and ks < 26:
                for _ in range(-(-len(pend) // left)): put(pend.pop(0))
            if ks == 27: put(pend.pop(0))
            put(g1)
            if not o.get("nomf16"): A(mf16(vCSF, vr(vSEL, 4), W, z))
            put(g2)
            if q == 1 and s < 6:
                A.wait(vm=["x%d" % (s + 1), "w%d" % (s + 1)] + (["csd"] if CSF1 == ks + 1 else []))
                A("s_barrier")
                assert not pend
                pend = (dma_x(s + NUP) + dma_w1(s + NUP) if s + NUP < 7 else []) + (dma_g(s - 3) if s in (3, 4) else [])
                pend = [x for x in pend if x]
            if ks == 26:
                A.wait(vm=["g0"], ds=["f27"])
                A("s_barrier")
                pend = [x for x in dma_g(2) + dma_g(3) if x]
            if ks == 27: pass
        self.stamp(2)

        self.bar_ds = {}; self.bar_vm = {}
        add(0, 0, [S("v_mov_b32 v%d, v%d", vF0 + i, vFT + 2 + i) for i in range(3)] + [S("v_mul_f32 v%d, 0.5, v%d", T + 2, vCSF)])
        add(0, 1, self.cfrag(vCFF, T + 2, T))
        if not CSF1:
            CSB = o.get("cs_bar", 3)
            if not CSF1: self.bar_vm[(0, CSB)] = ["csd"]
            tmp = [224, 228, 232, 236, 240, 112, 116]
            crd = [("DS", S("ds_read_b64_tr_b16 %s, v%d offset:%d", vr(tmp[s_] + 2 * j, 2), vCA, (16 * s_ + 4 * j) * 128), "csr") for s_ in range(7) for j in range(2)]
            add(0, CSB + 1, [cond_cs(crd[:4]), cond_cs(crd[4:8])]); add(0, CSB + 2, [cond_cs(crd[8:11]), cond_cs(crd[11:])])
            cm = [("W", [], ["csr"])] + [mf16(vCSF, vr(vSEL, 4), vr(tmp[s_], 4), "0" if s_ == 0 else None) for s_ in range(7)]
            add(0, CSB + 3, [cond_cs(cm)])
            cst = [rl(sCO, "CST"), S("v_lshrrev_b32 v%d, 5, v%d", 224, vL), S("v_lshl_add_u32 v%d, v%d, 27, v%d", 224, 224, vL16),
                   S("v_mov_b32 v%d, v%d", 229, vN)] + self.cfrag(228, vCSF, 230) + \
                  [("VM", S("buffer_store_dwordx2 v[228:229], v224, %s, s%d offen sc1", sr(sWS, 4), sCO))]
            add(0, CSB + 5, [cond_cs(cst[:4]), cond_cs(cst[4:])])
            self.bar_ds[(0, 11)] = ["csr"]
        RK = o.get("rs_ld", 3)
        vRL = 232
        add(0, RK - 2, [rl(sL, "RSC")])
        rld = [("VM", S("buffer_load_dwordx2 %s, v%d, %s, s%d offen sc1", vr(vRL + 2 * j, 2), vCO + 2 + j, sr(sWS, 4), sL), "rs") for j in range(2)]
        add(0, RK, rld)
        E0 = o.get("e0_ks", 10)
        rc = self.spin("rs", rld, self.tagcheck([vRL + 1, vRL + 3], T)) + [S("s_mov_b32 s%d, 0x01000100", sT1),
              rl(sT2, "QS")]
        for j in range(2):
            rc += [S("v_xor_b32 v%d, 0x8000, v%d", T, vRL + 2 * j), S("v_and_b32 v%d, 0xffff0000, v%d", T + 1, vRL + 2 * j), S("v_perm_b32 v%d, v%d, v%d, s%d", vMF + 4 * j, T, T, sT1),
                   S("v_rcp_f32 v%d, v%d", vR + j, T + 1), S("v_mov_b32 v%d, v%d", vMF + 4 * j + 2, vMF + 4 * j),
                   S("v_mul_f32 v%d, s%d, v%d", vR + 2 + j, sT2, vR + j)]
        spread(0, E0 - 1, E0 + 1, rc)
        add(0, E0 + 2, [mf32(ACF, vr(vCFF, 4), vr(vMF, 4)), mf32(ACF + 16, vr(vCFF, 4), vr(vMF + 4, 4))])
        spread(0, E0 + 3, E0 + o.get("e0_len", 11), self.qkv_epi(ACF, vR + 2, sSF, vP, "st0") + self.qkv_epi(ACF + 16, vR + 3, sSF + 1, vP + 8, "st0"))
        kss = o.get("kw_ks0", {13: 0, 14: 2, 15: 4, 16: 6, 17: 8, 18: 12, 19: 20, 20: 22, 21: 24, 22: 26, 23: 27})
        for k, ks in kss.items(): add(0, ks, [self.kw_dma(k)])
        cl = [("VM", S("buffer_load_dwordx4 %s, v%d, %s, s%d offen sc1", vr(vCF + 4 * i, 4), vCO + i // 2, sr(sWS, 4), sCSO + i), "cs") for i in range(4)]
        for i in range(4): add(0, o.get("cs_ld", 5) + (i if i < 2 else i + 1), [cl[i]])
        spread(0, o.get("cs_ck", 21), o.get("cs_ck", 21) + 2, self.spin("cs", cl, self.tagcheck([vCF + 1 + 2 * i for i in range(8)], T)))
        add(0, 25, [rl(sL, "FQ"), rl(sL + 1, "FE"), rl(sL + 2, "QO"), rl(sL + 3, "RSQ"), rl(sL + 4, "FB0"), rl(sL + 5, "FH")])
        sFQo, sFE, sQO, sRSQ = sL, sL + 1, sL + 2, sL + 3
        self.sFB0, self.sFH = sL + 4, sL + 5

        FQB = o.get("fq_bar", (0, 27))
        self.bar_vm[FQB] = ["st0"]
        def put_fq():
            l = self.lab()
            A("s_cmp_lg_u32 s%d, 0" % sW); A("s_cbranch_scc1 %s" % l)
            A("buffer_store_dwordx2 %s, v%d, %s, s%d offen sc1" % (vr(vN, 2), vFO, sr(sWS, 4), sFQo))
            A.label(l)
        put_fq.wt = 3; put_fq.cy = 14
        F.setdefault(FQB, []).insert(0, put_fq)
        def ep0(isq):
            E = {}
            def a2(ks, items): E.setdefault(ks, []).extend(items)
            r1 = [mf32(ACA + 32 * t + 16 * j, vr(vCF + 4 * t, 4), vr(vMF + 4 * j, 4)) for t in range(2) for j in range(2)]
            a2(0, r1[:2]); a2(1, r1[2:])
            tl = []
            for t in range(2):
                for j in range(2):
                    if isq: tl += self.qkv_epi(ACA + 32 * t + 16 * j, vR + j, sS0 + 2 * t + j, vP + 8 * j, "ep0")
                    else: tl += self.gu_epi(ACA + 32 * t + 16 * j, sS0 + 2 * t + j, vP + 4 * (2 * t + j), "ep0")
            if o.get("capsp", 1): place(1, 2, 9, tl, lambda ks, x: a2(ks, [x]))
            else:
                n = 8; per = -(-len(tl) // n)
                for i in range(n): a2(2 + i, tl[i * per:(i + 1) * per])
            return E
        add(1, o.get("ep0_flag_ks", 13), [("W", ["ep0"], []), self.flagstore(sFE)])
        dr = o.get("dr", {13: 5, 14: 6, 15: 7, 16: 8, 17: 9, 18: 10, 19: 11, 20: 12, 21: 13, 22: 14, 23: 15, 24: 21, 25: 22, 26: 23, 27: 24, 28: 25})
        NA = o.get('na', 16)
        dr = {k: v for k, v in dr.items() if k < 13 + NA}
        self.xs = {k: i for i, k in enumerate(sorted(dr, key=lambda k_: (dr[k_], k_)))}
        for k in dr: assert self.xs[k] < dr[k]
        if NA == 16: rf = o.get("rf", {k: dr[k - 5] + 1 for k in range(24, 29)}); rf.update(o.get("rf2", {k: dr[24 + k] + 1 for k in range(5)}))
        else: rf = o.get("rf2", {0: 16, 1: 19, 2: 21, 3: 25, 4: 26})
        for k, ks in sorted(dr.items(), key=lambda x: x[1]): add(1, ks, [self.kw_drain(k)])
        xb_ = max(dr[k] for k in range(13, 19)); xb_ = xb_ + (3 - xb_ % 4 if xb_ % 4 != 3 else 4)
        self.bar_ds[(1, xb_)] = ["kr%d" % k for k in range(13, 19)]
        assert xb_ <= o.get("fq_ck", 20) + 2
        for k, ks in rf.items():
            assert ks >= 10
            src = k - 5 if k >= 24 else (24 if NA == 16 else 19) + k
            assert ks > dr[src] and (k < 24 or dr[k] > ks)
            add(1, ks, [[("W", [], ["kr%d" % src])] + self.kw_dma(k)])
        for k, ks in o.get("wk", {5: 17, 6: 18, 7: 20, 8: 27}).items(): add(1, ks, [self.kw_dma(k)])
        add(1, o.get("fq_ld", 16), [self.flagload(vAF, vAT, "fq")])
        FQC = o.get("fq_ck", 20)
        add(1, FQC, self.poll(vAF, vAT, "fq"))
        def kvdma(i, sec, v0_, v1_, tag):
            return [S("s_add_u32 m0, s%d, %d", sKM, XR + (sec - 1) * 24576 + i * 2048), S("s_add_u32 s%d, s%d, %d", sKS0 + i, sKS0 + i, 56 * 512),
                    ("VM", S("buffer_load_dwordx4 v%d, %s, s%d offen sc1 lds", v0_, sr(sWS, 4), sKS0 + i), tag),
                    ("VM", S("buffer_load_dwordx4 v%d, %s, s%d offen offset:1024 sc1 lds", v1_, sr(sWS, 4), sKS0 + i), tag)]
        for i in range(3): add(1, FQC + 2 + i, [kvdma(i, 1, vL16, vL16, "kq")])
        add(1, FQC + 1, [S("v_and_b32 v%d, 31, v%d", vS2, vL), S("v_lshlrev_b32 v%d, 3, v%d", vS2, vS2)]
            + [("VM", S("buffer_load_dwordx4 %s, v%d, %s, s%d offen offset:%d sc1", vr(vQ + 4 * i, 4), vL16, sr(sWS, 4), sQO, 1024 * i), "kq") for i in range(2)]
            + [("VM", S("buffer_load_dword v%d, v%d, %s, s%d offen sc1", vS2, vS2, sr(sWS, 4), sRSQ), "kq")])
        self.vdma = lambda i: kvdma(i, 2, vKD, vKD + 1, "vv")
        add(1, o.get("fv_ld", 25), [self.flagload(vVF, vVT, "fv")])
        add(1, o.get("fh0_ld", 25), [self.flagload(vF0, vAT, "fh0", "s%d" % self.sFB0)])
        M = [S("v_lshrrev_b32 v%d, 5, v%d", T + 2, vL), S("v_and_b32 v%d, 31, v%d", T, vL),
             S("v_lshlrev_b32 v%d, 2, v%d", T + 2, T + 2), S("v_sub_u32 v%d, v%d, v%d", T, T, T + 2), S("v_mov_b32 v%d, 0xf149f2ca", T + 1)]
        cp = [sr(sM0, 2), sr(sM1, 2), sr(sS0, 2)]
        aj = lambda j: (j & 3) + 8 * (j >> 2)
        M += [S("v_cmp_gt_i32 %s, %d, v%d", cp[j % 3], aj(j), T) for j in range(2)]
        for j in range(16):
            if j + 2 < 16: M.append(S("v_cmp_gt_i32 %s, %d, v%d", cp[(j + 2) % 3], aj(j + 2), T))
            M.append(S("v_cndmask_b32 v%d, 0, v%d, %s", vMB + j, T + 1, cp[j % 3]))
            M.append(S("v_sub_f32 v%d, v%d, v%d", vMA + j, T + 1, vMB + j))
        M += [rl(sM0 + 1, "ME"), rl(sM1, "MO"), S("s_mov_b32 s%d, 0", sM0), S("s_mov_b32 s%d, 0", sM1 + 1),
              rl(sL, "KF0"), rl(sL + 1, "KF1"), rl(sL + 2, "KF2"), S("v_mov_b32 v%d, 0x3f803f80", T)]
        spread(1, o.get('m0', 10), o.get('m1', 25), M[:-8]); add(1, 26, M[-8:-4]); add(1, 27, M[-4:])

        def g2_step(p, ks, fill):
            nonlocal pend
            s, q = divmod(ks, 4); g = p * 7 + s; z = "0" if ks == 0 else None
            acc = ACA if p == 0 else ACB
            W0 = vr(vWF + (ks % 2) * 8, 4); W1 = vr(vWF + (ks % 2) * 8 + 4, 4)
            last = (p == 1 and ks == 27)
            r1 = "r%d_%d_1" % (p, ks)
            if p == o.get("finep", 0): self.stamp(32 + ks, True)
            bar = (q == 2 and not (p == 1 and s == 6))
            A.wait(ds=["r%d_%d_%d" % (p, ks, 1 if o.get("onew", 1) else 0)])
            nx = (p, ks + 1) if ks < 27 else (p + 1, 0)
            willp = bool(pend and pend[0])
            base = [8, 4, (24 - 43) if willp else 24, -100 if bar else 20]
            tot = icost([x for x in fill if not (isinstance(x, str) and "32x32x16" in x)]); lo_, hi_ = -50.0, 300.0
            for _ in range(30):
                mid = (lo_ + hi_) / 2
                if sum(max(0.0, x + mid) for x in base) > tot: hi_ = mid
                else: lo_ = mid
            cap = [max(0.0, x + hi_) for x in base]
            gaps = [[] for _ in range(4)]; gi = 0; used = 0.0; lim = cap[0]
            for x in fill:
                c = 0 if (isinstance(x, str) and "32x32x16" in x) else icost(x)
                while gi < (2 if bar else 3) and used + c / 2 > lim: gi += 1; lim += cap[gi]
                gaps[gi].append(x); used += c
            A(mf32(acc, W0, XF(0, ks), z))
            if not last: put(rd_g(nx[0], nx[1], 0))
            put(gaps[0])
            A(mf32(acc + 16, W0, XF(1, ks), z))
            if not last: put(rd_g(nx[0], nx[1], 1))
            put(gaps[1])
            A.wait(ds=[r1])
            A(mf32(acc + 32, W1, XF(0, ks), z))
            if pend: put(pend.pop(0))
            put(gaps[2])
            A(mf32(acc + 48, W1, XF(1, ks), z))
            put(gaps[3])
            if bar:
                if o.get("finep") == 5: self.stamp(32 + 2 * g, True)
                A.wait(vm=["g%d" % (g + 1)] + self.bar_vm.get((p, ks + 1), []), ds=["r%d_%d_1" % nx] + self.bar_ds.get((p, ks + 1), []))
                if o.get("finep") == 6: self.stamp(32 + 2 * g, True)
                A("s_barrier")
                if o.get("finep") in (5, 6): self.stamp(33 + 2 * g, True)
                assert not any(pend)
                pend = dma_g(g + 4) if g + 4 < 14 else []
        for d in DEF: place(*d)
        if o.get("verbose"): print("room:", {k: int(room(*k)) for k in sorted(F) if k[0] >= 0})
        if o.get("verbose"): print("fill counts:", {k: cnt(v) for k, v in sorted(F.items())})
        if o.get("strip"):
            def flt(x):
                if isinstance(x, list): return [y for y in (flt(z) for z in x) if y is not None]
                if isinstance(x, str) and x.startswith("v_") and "mfma" not in x and "readlane" not in x: return None
                return x
            for k_ in list(F):
                if k_[0] >= 0: F[k_] = flt(F[k_])
            ep0_ = ep0
            ep0 = lambda isq: {k_: flt(v_) for k_, v_ in ep0_(isq).items()}
        A.C("G2 pass 0")
        for ks in range(28): g2_step(0, ks, F.get((0, ks), []))
        self.stamp(4)
        A.C("G2 pass 1")
        lq = self.lab("LQ"); lj = self.lab("LJ")
        NV = 10
        A.br_begin()
        A("s_cmp_eq_u32 s%d, 1" % sG1Q); A("s_cbranch_scc1 %s" % lq)
        pend0 = list(pend)
        for isq in (0, 1):
            if isq: A.label(lq)
            pend = list(pend0)
            E = ep0(isq)
            for ks in range(NV): g2_step(1, ks, E.get(ks, []) + F.get((1, ks), []))
            if not isq: A("s_branch %s" % lj)
            A.br_alt_end()
        A.br_end(); A.label(lj)
        self.stamp(5)
        for ks in range(NV, 28): g2_step(1, ks, F.get((1, ks), []))
        self.stamp(6)
        self.tail()
        A.label("L_END")
        A("s_endpgm")
        for f in self.ool: f()

    def tail(self):
        A = self.A; o = self.o; put = self.put; mf32 = self.mf32; T = vT
        sFB0, sFH = self.sFB0, self.sFH; rl = self.rl
        KP = [192, 196, 200, 204, 44, 48, 52, 56, 60, 64, 68, 72, 76, 80, 84, 88, 28, 32]
        vS = [160, 176]; vO = 208; vV = 224; vPP = 240; vM = 22; vU = 23; vWK = 112
        A.C("ep1")
        fs = lambda i: self.stamp(32 + i, True) if o.get("finep") == 7 else None
        r1 = [mf32(ACB + 32 * t + 16 * j, vr(vCF + 8 + 4 * t, 4), vr(vMF + 4 * j, 4)) for t in range(2) for j in range(2)]
        fs(0)
        A(r1[0])
        A("v_mov_b32 v%d, 0xf14a" % vM)
        A.wait(vm=["kq"])
        fs(1)
        for i in range(3):
            A("v_mov_b32 v%d, s%d" % (T + 1, sL + i))
            A.DS("ds_write_b64 v%d, %s offset:%d" % (vFX, vr(T, 2), XR + i * 2048), "kfix")
            A(r1[1 + i])
        qz = ["v_cndmask_b32 v%d, v%d, 0, %s" % (vQ + 6, vQ + 6, sr(sM0, 2)), "v_cndmask_b32 v%d, v%d, 0, %s" % (vQ + 0, vQ + 0, sr(sM1, 2))]
        put(qz)
        A("v_cndmask_b32 v%d, v%d, v%d, %s" % (vQ + 7, vQ + 7, vM, sr(sM0, 2))); A("v_cndmask_b32 v%d, v%d, v%d, %s" % (vQ + 1, vQ + 1, vM, sr(sM1, 2)))
        put(self.poll(vVF, vVT, "fv"))
        A.wait(ds=["kfix"]); A("s_barrier")
        fs(2)
        ORD = [8, 7, 6, 5, 4, 3, 2, 1, 0]
        def rdk(t): return [("DS", "ds_read_b128 %s, v%d offset:%d" % (vr(KP[2 * t + i], 4), vKA, XR + t * 2048 + 1024 * i), "k%d" % t) for i in range(2)]
        def rdv(n):
            d = vV + 8 * (n % 2)
            return [("DS", "ds_read_b64_tr_b16 %s, v%d offset:%d" % (vr(d + 4 * s + 2 * j, 2), vVA + j, ORD[n] * 2048 + s * 256), "v%d" % n) for s in range(2) for j in range(2)]
        def qk(t, buf):
            c = vr(vMA, 16) if t == 0 else vr(vMB, 16) if t == 8 else "0"
            return [mf32(buf, vr(KP[2 * t], 4), vr(vQ, 4), c), mf32(buf, vr(KP[2 * t + 1], 4), vr(vQ + 4, 4))]
        def mx(first, buf):
            return [("v_max_f32 v%d, v%d, v%d" % (vM, buf, buf + 1)) if (first and i == 0) else
                    ("v_max3_f32 v%d, v%d, v%d, v%d" % (vM, buf + 2 * i, buf + 2 * i + 1, vM)) for i in range(8)]
        setm = ["v_mov_b32 v%d, v%d" % (vU, vM), "s_nop 1", "v_permlane32_swap_b32 v%d, v%d" % (vM, vU), "v_max_f32 v%d, v%d, v%d" % (vM, vM, vU),
                "v_cvt_pk_bf16_f32 v%d, -v%d, -v%d" % (vU, vM, vM), "v_lshlrev_b32 v%d, 16, v%d" % (vU, vU), "v_add_f32 v%d, v%d, v%d" % (vM, vM, vU),
                "v_cvt_pk_bf16_f32 v%d, v%d, -v%d" % (vU, vU, vM),
                "v_cndmask_b32 v%d, v%d, v%d, %s" % (vQ + 0, vQ + 0, vU, sr(sM1, 2)), "v_cndmask_b32 v%d, v%d, v%d, %s" % (vQ + 6, vQ + 6, vU, sr(sM0, 2))]
        ee = [self.gu_epi(ACB + 16 * i, sS1 + i, vP + 4 * i, "ep1") for i in range(4)]
        put(rdk(8)); put(rdk(7))
        for i in range(3): put(self.vdma(i))
        put(ee[0])
        fs(3)
        A.wait(ds=["k8"]); put(qk(8, vS[1]))
        put(ee[1]); put(ee[2][:6])
        fs(4)
        put(mx(True, vS[1])); put(setm)
        put(ee[2][6:8])
        fs(5)
        put(qk(8, vS[0]))
        put(ee[2][8:]); put(ee[3])
        put(self.poll(vF0, vAT, "fh0", "s%d" % sFB0))
        A("v_and_b32 v%d, 0xffff0000, v%d" % (vS2, vS2)); A("v_mul_f32 v%d, v%d, v%d" % (vS2, vS2, vS2))
        fs(6)
        self.stamp(9)
        X = {}
        def ax(t, it): X.setdefault(t, []).append(it)
        for i in range(12): ax(i * 8 // 12, self.act(i))
        X.setdefault(o.get("h1_t", 2), []).insert(0, [("W", ["ep1"], []), self.flagstore(sFH)])
        ax(1, [S("s_add_u32 s%d, s%d, %d", sFB0, sFB0, FLH1 - FLH0), rl(sL, "OST"), rl(sL + 1, "FO"), rl(sL + 2, "FB2")])
        ax(o.get("fh1_ld", 8), self.flagload(vF1, vAT, "fh1", "s%d" % sFB0))
        for i in range(4): ax([0, 2, 4, 5][i], self.kw_dma(9 + i))
        H1T = o.get("fh1_t", 7); H1K = o.get("fh1_k", 3)
        if H1K < 0:
            ax(H1T, self.poll(vF1, vAT, "fh1", "s%d" % sFB0))
            for i in range(4): ax(H1T + i // 2 if H1T < 8 else 8, self.act(12 + i))
        inreg = lambda k: 13 <= k < 13 + o.get('na', 16)
        def WK(k, T_):
            if inreg(k): return self.XF(T_, self.xs[k])
            return vr(vWK + (k % 2) * 8 + 4 * T_, 4)
        def rdw(k): return self.kw_read(k, lambda T_, j: vr(vWK + (k % 2) * 8 + 4 * T_ + 2 * j, 2))
        ax(8, [("W", ["kw0"], [])] + rdw(0))
        PPB = [vPP, vPP + 8, 36]
        def passB(X, kread):
            def pvm(n): return [mf32(vO, vr(vV + 8 * (n % 2), 4), vr(PPB[n % 3], 4), "0" if n == 0 else None), mf32(vO, vr(vV + 8 * (n % 2) + 4, 4), vr(PPB[n % 3] + 4, 4))]
            for n in range(10):
                buf = vS[n % 2]; pp = PPB[n % 3]
                mm = qk(ORD[n + 1], vS[(n + 1) % 2]) if n + 1 < 9 else []
                pv = pvm(n - 1) if n >= 3 else []
                if o.get("finep") == 2 and kread: self.stamp(32 + n, True)
                A.wait(ds=(["v%d" % (n - 1)] if pv else []) + (["k%d" % ORD[n + 1]] if mm and kread else []))
                if n == 9:
                    put(pv); break
                if pv: A(pv[0])
                for i in range(4): A("v_exp_f32 v%d, v%d" % (buf + i, buf + i))
                if mm: A(mm[0])
                if kread and n + 2 < 9: put(rdk(ORD[n + 2]))
                for i in range(4, 8): A("v_exp_f32 v%d, v%d" % (buf + i, buf + i))
                if pv: A(pv[1])
                if n == 2: A.wait(ds=["v1"]); p0 = pvm(0) + pvm(1); A(p0[0])
                for i in range(4): A("v_cvt_pk_bf16_f32 v%d, v%d, v%d" % (pp + i, buf + 2 * i, buf + 2 * i + 1))
                if n >= 3: put(rdv(n))
                if mm: A(mm[1])
                for i in range(8, 16):
                    A("v_exp_f32 v%d, v%d" % (buf + i, buf + i))
                    if n == 2 and i in (10, 13): A(p0[1 if i == 10 else 2])
                    if n == 2 and i == 11: put(rdv(2)[:2])
                    if n == 2 and i == 14: put(rdv(2)[2:])
                put(X.get(n, []))
                if n == 2: A(p0[3])
                for i in range(4, 8): A("v_cvt_pk_bf16_f32 v%d, v%d, v%d" % (pp + i, buf + 2 * i, buf + 2 * i + 1))
                if n == 1:
                    if kread:
                        A("v_mov_b32 v%d, 0x3f803f80" % vWK); A("v_mov_b32 v%d, 0x3f803f80" % (vWK + 1))
                        A.wait(vm=["vv"])
                        for i in range(3): A.DS("ds_write_b64 v%d, %s offset:%d" % (vFX, vr(vWK, 2), XR + 24576 + i * 2048), "vfix")
                        A.wait(ds=["vfix"]); A("s_barrier")
                    put(rdv(0)); put(rdv(1))
        passB(X, True)
        lfb = self.lab("FB"); lok = self.lab("FOK")
        A("s_mov_b32 s%d, 0x4b800000" % sT0)
        A("v_cmp_nlt_f32 vcc, v%d, s%d" % (vO + 12, sT0) if False else "v_cmp_ngt_f32 vcc, s%d, v%d" % (sT0, vO + 12))
        A("s_nop 0")
        A("s_cmp_lg_u32 vcc_hi, 0")
        A("s_cbranch_scc1 %s" % lfb)
        A.label(lok)
        def fallback():
            st_ = A._state()
            A.label(lfb)
            A.wait_all_ds()
            put(qz); A("s_nop 1")
            for t in range(9):
                put(qk(t, vS[0])); A("s_nop 11"); put(mx(t == 0, vS[0]))
            put(setm); A("s_nop 1")
            put(qk(ORD[0], vS[0])); A("s_nop 11")
            fp = o.pop("finep", None)
            passB({}, False)
            if fp is not None: o["finep"] = fp
            A("s_nop 11"); A("s_branch %s" % lok)
        self.ool.append(fallback)
        sFO = sL + 1; sFB2 = sL + 2
        OE = [S("s_mov_b32 s%d, 0", sM0), S("s_mov_b32 s%d, -1", sM0 + 1), S("v_mov_b32 v%d, v%d", vM, vO + 12), S("v_mov_b32 v%d, v%d", vU, vO + 12),
              "s_nop 1", S("v_permlane32_swap_b32 v%d, v%d", vM, vU), S("v_rcp_f32 v%d, v%d", vM, vU), "s_nop 0", S("v_mul_f32 v%d, v%d, v%d", vM, vM, vS2),
              S("v_cndmask_b32 v%d, v%d, 0, %s", vU, vM, sr(sM0, 2))]
        for hh in range(2):
            OE += [S("v_mul_f32 v%d, v%d, v%d", vO + i, vM if i < 12 else vU, vO + i) for i in range(8 * hh, 8 * hh + 8)]
            OE += [S("v_cvt_pk_bf16_f32 v%d, v%d, v%d", vPP + i, vO + 2 * i, vO + 2 * i + 1) for i in range(4 * hh, 4 * hh + 4)]
            OE.append(("VM", "buffer_store_dwordx4 %s, v%d, %s, s%d offen offset:%d sc1" % (vr(vPP + 4 * hh, 4), vL16, sr(sWS, 4), sL, 1024 * hh), "ost"))
        self.stamp(10)
        A.C("K2")
        lk = self.lab()
        A("s_cmp_lt_u32 s%d, 28" % sIDX)
        A("s_cbranch_scc1 %s" % lk)
        A.br_begin(); put(OE); A.br_alt_end(); A.br_alt_end(); A.br_end()
        A("s_waitcnt vmcnt(0)")
        A("buffer_store_dwordx2 %s, v%d, %s, s%d offen sc1" % (vr(vN, 2), vFO, sr(sWS, 4), sFO))
        self.stamp_flush()
        A("s_branch L_END")
        A.label(lk)
        ACC = 128
        FOK = o.get("fo_k", 20); FOC = o.get("fo_c", 24); OFK = o.get("oflag_k", 7)
        asch = {k: [16 + k] for k in range(12)}
        if H1K >= 0:
            asch = {}; na = 12
            for k in range(H1K, 30):
                n = 0
                while na < 28 and n < (2 if na <= k + 10 else 1): asch.setdefault(k, []).append(na); na += 1; n += 1
        for i in range(8): asch.setdefault(FOC + i // 2, []).append(28 + i)
        wsch = o.get('wsch', {1: 29, 2: 30, 17: 31, 19: 32, 20: 33, 22: 34, 23: 35} if o.get('na', 16) == 16 else {1: 24, 2: 25, 9: 26, 11: 27, 13: 28, 14: 29, 15: 30, 16: 31, 17: 32, 18: 33, 19: 34, 20: 35})
        vXL, vOO, vT3, vR2 = 24, 32, 34, 44
        KL = o.get("kl", 32)
        pool = [64 + 4 * i for i in range(10)] + [112, 116]
        LW = {kk: [pool[kk - KL], pool[6 + kk - KL]] for kk in range(KL, 36)}
        def lastw(kk, T_):
            return [("DS", x[1], "lw%d_%d" % (kk, T_)) for x in self.kw_read(kk, lambda T2, j: vr(LW[kk][T2] + 2 * j, 2))[2 * T_:2 * T_ + 2]]
        for k in range(36):
            z = "0" if k == 0 else None
            nxt = k < 35 and not inreg(k + 1)
            if k < KL: A.wait(vm=["ka%d" % k] + (["kw%d" % (k + 1)] if nxt else []), ds=["kr%d" % k])
            r = rdw(k + 1) if nxt else []
            ex = []
            if k < 2: ex += OE[:23] if k == 0 else OE[23:]
            if k == H1K: ex += self.poll(vF1, vAT, "fh1", "s%d" % sFB0)
            for w_ in ([wsch[k]] if isinstance(wsch.get(k), int) else wsch.get(k, [])): ex.append(self.kw_dma(w_))
            if k == OFK: ex.append([("W", ["ost"], []), self.flagstore(sFO)])
            if k == FOK: ex.append(self.flagload(vF2, vVT, "fo", "s%d" % sFB2))
            if k == FOC: ex.append(self.poll(vF2, vVT, "fo", "s%d" % sFB2))
            for a_ in asch.get(k, []): ex.append(self.act(a_))
            if k == 13: ex.append("s_load_dwordx2 s[%d:%d], s[0:1], 56" % (sOUT, sOUT + 1))
            if k == 18: ex.append([A.wait_all_ds, S("s_and_b32 s%d, s%d, 0xffff", sOUT + 1, sOUT + 1), S("s_mov_b32 s%d, 1835008", sOUT + 2), S("s_mov_b32 s%d, 0x20000", sOUT + 3)])
            if k == 19:
                ex.append([S("v_lshrrev_b32 v%d, 3, v%d", vT3, vL), S("v_mul_u32_u24 v%d, 896, v%d", vT3 + 2, vT3), S("v_and_b32 v%d, 7, v%d", vT3 + 1, vL),
                           S("v_lshl_add_u32 v%d, v%d, 4, v%d", vOO, vT3 + 1, vT3 + 2), S("v_add_u32 v%d, %d, v%d", vOO + 1, 32 * 896, vOO), S("v_lshlrev_b32 v%d, 3, v%d", 46, vT3),
                           rl(sXO, "XO2"), rl(sM1, "RSK")])
            if k == 21:
                ex.append([("VM", S("buffer_load_dwordx4 %s, v%d, %s, s%d offen", vr(vXL + 4 * j, 4), vOO + j, sr(sX, 4), sXO), "xl") for j in range(2)]
                          + [("VM", S("buffer_load_dword v%d, v%d, %s, s%d offen offset:%d sc1", vR2 + j, 46, sr(sWS, 4), sM1, 256 * j), "xl") for j in range(2)])
            if k == 20:
                ex.append([S("v_bfe_u32 v%d, v%d, 4, 1", vT3, vL), S("v_and_b32 v%d, 15, v%d", vT3 + 1, vL), S("v_lshlrev_b32 v%d, 14, v%d", vT3, vT3),
                           S("v_lshl_add_u32 v%d, v%d, 8, v%d", vT3, vT3 + 1, vT3), S("v_add_u32 v%d, s%d, v%d", vT3, sXM, vT3), S("v_add_u32 v%d, %d, v%d", vT3, WR, vT3),
                           S("v_lshrrev_b32 v%d, 5, v%d", vT3 + 1, vL), S("v_and_b32 v%d, 7, v%d", vT3 + 2, vL), S("v_xor_b32 v%d, v%d, v%d", vT3 + 1, vT3 + 1, vT3 + 2)])
            if k == 22:
                ex.append(sum([[S("v_xor_b32 v%d, %d, v%d", vT3 + 3, 2 * i, vT3 + 1), S("v_lshl_add_u32 v%d, v%d, 4, v%d", vT3 + 6 + i, vT3 + 3, vT3)] for i in range(4)], []))
            if k == 23:
                ex.append([S("v_lshrrev_b32 v%d, 3, v%d", vT3, vL), S("v_lshlrev_b32 v%d, 1, v%d", vT3 + 1, vT3 + 2), S("v_xor_b32 v%d, v%d, v%d", vT3 + 1, vT3 + 1, vT3),
                           S("s_lshl_b32 s%d, s%d, 14", sT0, sA), S("s_lshl_b32 s%d, s%d, 11", sT1, sB), S("s_add_u32 s%d, s%d, s%d", sT0, sT0, sT1), S("s_add_u32 s%d, s%d, %d", sT0, sT0, WR),
                           S("v_lshlrev_b32 v%d, 8, v%d", vT3, vT3), S("v_lshl_add_u32 v%d, v%d, 4, v%d", vT3, vT3 + 1, vT3),
                           S("v_add_u32 v%d, s%d, v%d", vT3 + 4, sT0, vT3), S("v_xor_b32 v%d, 16, v%d", vT3 + 5, vT3 + 4)])
            if k == 26:
                ex.append([("W", ["xl"], [])] + [S("v_and_b32 v%d, 0xffff0000, v%d", vR2 + j, vR2 + j) for j in range(2)] + [S("v_mul_f32 v%d, v%d, v%d", vR2 + j, vR2 + j, vR2 + j) for j in range(2)]
                          + [S("v_rcp_f32 v%d, v%d", vR2 + j, vR2 + j) for j in range(2)])
            if k in (27, 28):
                j = k - 27
                ex.append(sum([[S("v_lshlrev_b32 v%d, 16, v%d", 48 + 8 * j + 2 * i, vXL + 4 * j + i), S("v_and_b32 v%d, 0xffff0000, v%d", 49 + 8 * j + 2 * i, vXL + 4 * j + i)] for i in range(4)], []))
            h = (len(ex) + 1) // 2
            if o.get("finep") == 3 and k < 28: self.stamp(32 + k, True)
            if o.get("finep") == 4 and k >= 8: self.stamp(32 + k - 8, True)
            if k == KL:
                wr = lambda T_, j: [("DS", "ds_write_b128 v%d, %s offset:%d" % (vT3 + 6 + i, vr(ACC + 32 * T_ + 16 * j + 4 * i, 4), j * 32768 + T_ * 128), "rw") for i in range(4)]
                ks_ = list(range(KL, 36)); n_ = len(ks_)
                w1r = [x for kk in ks_ for x in lastw(kk, 1)]
                for ti, (T_, j) in enumerate(((0, 0), (0, 1), (1, 0), (1, 1))):
                    wq = wr(*((0, 0), (0, 1), (1, 0))[ti - 1]) if ti else []
                    for i, kk in enumerate(ks_):
                        A.wait(vm=["ka%d" % kk], ds=["lw%d_%d" % (kk, T_)])
                        A(mf32(ACC + 32 * T_ + 16 * j, vr(LW[kk][T_], 4), self.AF(kk, j)))
                        if ti == 0: put(w1r[2 * i:2 * i + 2])
                        elif i >= n_ - 4: put(wq.pop(0))
                    put(wq)
                put(wr(1, 1))
                break
            if k == KL - 1: r = []; ex += [("W", ["kw35"], [])] + [x for kk in range(KL, 36) for x in lastw(kk, 0)]
            def isdma(x): return isinstance(x, list) and any(isinstance(y, str) and y.startswith("s_add_u32 m0") for y in x)
            fl = []
            for x in ex:
                if isinstance(x, list) and not isdma(x) and not any(isinstance(y, str) and "cbranch" in y for y in x): fl += x
                else: fl.append(x)
            def c_(x):
                if isinstance(x, list): return sum(c_(y) for y in x)
                if isinstance(x, tuple): return {"VM": 16, "DS": 8, "W": 4, "L": 0}[x[0]]
                return 5
            cap = [8, 8, 24, 20] if r else [24, 24, 24, 20]
            if k == 0: cap = [0, 0.01, 24, 20]
            tot = c_(fl); sc = max(1.0, tot / sum(cap)); gp = [[] for _ in range(4)]; gi = 0; used = 0.0; lim = cap[0] * sc
            for x in fl:
                while gi < 3 and used + c_(x) / 2 > lim: gi += 1; lim += cap[gi] * sc
                gp[gi].append(x); used += c_(x)
            A(mf32(ACC, WK(k, 0), self.AF(k, 0), z)); put(r[:2]); put(gp[0])
            A(mf32(ACC + 16, WK(k, 0), self.AF(k, 1), z)); put(r[2:]); put(gp[1])
            A(mf32(ACC + 32, WK(k, 1), self.AF(k, 0), z)); put(gp[2])
            A(mf32(ACC + 48, WK(k, 1), self.AF(k, 1), z)); put(gp[3])
            if k in (0, 6, 12, 18, 24, 30): self.stamp(16 + k // 6)
        self.stamp(12)
        A.C("reduce")
        A.wait(ds=["rw"]); A("s_barrier")
        self.stamp(11)
        vRD = 192
        for j in range(2):
            for w in range(4):
                for e in range(2):
                    A.DS("ds_read_b128 %s, v%d offset:%d" % (vr(vRD + j * 32 + w * 8 + e * 4, 4), vT3 + 4 + e, w * 4096 + j * 32768), "rr%d_%d" % (j, w))
        for j in range(2):
            b = vRD + j * 32; xb = 48 + 8 * j
            for w in range(1, 4):
                A.wait(ds=["rr%d_%d" % (j, w)])
                for i in range(0, 8, 2): A("v_pk_add_f32 %s, %s, %s" % (vr(b + i, 2), vr(b + i, 2), vr(b + 8 * w + i, 2)))
            for i in range(0, 8, 2): A("v_pk_fma_f32 %s, %s, %s, %s op_sel:[0,%d,0] op_sel_hi:[1,%d,1]" % (vr(xb + i, 2), vr(b + i, 2), vr(vR2, 2), vr(xb + i, 2), j, j))
            for i in range(4): A("v_cvt_pk_bf16_f32 v%d, v%d, v%d" % (b + i, xb + 2 * i, xb + 2 * i + 1))
            A.VM("buffer_store_dwordx4 %s, v%d, %s, s%d offen%s" % (vr(b, 4), vOO + j, sr(sOUT, 4), sXO, o.get("outfl", " sc1")))
        self.stamp(13); self.stamp_flush()

def generate(opts):
    global ROTK, ZDUM, MAPB
    MAPB = opts.get('mapb', 3)
    ZDUM = opts.get('zdum', 1)
    ROTK = opts.get('rotk', 0)
    g = G(opts); g.build()
    body, npad = pad_hazards(g.A.L, verbose=opts.get("verbose"))
    head = open("parallel_sum__sliding_block__glu_gated_bilinear__prompt.s.ref").read().split("; Override launch")[0]
    txt = head + "; @launch grid=(256,1,1) block=(256,1,1) lds=%d\n" % LDS_BYTES
    txt += '.amdgcn_target "amdgcn-amd-amdhsa--gfx950"\n.text\n.globl %s\n.p2align 8\n.type %s,@function\n%s:\n' % (KN, KN, KN)
    txt += "\n".join(("  " + l) if not l.endswith(":") else l for l in body) + "\n"
    txt += ".p2align 8\n.type L_TABLE,@object\nL_TABLE:\n" + "".join(".long " + ",".join(str(v) for v in r) + "\n" for r in table())
    txt += """.section .rodata,"a"
.p2align 6
.amdhsa_kernel %s
  .amdhsa_next_free_vgpr 512
  .amdhsa_next_free_sgpr 102
  .amdhsa_accum_offset 256
  .amdhsa_group_segment_fixed_size 0
  .amdhsa_kernarg_size 80
  .amdhsa_user_sgpr_count 2
  .amdhsa_user_sgpr_kernarg_segment_ptr 1
  .amdhsa_system_sgpr_workgroup_id_x 1
.end_amdhsa_kernel
""" % KN
    return txt, npad

if __name__ == "__main__":
    opts = {}
    out = "k8.s"
    for a in sys.argv[1:]:
        if "=" in a:
            k, v = a.split("=", 1); opts[k] = eval(v)
        else: out = a
    txt, npad = generate(opts)
    open(out, "w").write(txt)
    print("written", out, "lines", txt.count("\n"), "pad states", npad)
```

```python
import sys
from asmlib import Asm, pad_hazards

KN = "parallel_sum__sliding_block__glu_gated_bilinear__prompt_kernel"
FLQ, FLV, FLH0, FLH1, FLO = 0, 2048, 4096, 12288, 20480
RS = 32768
CSR = 65536
QKV = 0x40000
ACT = QKV + 64 * 168 * 512
WS_BYTES = ACT + 64 * 144 * 1024
STAMP = WS_BYTES
XR = 0
CSL = 65536
R5 = 49152
WR = 98304
LDS_BYTES = 163840
SPIN_MAX = 200000

def vr(a, n=1): return "v%d" % a if n == 1 else "v[%d:%d]" % (a, a + n - 1)
def ar(a, n=1): return "a%d" % a if n == 1 else "a[%d:%d]" % (a, a + n - 1)
def sr(a, n=1): return "s%d" % a if n == 1 else "s[%d:%d]" % (a, a + n - 1)

sW, sA, sB, sIDX, sSPIN = 3, 4, 5, 6, 7
sX, sWQKV, sG1, sG2, sWS, sWD, sWO, sOUT, sDBG = 8, 12, 16, 20, 24, 28, 32, 36, 40
sCS = 36
TB = 44
sG1O, sG2O, sG1S, sG1S3, sSF, sS0, sS1, sCO, sCSS, sCSO, sWB0, sWB1, sWB2, sAB0, sAB1, sAB2, sKS0, sMX, sM5, sKM = \
    [TB + i for i in (0, 1, 2, 3, 4, 6, 10, 14, 15, 16, 20, 21, 22, 23, 24, 25, 26, 29, 30, 31)]
sG1ST, sG1R, sG2R, sKWB = TB + 20, TB + 21, TB + 22, TB + 23
sPRD = 99
sT0, sT1, sT2, sT3 = 76, 77, 78, 79
sNON, sXO, sWO1, sXM, sWM, sG1Q, sACT, sM0, sM1 = 80, 82, 83, 84, 85, 86, 87, 88, 90
sL = 92
sXCD, sRB, sCG, sRT0 = 92, 93, 94, 95
STASH = ["FE", "FH", "FQ", "FO", "CST", "RSO", "RSC", "QO", "RSQ", "OST", "XO2", "RSK", "FB0", "FB2", "KF0", "KF1", "KF2", "RA", "ME", "MO", "ODD", "FXO", "QS", "G1STR"] + ["KW%d" % i for i in range(11)] + ["KA%d" % i for i in range(11)] + ["TG1", "TG2", "TW1"]
ROW = 81

ROTK = 1
ZDUM = 1
MAPB = 3
def table():
    rows = []
    for wg in range(256):
        xcd, idx = wg & 7, wg >> 3
        nb = MAPB; rb = ((xcd & ((1 << (4 - nb)) - 1)) << nb) + (idx & ((1 << nb) - 1)); cg = ((xcd >> (4 - nb)) << (5 - nb)) + (idx >> nb)
        isq = 12 <= cg <= 14
        gu0 = 2 * cg if cg < 12 else 27; gu1 = 2 * cg + 1 if cg < 12 else 12 + cg
        h = 2 * xcd + (idx & 1); ra = idx >> 1; odd = h & 1
        i2 = min(idx, 27); r64 = 4 * xcd + i2 // 7; cb = i2 % 7
        for w in range(4):
            a, b = w >> 1, w & 1
            rt = [4 * rb + (w ^ j) for j in range(2)]
            st1 = 2688 if isq else 3584
            ud = min(2 * cg - 8 + a, 20); uc = min(2 * cg - 8 + b, 20)
            tt = 2 * b + a
            t = {}
            t[0] = (ud if isq else gu0) * 128 + 32 * b * st1
            t[1] = gu1 * 128 + 32 * b * 3584
            t[2] = 16 * st1; t[3] = 48 * st1
            for j in range(2):
                t[4 + j] = QKV + rt[j] * 86016 + (2 * cg + b) * 2048
                for tl in range(2):
                    t[6 + 2 * tl + j] = (QKV + rt[j] * 86016 + (2 * uc + (a ^ tl)) * 2048) if isq else (ACT + rt[j] * 147456 + ((4 * gu0 + tt) ^ tl) * 1024)
                    if ZDUM and (cg == 15 or (cg == 14 and b == 1)): t[6 + 2 * tl + j] = 0x40000000
                    t[10 + 2 * tl + j] = ACT + rt[j] * 147456 + ((4 * gu1 + tt) ^ tl) * 1024
            line, ps = idx & 1, (idx >> 1) & 1
            half = ((xcd ^ (idx >> 2)) & 1) if MAPB == 3 else ((rb >> 2) ^ (rb >> 3)) & 1
            cq = isq and ps == 0
            if cq: cu = min(2 * cg - 8 + line, 20); col = cu * 128; unit = cu + 40; cstr = 2688
            else: g_ = gu0 if ps == 0 else gu1; col = g_ * 128; unit = g_ + 28 * line; cstr = 3584
            t[14] = col + (4 * half + w) * 56 * cstr; t[15] = 8 * cstr
            for tl in range(2):
                t[16 + tl] = CSR + ((uc + 40) * 2048 + (a ^ tl) * 512 if isq else gu0 * 2048 + (tt ^ tl) * 256)
                t[18 + tl] = CSR + gu1 * 2048 + (tt ^ tl) * 256
            ab = ACT + r64 * 2 * 147456
            rr = (i2 // 7 + cb) if ROTK else 0
            E_ = [6 * w + 2 * ((i + rr) % 3) for i in range(3)]
            L_ = [[6 * w + 1, 6 * w + 3, 6 * w + 5, 24 + w][(i + rr) % 4] for i in range(4)]
            O_ = [4 * w + (i + rr) % 4 for i in range(4)]
            kwb = [g_ * 64 * 896 + cb * 128 for g_ in E_ + L_] + [hh * 28 * 896 + cb * 128 for hh in O_]
            kab = [ab + g_ * 4096 for g_ in E_ + L_] + [ab + (112 + 2 * hh) * 1024 for hh in O_]
            t[20] = 64 * st1; t[21] = t[22] = t[23] = t[24] = t[25] = 0
            c0 = (7 * h) >> 1; kt = 4 * ra - 8 + 3 * w; qt = 4 * ra + w
            for i in range(3): t[26 + i] = QKV + max(kt + i, 0) * 86016 + c0 * 512
            t[29] = w * 12288; t[30] = R5 + w * 10240; t[31] = w * 6144
            fb = ((r64 >> 1) * 64 + 2 * (r64 & 1)) * 8
            s = dict(FE=(FLV + (rb * 16 + (cg - 12) * 4 + w) * 8) if isq else (FLH0 + ((rb * 16 + cg) * 4 + w) * 8), FH=FLH1 + ((rb * 16 + cg) * 4 + w) * 8,
                     FQ=FLQ + (rb * 16 + cg) * 8, FO=FLO + ((ra * 16 + h) * 4 + w) * 8,
                     CST=CSR + unit * 2048 + half * 1024 + b * 512 + a * 8, RSO=RS + (128 * rb + 8 * cg + 2 * w) * 8, RSC=RS + (rt[0] & ~1) * 256,
                     QO=QKV + qt * 86016 + c0 * 512, RSQ=RS + qt * 256, OST=ACT + (qt * 144 + 112 + 2 * h) * 1024,
                     XO2=(64 * r64 + 8 * w) * 896 + cb * 128, RSK=RS + (64 * r64 + 8 * w) * 8, FB0=FLH0 + fb + w * 96, FB2=FLO + fb + w * 128,
                     KF0=0x3f80 if kt < 0 else 0, KF1=0x3f80 if kt + 1 < 0 else 0, KF2=0x3f80 if kt + 2 < 0 else 0, RA=ra,
                     ME=0 if odd else 0xffffffff, MO=0xffffffff if odd else 0, ODD=odd, FXO=(0 if odd else 3 * 512 + 8) + w * 6144, QS=0x3e8b98d6 if cg < 7 else 0x3f800000, G1STR=st1)
            s['TG1'] = (ud if isq else gu0) * 128 + (28 * rb + 14 * b) * st1; s['TG2'] = gu1 * 128 + (28 * rb + 14 * b) * 3584; s['TW1'] = cg * 128 + (192 + 16 * rb + 4 * w) * 2688
            for i in range(11): s['KW%d' % i] = kwb[i]; s['KA%d' % i] = kab[i]
            rows.append([t[i] for i in range(32)] + [s[k] for k in STASH])
    return rows

vL, vL16 = 1, 2
vWD, vN, vFO, vG2D, vAO1, vST = 4, 6, 8, 9, 10, 11
vG1D2, vG2D2 = 90, 91
vXA, vW1A, vG1D = 12, 20, 21
vF0, vF1, vF2, vAT, vVT = 12, 13, 14, 16, 18
vS2 = 21
vG1A, vG2A, vAF, vVF, vSEL, vWF = 22, 24, 26, 27, 28, 32
vCSF, vMF, vCF, vCFF, vR, vT = 48, 52, 60, 76, 80, 84
vKA, vVA, vFX = 92, 93, 95
vQ, vTA, vKD, vP = 96, 104, 110, 112
vXD, vW1D = 112, 116
ACA, ACB, ACF = 128, 192, 192
vFT, vRSD, vDUM, vCO, vRO, vRD2, vCD, vCA = 224, 232, 252, 244, 248, 250, 254, 255
vMA, vMB = 128, 144
vXA2 = 176

def S(fmt, *a): return fmt % a

def icost(x):
    if isinstance(x, list): return sum(icost(y) for y in x)
    if isinstance(x, tuple):
        if x[0] == "L": return 0
        if x[0] == "W": return 4
        if x[0] == "VM": return 24 if "store" in x[1] else 16
        return 8
    if callable(x): return getattr(x, "cy", 24)
    if "mfma" in x: return 8
    if x.startswith(("v_permlane", "v_exp", "v_rcp", "v_sqrt")): return 8
    import re
    lit = any(abs(int(m_, 0)) > 64 for m_ in re.findall(r"(?<![\w\[:])(-?0x[0-9a-fA-F]+|-?\d+)(?![\w\]:.])", x.split(None, 1)[1] if " " in x else ""))
    four = x.startswith(("v_mul_f32", "v_mov_b32", "v_sub_f32", "v_add_f32", "v_and_b32", "v_xor_b32", "v_lshlrev", "v_lshrrev", "v_add_u32", "v_min_u32", "s_"))
    return 4 if four and not lit else 5.3

class G:
    def __init__(self, opts):
        self.o = opts; self.A = Asm(); self.nlab = 0; self.ool = []
    def lab(self, p="L"):
        self.nlab += 1; return "%s%d" % (p, self.nlab)
    def srd(self, d, ptr, size):
        A = self.A
        A("s_mov_b32 s%d, s%d" % (d, ptr)); A("s_and_b32 s%d, s%d, 0xffff" % (d + 1, ptr + 1))
        A("s_mov_b32 s%d, %d" % (d + 2, size)); A("s_mov_b32 s%d, 0x20000" % (d + 3))
    def stamp(self, i, light=False):
        if not self.o.get("stamps"): return
        if self.o.get("stamps") == 2 and i not in (0, 2, 6, 10, 12, 13): return
        if self.o.get("stamps") == 3 and i < 32 and i not in (0, 1, 2, 4, 6, 10, 13): return
        if i >= 32 and self.o.get("stamps") != 3: return
        A = self.A
        A("s_memtime s[100:101]"); A.wait_all_ds()
        A("v_writelane_b32 v0, s100, %d" % i)
        if not light:
            A("s_memrealtime s[100:101]"); A.wait_all_ds()
            A("v_writelane_b32 v3, s100, %d" % i)
    def stamp_flush(self):
        if not self.o.get("stamps"): return
        A = self.A
        A("s_lshl_b32 s100, s2, 2"); A("s_add_u32 s100, s100, s%d" % sW); A("s_lshl_b32 s100, s100, 9")
        A("s_add_u32 s100, s100, %d" % STAMP)
        A("v_lshlrev_b32 v2, 2, v%d" % vL)
        A("buffer_store_dword v0, v2, s[%d:%d], s100 offen" % (sWS, sWS + 3))
        A("buffer_store_dword v3, v2, s[%d:%d], s100 offen offset:256" % (sWS, sWS + 3))
    def spinlog(self, name):
        if not self.o.get("stamps"): return
        i = 24 + ["fq", "fv", "fh0", "fh1", "fo", "rs", "cs", "nonce"].index(name)
        self.A("v_writelane_b32 v0, s%d, %d" % (sSPIN, i))
    def put(self, x):
        A = self.A
        if callable(x): x()
        elif isinstance(x, list):
            for y in x: self.put(y)
        elif isinstance(x, tuple):
            if x[0] == "VM":
                tg = x[2] if len(x) > 2 else None
                import re as _re
                if self.o.get("dropvm") and _re.search(self.o["dropvm"], str(tg)): A.tag(tg)
                elif self.o.get("timevm") and _re.search(self.o["timevm"], str(tg)) and getattr(self, "ntv", 0) < 14:
                    n_ = getattr(self, "ntv", 0); self.ntv = n_ + 1
                    self.stamp(32 + 2 * n_, True); A.VM(x[1], tg); self.stamp(33 + 2 * n_, True)
                else: A.VM(x[1], tg)
            elif x[0] == "DS": A.DS(x[1], x[2] if len(x) > 2 else None)
            elif x[0] == "W": A.wait(vm=x[1], ds=x[2])
            elif x[0] == "L": A.label(x[1])
        else: A(x)
    def rl(self, dst, name): return "v_readlane_b32 s%d, v%d, %d" % (dst, vST, STASH.index(name))
    def flagload(self, voff, vt, tag, soff="0"):
        return ("VM", "buffer_load_dwordx2 %s, v%d, %s, %s offen sc1" % (vr(vt, 2), voff, sr(sWS, 4), soff), tag)
    def flagstore(self, soff):
        return ("VM", "buffer_store_dwordx2 %s, v%d, %s, s%d offen sc1" % (vr(vN, 2), vFO, sr(sWS, 4), soff))
    def spin(self, name, loads, check):
        ok = self.lab("OK"); sp = self.lab("SPIN")
        def slow():
            A = self.A
            A.label(sp)
            A("s_mov_b32 s%d, 0" % sSPIN)
            lp = sp + "L"; A.label(lp)
            A("s_sleep %d" % self.o.get("slp", 4))
            for l in loads: A(l[1])
            A("s_add_u32 s%d, s%d, 1" % (sSPIN, sSPIN))
            A("s_cmp_ge_u32 s%d, %d" % (sSPIN, self.o.get("spinmax", SPIN_MAX)))
            A("s_waitcnt vmcnt(0)")
            A("s_cbranch_scc1 %sX" % sp)
            for c in check: A(c); A("s_nop 1")
            A("s_cbranch_scc0 %s" % lp)
            A.label(sp + "X")
            self.spinlog(name)
            A("s_nop 4")
            A("s_branch %s" % ok)
        self.ool.append(slow)
        return [("W", [name], [])] + check[:-1] + [[check[-1], "s_cbranch_scc0 %s" % sp, ("L", ok)]]
    def poll(self, voff, vt, name, soff="0"):
        return self.spin(name, [self.flagload(voff, vt, name, soff)],
                         ["v_cmp_eq_u64 vcc, %s, %s" % (sr(sNON, 2), vr(vt, 2)), "s_cmp_eq_u64 vcc, exec"])
    def tagcheck(self, regs, t):
        o = []
        for i, r in enumerate(regs):
            if i == 0: o.append("v_xor_b32 v%d, s%d, v%d" % (t, sNON, r))
            else: o.append("v_bitop3_b32 v%d, v%d, s%d, v%d bitop3:0xbe" % (t, r, sNON, t))
        return o + ["v_cmp_eq_u32 vcc, 0, v%d" % t, "s_cmp_eq_u64 vcc, exec"]

    def XF(self, j, ks): return ar((j * 28 + ks) * 4, 4)
    def mf32(self, d, a_, b_, c=None): return "v_mfma_f32_32x32x16_bf16 %s, %s, %s, %s" % (vr(d, 16), a_, b_, c if c is not None else vr(d, 16))
    def mf16(self, d, a_, b_, c=None): return "v_mfma_f32_16x16x32_bf16 %s, %s, %s, %s" % (vr(d, 4), a_, b_, c if c is not None else vr(d, 4))
    def cfrag(self, dst, c, t):
        return ["v_cvt_pk_bf16_f32 v%d, v%d, v%d" % (t, c, c), "v_lshlrev_b32 v%d, 16, v%d" % (t, t),
                "v_sub_f32 v%d, v%d, v%d" % (t + 1, c, t), "v_cvt_pk_bf16_f32 v%d, v%d, v%d" % (dst, t, t + 1)]
    def qkv_epi(self, acc, vscale, soff, pk, tag):
        o = []
        for h in range(2):
            for i in range(8): o.append("v_mul_f32 v%d, v%d, v%d" % (acc + 8 * h + i, vscale, acc + 8 * h + i))
            for i in range(4): o.append("v_cvt_pk_bf16_f32 v%d, v%d, v%d" % (pk + 4 * h + i, acc + 8 * h + 2 * i, acc + 8 * h + 2 * i + 1))
        st = lambda h: ("VM", "buffer_store_dwordx4 %s, v%d, %s, s%d offen offset:%d sc1" % (vr(pk + 4 * h, 4), vL16, sr(sWS, 4), soff, 1024 * h), tag)
        sw = lambda r: "v_permlane32_swap_b32 v%d, v%d" % (r, r + 2)
        o += [sw(pk), sw(pk + 1), sw(pk + 4), st(0), sw(pk + 5), st(1)]
        return o
    def gu_epi(self, acc, soff, pk, tag):
        o = []
        for i in range(8): o.append("v_mul_f32 v%d, v%d, v%d" % (acc + i, acc + i, acc + 8 + i))
        for i in range(4): o.append("v_cvt_pk_bf16_f32 v%d, v%d, v%d" % (pk + i, acc + 2 * i, acc + 2 * i + 1))
        o.append(("VM", "buffer_store_dwordx4 %s, v%d, %s, s%d offen sc1" % (vr(pk, 4), vL16, sr(sWS, 4), soff), tag))
        return o

    def kw_loc(self, k):
        NA = self.o.get("na", 16)
        if 13 <= k <= 18: return ("X", k - 13)
        if 19 <= k < 13 + NA: return ("5", (k - 19) % 5)
        if k <= 4: return ("5", k)
        if k <= 12: return ("W", k - 5)
        return self.kw_loc(k - 13 - NA)
    def kw_off(self, k):
        r, i = self.kw_loc(k)
        if r == "W": return [2, 3, 0, 1][i // 2] * 16384 + (i % 2) * 2048
        return i * 2048
    def kw_dma(self, k):
        r, i = self.kw_loc(k)
        sm = {"X": sMX, "5": sM5, "W": sXM, "K": sKM}[r]
        grp, rows = (k // 4, 16 * (k % 4)) if k < 28 else (7 + (k - 28) // 2, 16 * (k % 2))
        srd_ = sWD if k < 28 else sWO
        if k in self.o.get("skipkw", []): return [lambda: self.A.tag("kw%d" % k)]
        def pre():
            if getattr(self, "kwg", None) != grp: self.A(self.rl(sKWB, "KW%d" % grp)); self.kwg = grp
        pre.wt = 0.5; pre.cy = 2
        return [pre, "s_add_u32 m0, s%d, %d" % (sm, self.kw_off(k) + (WR if r == "W" else 0)), "s_add_u32 s%d, s%d, %d" % (sT3, sKWB, rows * 896),
                ("VM", "buffer_load_dwordx4 v%d, %s, s%d offen lds" % (vWD, sr(srd_, 4), sT3), "kw%d" % k),
                ("VM", "buffer_load_dwordx4 v%d, %s, s%d offen offset:1024 lds" % (vWD + 1, sr(srd_, 4), sT3), "kw%d" % k)]
    def kw_read(self, k, dst):
        r, i = self.kw_loc(k); va = vTA + {"X": 0, "5": 2, "W": 4, "K": 0}[r]
        return [("DS", "ds_read_b64_tr_b16 %s, v%d offset:%d" % (dst(T, j), va + T, self.kw_off(k) + j * 1024), "kr%d" % k) for T in range(2) for j in range(2)]
    def kw_drain(self, k):
        x = self.xs[k]
        return [("W", ["kw%d" % k], [])] + self.kw_read(k, lambda T, j: ar((T * 28 + x) * 4 + 2 * j, 2))
    def AF(self, k, j):
        if k < 12: return self.XF(j, 16 + k)
        if k < 16: return ar(224 + (k - 12) * 8 + 4 * j, 4)
        if k < 26: return vr(24 + (k - 16) * 8 + 4 * j, 4)
        if k < 34: return vr(192 + (k - 26) * 8 + 4 * j, 4)
        return self.XF(j, 16 + k - 34)
    def act(self, k):
        o = []
        grp, i = (k // 4, k % 4) if k < 28 else (7 + (k - 28) // 2, k % 2)
        if i == 0: o += [self.rl(sT2, "KA%d" % grp), "s_nop 0", "s_mov_b32 s%d, s%d" % (sACT, sT2)]
        for j in range(2):
            o.append(("VM", "buffer_load_dwordx4 %s, v%d, %s, s%d offen offset:%d sc1" % (self.AF(k, j), vAO1 if j else vL16, sr(sWS, 4), sACT, i * 1024), "ka%d" % k))
        return o

    def build(self):
        A = self.A; o = self.o; put = self.put; rl = self.rl
        XF, mf32, mf16 = self.XF, self.mf32, self.mf16
        T = vT
        if o.get("stamps"): A("s_memrealtime s[98:99]")
        A("s_cmp_ge_u32 s2, 256"); A("s_cbranch_scc1 L_END")
        A("s_load_dwordx2 s[%d:%d], s[0:1], 0" % (sX, sX + 1)); A("s_load_dwordx2 s[%d:%d], s[0:1], 8" % (sWQKV, sWQKV + 1))
        A("v_lshrrev_b32 v3, 6, v0"); A("v_and_b32 v%d, 63, v0" % vL)
        A("v_readfirstlane_b32 s%d, v3" % sW)
        A("v_lshlrev_b32 v%d, 4, v%d" % (vL16, vL))
        A("s_and_b32 s%d, s2, 7" % sXCD); A("s_lshr_b32 s%d, s2, 3" % sIDX)
        A("s_getpc_b64 s[96:97]"); A.label("L_PFBASE")
        A("s_lshl_b32 s%d, s2, 2" % sT0); A("s_add_u32 s%d, s%d, s%d" % (sT0, sT0, sW)); A("s_mul_i32 s%d, s%d, %d" % (sT0, sT0, ROW * 4))
        A("s_add_u32 s%d, s%d, L_TABLE-L_PFBASE" % (sT0, sT0))
        A("s_add_u32 s%d, s96, s%d" % (sNON, sT0)); A("s_addc_u32 s%d, s97, 0" % (sNON + 1))
        A("v_min_u32 v%d, %d, v%d" % (vST, len(STASH) - 1, vL)); A("v_lshlrev_b32 v%d, 2, v%d" % (vST, vST))
        if o.get("early", 1):
            A.VM("global_load_dword v%d, v%d, s[%d:%d]" % (vDUM, vST, sNON, sNON + 1))
        A.VM("global_load_dword v%d, v%d, s[%d:%d] offset:128" % (vST, vST, sNON, sNON + 1), "stash")
        if o.get("codepf", 1):
            A("s_and_b32 s%d, s%d, 3" % (sT0, sIDX)); A("s_cmp_eq_u32 s%d, s%d" % (sT0, sW))
            l2 = self.lab(); A("s_cbranch_scc0 %s" % l2)
            A("s_lshl_b32 s%d, s%d, 13" % (sT0, sT0))
            A("v_lshlrev_b32 v%d, 7, v%d" % (T + 6, vL)); A("v_add_u32 v%d, s%d, v%d" % (T + 6, sT0, T + 6))
            A("v_min_u32 v%d, L_CEND-L_PFBASE, v%d" % (T + 6, T + 6))
            A("global_load_dword v%d, v%d, s[96:97]" % (vDUM, T + 6))
            A.label(l2)
        if o.get("padtest") == 1:
            for i in range(256): A("s_mov_b32 s98, 0x12345678")
        if o.get("padtest") == 2:
            A("s_mov_b32 s99, 0"); A.label("L_PADL")
            for i in range(31): A("s_mov_b32 s98, 0x12345678")
            A("s_add_u32 s99, s99, 1"); A("s_cmp_lt_u32 s99, 8"); A("s_cbranch_scc1 L_PADL")
        nb = MAPB
        A("s_and_b32 s%d, s%d, %d" % (sT0, sXCD, (1 << (4 - nb)) - 1)); A("s_lshl_b32 s%d, s%d, %d" % (sT0, sT0, nb)); A("s_and_b32 s%d, s%d, %d" % (sT1, sIDX, (1 << nb) - 1)); A("s_add_u32 s%d, s%d, s%d" % (sRB, sT0, sT1))
        A("s_lshr_b32 s%d, s%d, %d" % (sT0, sXCD, 4 - nb)); A("s_lshl_b32 s%d, s%d, %d" % (sT0, sT0, 5 - nb)); A("s_lshr_b32 s%d, s%d, %d" % (sT1, sIDX, nb)); A("s_add_u32 s%d, s%d, s%d" % (sCG, sT0, sT1))
        if nb != 3: A("s_mov_b32 s%d, s%d" % (sPRD, sRB))
        vR8, vSW = vCD, vCA
        A("v_lshrrev_b32 v%d, 3, v%d" % (vR8, vL)); A("v_lshrrev_b32 v%d, 4, v%d" % (T + 1, vL)); A("v_and_b32 v%d, 7, v%d" % (T + 2, vL))
        A("v_xor_b32 v%d, v%d, v%d" % (T + 3, T + 2, T + 1))
        A("v_mul_u32_u24 v%d, 896, v%d" % (T + 4, vR8))
        A("v_lshl_add_u32 v%d, v%d, 4, v%d" % (vXD, T + 3, T + 4))
        A("v_xor_b32 v%d, 64, v%d" % (vXD + 1, vXD))
        A("v_add_u32 v%d, %d, v%d" % (vXD + 3, 24 * 896 - 3072, vXD + 1))
        A("v_add_u32 v%d, %d, v%d" % (vXD + 1, 8 * 896 - 1024, vXD + 1))
        A("v_add_u32 v%d, %d, v%d" % (vXD + 2, 16 * 896 - 2048, vXD))
        A("s_lshl_b32 s%d, s%d, 2" % (sRT0, sRB)); A("s_add_u32 s%d, s%d, s%d" % (sRT0, sRT0, sW)); A("s_mul_i32 s%d, s%d, %d" % (sXO, sRT0, 32 * 896))
        A("s_lshl_b32 s%d, s%d, 12" % (sXM, sW))
        A("v_and_b32 v%d, 1, v%d" % (vSW, T + 1)); A("v_lshlrev_b32 v%d, 2, v%d" % (vSW, vSW)); A("v_xor_b32 v%d, v%d, v%d" % (vSW, vSW, T + 2))
        A("v_lshlrev_b32 v%d, 4, v%d" % (vSW, vSW))
        A("s_movk_i32 s%d, 2688" % sT2)
        A("v_mad_u32_u24 v%d, v%d, s%d, v%d" % (vW1D, vR8, sT2, vSW))
        A("v_add_u32 v%d, %d, v%d" % (vW1D + 1, 8 * 2688 - 1024, vW1D))
        A("v_add_u32 v%d, v%d, v%d" % (vWD, T + 4, vSW)); A("v_add_u32 v%d, %d, v%d" % (vWD + 1, 8 * 896 - 1024, vWD))
        A("s_mul_i32 s%d, s%d, %d" % (sWO1, sW, 16 * 2688)); A("s_lshl_b32 s%d, s%d, 7" % (sT0, sCG)); A("s_add_u32 s%d, s%d, s%d" % (sWO1, sWO1, sT0))
        A("s_lshl_b32 s%d, s%d, 11" % (sWM, sW)); A("s_add_u32 s%d, s%d, %d" % (sWM, sWM, WR))
        A("s_lshl_b32 s%d, s%d, 4" % (sT3, sRB)); A("s_add_u32 s%d, s%d, s%d" % (sT3, sT3, sCG)); A("s_lshl_b32 s%d, s%d, 2" % (sT3, sT3)); A("s_add_u32 s%d, s%d, s%d" % (sT3, sT3, sW))
        A("s_mul_i32 s%d, s%d, 1792" % (sM0, sT3))
        A("v_cmp_gt_u32 vcc, 56, v%d" % vL); A("v_mov_b32 v%d, 0x10000000" % (T + 5))
        A("s_lshr_b32 s%d, s%d, 1" % (sA, sW)); A("s_and_b32 s%d, s%d, 1" % (sB, sW))
        A("v_cndmask_b32 v%d, v%d, v%d, vcc" % (T + 5, T + 5, vL16))
        TLB = o.get("tlb", 9)
        if TLB >= 8:
            A("s_and_b32 s%d, s%d, 7" % (sT0, sIDX)); A("s_cmp_ge_u32 s%d, 3" % sT0); A("s_addc_u32 s%d, s%d, 0" % (sT1, sT0)); A("s_lshl_b32 s%d, s%d, 3" % (sT1, sT1))
            A("s_add_u32 s%d, s%d, 1" % (sT2, sW)); A("s_bitcmp0_b32 s%d, 1" % sT2); A("s_cselect_b32 s%d, 72, s%d" % (sT1, sT1))
            A("s_load_dwordx2 s[96:97], s[0:1], s%d" % sT1)
            A("s_mov_b32 s%d, 1605628" % sT2)
            for i, n_ in ((0, 1835008), (6, 1835008), (1, 1204224), (2, 401408), (7, 4)):
                A("s_cmp_eq_u32 s%d, %d" % (sT0, i)); A("s_cselect_b32 s%d, %d, s%d" % (sT2, n_ - 4, sT2))
            A("s_lshl_b32 s%d, s%d, 21" % (sT0, sT0))
            A("s_cmp_eq_u32 s%d, 0" % sW); A("s_cselect_b32 s%d, s%d, s%d" % (sT2, sT0, sT2))
            A("s_cmp_eq_u32 s%d, 1" % sW); A("s_cselect_b32 s%d, 0, s%d" % (sT2, sT2))
            A("s_cmp_eq_u32 s%d, 3" % sW); A("s_cselect_b32 s%d, %d, s%d" % (sT2, WS_BYTES - 128, sT2))
            A("v_mov_b32 v%d, s%d" % (vFT + 3, sT2))
        def sz(d, n): A("s_mov_b32 s%d, %d" % (d + 2, n)); A("s_mov_b32 s%d, 0x20000" % (d + 3))
        sz(sX, 1835008); sz(sWQKV, 1204224); sz(sWS, WS_BYTES + (1 << 20)); sz(sDBG, 256); sz(sWO, 401408); sz(sG2, 1605632)
        A("s_mov_b32 s%d, 0x20000" % (sG1 + 3)); A("s_mov_b32 s%d, 0x20000" % (sCS + 3))
        A("s_sub_u32 s%d, s%d, 12" % (sT0, sCG)); A("s_cmp_lt_u32 s%d, 3" % sT0); A("s_cselect_b32 s%d, 1, 0" % sG1Q); A("s_cselect_b32 s%d, s%d, s%d" % (sG1 + 2, sWQKV + 2, sG2 + 2))
        A("s_lshl_b32 s%d, s%d, 1" % (sT0, sCG)); A("s_add_u32 s%d, s%d, s%d" % (sT0, sT0, sA)); A("s_cmp_ge_u32 s%d, 29" % sT0); A("s_cselect_b32 s%d, 0, s%d" % (sG1 + 2, sG1 + 2))
        A("s_mul_i32 s%d, s%d, %d" % (sM1, sRT0, 6 * 2688)); A("s_lshl_b32 s%d, s%d, 7" % (sT1, sCG)); A("s_add_u32 s%d, s%d, s%d" % (sM1, sM1, sT1)); A("s_add_u32 s%d, s%d, %d" % (sM1, sM1, 64 * 2688))
        A("v_min_u32 v%d, 5, v%d" % (vFT, vL)); A("v_mul_u32_u24 v%d, 2688, v%d" % (vFT, vFT))
        A("v_lshlrev_b32 v%d, 28, v%d" % (vFO, vL))
        A("v_and_b32 v%d, 31, v%d" % (T, vL)); A("v_lshrrev_b32 v%d, 5, v%d" % (T + 1, vL))
        A("v_bfe_u32 v%d, v%d, 1, 3" % (T + 2, vL)); A("v_xor_b32 v%d, v%d, v%d" % (T + 2, T + 2, T + 1))
        A("v_lshlrev_b32 v%d, 7, v%d" % (T + 3, T)); A("v_add_u32 v%d, s%d, v%d" % (T + 3, sXM, T + 3))
        for s in range(4):
            A("v_xor_b32 v%d, %d, v%d" % (T + 4, 2 * s, T + 2))
            A("v_lshl_add_u32 v%d, v%d, 4, v%d" % (vXA + s, T + 4, T + 3))
            A("v_xor_b32 v%d, 4096, v%d" % (vXA + 4 + s, vXA + s))
        vB, vSG, vG = vG1A, vG1A + 1, vAF
        A("v_bfe_u32 v%d, v%d, 2, 2" % (T + 2, vL))
        A("v_lshl_add_u32 v%d, v%d, 3, v%d" % (T + 3, T + 1, T + 2))
        A("v_and_b32 v%d, 3, v%d" % (T + 4, vL)); A("v_lshlrev_b32 v%d, 3, v%d" % (T + 4, T + 4))
        A("v_lshl_add_u32 v%d, v%d, 7, v%d" % (T + 3, T + 3, T + 4))
        A("v_add_u32 v%d, %d, v%d" % (vB, WR, T + 3))
        A("v_and_b32 v%d, 2, v%d" % (T + 2, T + 2)); A("v_bfe_u32 v%d, v%d, 4, 1" % (vG, vL)); A("v_xor_b32 v%d, v%d, v%d" % (vSG, T + 2, vG))
        A("s_lshl_b32 s%d, s%d, 1" % (sT0, sB)); A("v_xor_b32 v%d, s%d, v%d" % (vFT + 1, sT0, vSG))
        A("v_lshl_add_u32 v%d, v%d, 5, v%d" % (vW1A, vFT + 1, vB))
        A("v_lshrrev_b32 v%d, 2, v%d" % (vFT + 1, vL)); A("v_xor_b32 v%d, v%d, v%d" % (vFT + 1, vFT + 1, vG)); A("v_and_b32 v%d, 1, v%d" % (vFT + 1, vFT + 1))
        A("v_and_or_b32 v%d, v%d, 3, v%d" % (vFT + 1, vL, vFT + 1))
        A("v_cmp_eq_u32 vcc, 0, v%d" % (vFT + 1)); A("v_mov_b32 v%d, 0x3f803f80" % (vFT + 2))
        A("v_add_u32 v%d, 147456, v%d" % (vAO1, vL16))
        for i in range(4): A("v_cndmask_b32 v%d, 0, v%d, vcc" % (vSEL + i, vFT + 2))

        A("s_waitcnt lgkmcnt(0)")
        if o.get("stamps"): A("v_mov_b32 v%d, s98" % vCO); A("s_memrealtime s[100:101]"); A("s_waitcnt lgkmcnt(0)"); A("v_mov_b32 v%d, s100" % (vCO + 1))
        def dma_x(s):
            out = []
            for h in range(2):
                it = ["s_add_u32 m0, s%d, %d" % (sXM, XR + (s % 4) * 16384), ("s_add_u32 s%d, s%d, 128" % (sXO, sXO)) if (s > 0 and h == 0) else "s_nop 0"]
                for i in (2 * h, 2 * h + 1):
                    it.append(("VM", "buffer_load_dwordx4 v%d, %s, s%d offen offset:%d%s lds" % (vXD + i, sr(sX, 4), sXO, 1024 * i, " nt" if s < o.get("ntx", 0) else ""), "x%d" % s))
                out.append(it)
            return out
        def dma_w1(s):
            return [["s_add_u32 m0, s%d, %d" % (sWM, s * 8192), ("s_add_u32 s%d, s%d, %d" % (sWO1, sWO1, 64 * 2688)) if s > 0 else "s_nop 0",
                     ("VM", "buffer_load_dwordx4 v%d, %s, s%d offen%s lds" % (vW1D, sr(sWQKV, 4), sWO1, " nt" if s < o.get("ntw", 0) else ""), "w%d" % s),
                     ("VM", "buffer_load_dwordx4 v%d, %s, s%d offen offset:1024%s lds" % (vW1D + 1, sr(sWQKV, 4), sWO1, " nt" if s < o.get("ntw", 0) else ""), "w%d" % s)]]
        NUP = 3; NU0 = 1
        if TLB == 9: A.VM("global_load_dword v%d, v%d, s[96:97]" % (vDUM, vFT + 3))
        put(dma_x(0) + dma_w1(0))
        if TLB == 8: A.VM("global_load_dword v%d, v%d, s[96:97]" % (vDUM, vFT + 3))
        A("s_load_dwordx2 s[%d:%d], s[0:1], 16" % (sWO, sWO + 1)); A("s_load_dwordx4 s[92:95], s[0:1], 32"); A("s_load_dwordx4 s[%d:%d], s[0:1], 48" % (sWD, sWD + 3))
        A("s_load_dwordx2 s[%d:%d], s[0:1], 64" % (sDBG, sDBG + 1)); A("s_load_dwordx2 s[%d:%d], s[0:1], 72" % (sWS, sWS + 1))
        A("s_load_dwordx16 s[44:59], s[%d:%d], 0" % (sNON, sNON + 1)); A("s_load_dwordx16 s[60:75], s[%d:%d], 64" % (sNON, sNON + 1))
        for j in range(2): A.VM("buffer_load_dwordx4 %s, v%d, %s, s%d offen offset:%d" % (vr(vRSD + 4 * j, 4), T + 5, sr(sX, 4), sM0, 896 * j), "rsd")
        A.VM("buffer_load_dword v%d, v%d, %s, s%d offen" % (vDUM, vFT, sr(sWQKV, 4), sM1))
        if o.get("stamps"):
            A("v_mov_b32 v0, 0"); A("v_mov_b32 v3, 0")
            A("v_readfirstlane_b32 s100, v%d" % vCO); A("v_readfirstlane_b32 s101, v%d" % (vCO + 1)); A("s_nop 3")
            A("v_writelane_b32 v3, s100, 22"); A("v_writelane_b32 v3, s101, 23")
        PRE = []
        if o.get("tlb", 9) == 7:
            PRE += [S("s_mov_b64 s[98:99], s[%d:%d]", sWD + 2, sWD + 3)]
        if o.get("tlb", 9) == 6:
            PRE += [S("s_and_b32 s%d, s%d, 7", sT0, sIDX), S("s_mov_b64 s[96:97], s[%d:%d]", sDBG, sDBG + 1), S("s_mov_b32 s%d, 4", sT1)]
            for i, (p_, n_) in enumerate(((sX, 1835008), (sWQKV, 1204224), (sWO, 401408), (92, 1605632), (94, 1605632), (sWD, 1605632), (sWD + 2, 1835008))):
                PRE.append([S("s_cmp_eq_u32 s%d, %d", sT0, i), S("s_cselect_b64 s[96:97], s[%d:%d], s[96:97]", p_, p_ + 1), S("s_cselect_b32 s%d, %d, s%d", sT1, n_, sT1)])
            PRE += [S("s_sub_u32 s%d, s%d, 4", sT1, sT1), [S("s_cmp_eq_u32 s%d, 2", sW), S("s_cselect_b32 s%d, s%d, 0", sT1, sT1)],
                    S("s_lshl_b32 s%d, s%d, 21", sT0, sT0), [S("s_cmp_eq_u32 s%d, 3", sW), S("s_cselect_b32 s%d, %d, s%d", sT0, WS_BYTES - 128, sT0)],
                    S("s_add_u32 s%d, s%d, 1", sT2, sW),
                    [S("s_bitcmp0_b32 s%d, 1", sT2), S("s_cselect_b64 s[96:97], s[%d:%d], s[96:97]", sWS, sWS + 1), S("s_cselect_b32 s%d, s%d, s%d", sT1, sT0, sT1)],
                    S("v_mov_b32 v%d, s%d", vFT, sT1), ("VM", S("global_load_dword v%d, v%d, s[96:97]", vDUM, vFT))]
        PRE += [S("s_mov_b32 s%d, 1605632", sWD + 2), S("s_mov_b32 s%d, 0x20000", sWD + 3),
                [S("s_cmp_eq_u32 s%d, 0", sA), S("s_cselect_b64 s[%d:%d], s[92:93], s[94:95]", sG2, sG2 + 1)],
                [S("s_cmp_eq_u32 s%d, 1", sG1Q), S("s_cselect_b64 s[%d:%d], s[%d:%d], s[%d:%d]", sG1, sG1 + 1, sWQKV, sWQKV + 1, sG2, sG2 + 1)],
                [S("s_bitcmp0_b32 s%d, 0", sIDX), S("s_cselect_b64 s[%d:%d], s[92:93], s[94:95]", sCS, sCS + 1)],
                S("s_lshr_b32 s%d, s%d, 1", sT0, sIDX),
                [S("s_andn2_b32 s%d, s%d, s%d", sT0, sG1Q, sT0), S("s_cselect_b64 s[%d:%d], s[%d:%d], s[%d:%d]", sCS, sCS + 1, sWQKV, sWQKV + 1, sCS, sCS + 1),
                 S("s_cselect_b32 s%d, s%d, s%d", sCS + 2, sWQKV + 2, sG2 + 2)]]
        def nonce():
            l1 = self.lab(); u = vFT + 8
            A("s_or_b32 s%d, s%d, s%d" % (sT3, sIDX, sW)); A("s_cmp_lg_u32 s%d, 0" % sT3); A("s_cbranch_scc1 %s" % l1)
            A("s_memrealtime s[98:99]"); A("s_waitcnt lgkmcnt(0)")
            A("s_and_b32 s%d, s98, 0x3fff" % sT3); A("s_lshl_b32 s%d, s98, 2" % sM1); A("s_and_b32 s%d, s%d, 0x3fff0000" % (sM1, sM1))
            A("s_or_b32 s%d, s%d, s%d" % (sT3, sT3, sM1)); A("s_or_b32 s%d, s%d, 1" % (sT3, sT3))
            A("s_lshr_b64 s[90:91], s[98:99], 28"); A("s_or_b32 s%d, s90, 0x80000000" % sM1)
            A("v_mov_b32 v%d, s%d" % (ACA, sT3)); A("v_mov_b32 v%d, s%d" % (ACA + 1, sM1)); A("v_mov_b32 v%d, 0" % (ACA + 2)); A("v_mov_b32 v%d, 0" % (ACA + 3))
            A("v_lshlrev_b32 v%d, 8, v%d" % (ACA + 4, vL))
            A("buffer_atomic_cmpswap_x2 %s, v%d, %s, 0 offen sc1" % (vr(ACA, 4), ACA + 4, sr(sDBG, 4)))
            A.label(l1)
        nonce.wt = 3
        self.stamp(0)
        def dma_g(g):
            p = g // 7; out = []
            so, vd, vd2, srd_ = (sG1O, vG1D, vG1D2, sG1) if p == 0 else (sG2O, vG2D, vG2D2, sG2)
            for i in range(2):
                it = ["s_add_u32 m0, s%d, %d" % (sXM, WR + (g % 4) * 16384 + i * 2048)]
                if i == 0 and g % 7 == 0: it.append("s_nop 0")
                elif p == 0: it.append("s_add_u32 s%d, s%d, s%d" % (so, so, sG1S if i > 0 else sG1S3))
                else: it.append("s_add_u32 s%d, s%d, %d" % (so, so, 16 * 3584 * (1 if i > 0 else 3)))
                it.append(("VM", "buffer_load_dwordx4 v%d, %s, s%d offen lds" % (vd, sr(srd_, 4), so), "g%d" % g))
                it.append(("VM", "buffer_load_dwordx4 v%d, %s, s%d offen offset:1024 lds" % (vd2, sr(srd_, 4), so), "g%d" % g))
                out.append(it); out.append([])
            return out
        W1SET = [((ks + 2) % 3) * 4 + 4 for ks in range(28)]
        def rd_x(ks):
            s, q = divmod(ks, 4)
            return [("DS", "ds_read_b128 %s, v%d offset:%d" % (XF(j, ks), vXA + 4 * j + q, XR + (s % 4) * 16384), "f%d" % ks) for j in range(2)]
        def rd_w1(ks):
            s, q = divmod(ks, 4); d = vWF + W1SET[ks]
            return [("DS", "ds_read_b64_tr_b16 %s, v%d offset:%d" % (vr(d + 2 * j, 2), vW1A, s * 8192 + (16 * q + 4 * j) * 128), "f%d" % ks) for j in range(2)]
        def rd_g(p, ks, t):
            s, q = divmod(ks, 4); g = p * 7 + s; d = vWF + (ks % 2) * 8 + t * 4
            va = (vG1A if p == 0 else vG2A) + t
            return [("DS", "ds_read_b64_tr_b16 %s, v%d offset:%d" % (vr(d + 2 * j, 2), va, (g % 4) * 16384 + (16 * q + 4 * j) * 128), "r%d_%d_%d" % (p, ks, t)) for j in range(2)]

        F = {}
        def add(p, ks, items): F.setdefault((p, ks), []).extend(items)
        def cnt(x):
            if isinstance(x, list): return sum(cnt(y) for y in x)
            if isinstance(x, tuple):
                if x[0] == "L": return 0
                if x[0] == "W": return 0.5
                if x[0] == "VM": return 3 if "store" in x[1] else 1.5
                return 1
            if callable(x): return getattr(x, "wt", 5)
            return 4 if "mfma" in x else 1
        def spread0(p, k0, k1, items):
            n = k1 - k0 + 1; tot = cnt(items); i = 0; used = 0
            for x in items:
                while i < n - 1 and used + cnt(x) / 2 > tot * (i + 1) / n: i += 1
                add(p, k0 + i, [x]); used += cnt(x)
        DEF = []
        def spread(p, k0, k1, items):
            if p < 0 or not o.get("capsp", 1): spread0(p, k0, k1, items)
            else: DEF.append((p, k0, k1, items))
        def room(p, ks):
            q = ks % 4; own = (p == 0) or ks <= 14
            c = 56 - (20 if q == 2 else 0) - (43 if own and q in (1, 3) else 0)
            ex_ = F.get((p, ks), [])
            c += 32 * sum(1 for x in ex_ if isinstance(x, str) and "32x32x16" in x)
            return c - icost(ex_)
        def place(p, k0, k1, items, addf=None, roomf=None):
            addf = addf or (lambda ks, x: add(p, ks, [x])); roomf = roomf or (lambda ks: room(p, ks))
            tot = icost(items); r = [roomf(k) for k in range(k0, k1 + 1)]
            lo, hi = -200.0, 200.0
            for _ in range(30):
                mid = (lo + hi) / 2
                if sum(max(0.0, x + mid) for x in r) > tot: hi = mid
                else: lo = mid
            w = [max(0.0, x + hi) for x in r]; i = 0; used = 0.0; lim = w[0]
            for x in items:
                c = icost(x)
                while i < len(w) - 1 and used + c / 2 > lim: i += 1; lim += w[i]
                addf(k0 + i, x); used += c
        P1 = -1
        a0, b0 = vRSD, vRSD + 4
        RSt = [("W", ["rsd", "stash"], []), S("s_mov_b32 s%d, 0x3f803f80", sT0)]
        for i in range(4):
            for (acc, x, y) in ((T, a0 + i, None), (T + 1, b0 + i, None), (T + 2, a0 + i, a0 + i), (T + 3, b0 + i, b0 + i)):
                RSt.append(S("v_dot2_f32_bf16 v%d, v%d, %s, %s", acc, x, ("s%d" % sT0) if y is None else ("v%d" % y), "0" if i == 0 else "v%d" % acc))
        dpp = lambda n: S("v_add_f32_dpp v%d, v%d, v%d row_ror:%d row_mask:0xf bank_mask:0xf", T, T, T, n)
        RSt += [S("v_and_b32 v%d, 31, v%d", vFT, vL), S("v_lshlrev_b32 v%d, 27, v%d", vRO, vFT), S("v_lshrrev_b32 v%d, 5, v%d", vFT + 1, vL),
                S("v_permlane32_swap_b32 v%d, v%d", T, T + 1), S("v_permlane32_swap_b32 v%d, v%d", T + 2, T + 3),
                S("v_add_f32 v%d, v%d, v%d", T, T, T + 1), S("v_add_f32 v%d, v%d, v%d", T + 2, T + 2, T + 3),
                S("v_lshl_add_u32 v%d, v%d, 3, v%d", vRO, vFT + 1, vRO), S("v_mov_b32 v%d, 0", vRO + 1),
                S("v_permlane16_swap_b32 v%d, v%d", T, T + 2), S("v_add_f32 v%d, v%d, v%d", T, T, T + 2),
                rl(sL, "RSO"), S("s_mov_b32 s%d, 0xffff", sT1), dpp(8), "s_nop 1", dpp(4), rl(sL + 3, "RA"), rl(sL + 4, "ODD"), dpp(2),
                rl(sL + 5, "FXO"), S("v_mov_b32 v%d, 0", vCFF + 1), dpp(1),
                S("v_mov_b32 v%d, v%d", T + 2, T), S("v_mov_b32 v%d, 0", vCFF + 2), S("v_mov_b32 v%d, 0", vCFF + 3), S("v_permlane16_swap_b32 v%d, v%d", T, T + 2),
                S("v_mul_f32 v%d, 0x3b124925, v%d", T + 1, T), S("v_mul_f32 v%d, 0x3b124925, v%d", T + 2, T + 2),
                S("v_fmac_f32 v%d, 0xc3e00000, v%d", T, T + 1), S("v_fmamk_f32 v%d, v%d, 0x3b124925, v%d", T, T, T + 1),
                S("v_fma_f32 v%d, -v%d, v%d, v%d", T + 2, T, T, T + 2), S("v_max_f32 v%d, 0, v%d", T + 2, T + 2),
                S("v_cvt_pk_bf16_f32 v%d, v%d, v%d", T, T, T + 2), S("v_and_b32 v%d, 0xffff0000, v%d", T + 2, T),
                S("v_add_f32 v%d, 0x3727c5ac, v%d", T + 2, T + 2), S("v_cvt_pk_bf16_f32 v%d, v%d, v%d", T + 2, T + 2, T + 2),
                S("v_lshlrev_b32 v%d, 16, v%d", T + 2, T + 2), S("v_sqrt_f32 v%d, v%d", T + 2, T + 2), S("v_mov_b32 v%d, 0", vMF + 1),
                S("v_cvt_pk_bf16_f32 v%d, v%d, v%d", T + 2, T + 2, T + 2), S("v_bfi_b32 v%d, s%d, v%d, v%d", vRD2, sT1, T, T + 2)]
        vL31, vHI = vFT, vFT + 1
        sRSO, sCSTR, sG1STR, sRA, sODD, sFXO = sL, sL + 1, sL + 2, sL + 3, sL + 4, sL + 5
        D = [S("s_lshl_b32 s%d, s%d, 5", sT0, sA), S("v_xor_b32 v%d, s%d, v%d", T, sT0, vSW), S("s_movk_i32 s%d, 3584", sT0),
             S("v_mad_u32_u24 v%d, v%d, s%d, v%d", vG1D, vR8, sG1STR, T), S("v_mad_u32_u24 v%d, v%d, s%d, v%d", vG2D, vR8, sT0, T),
             S("s_lshr_b32 s%d, s%d, 1", sT0, sG1S), S("s_sub_u32 s%d, s%d, 1024", sT0, sT0), S("v_add_u32 v%d, s%d, v%d", vG1D2, sT0, vG1D),
             S("v_add_u32 v%d, %d, v%d", vG2D2, 8 * 3584 - 1024, vG2D),
             S("v_min_u32 v%d, 55, v%d", vDUM + 1, vL), S("v_mul_lo_u32 v%d, s%d, v%d", vDUM + 1, sCSTR, vDUM + 1),
             S("v_mad_u32_u24 v%d, v%d, s%d, v%d", vCD, vR8, sCSTR, vSW),
             S("s_mul_i32 s%d, s%d, 14336", sT0, sA), S("s_add_u32 s%d, s%d, %d", sT0, sT0, (CSL - WR) & 0xffffffff), S("v_add_u32 v%d, s%d, v%d", vCA, sT0, vW1A),
             S("s_lshl_b32 s%d, s%d, 1", sT0, sB), S("s_add_u32 s%d, s%d, s%d", sT1, sT0, sA),
             S("v_xor_b32 v%d, s%d, v%d", T, sT1, vSG), S("v_lshl_add_u32 v%d, v%d, 13, v%d", T + 1, vG, vB),
             S("v_lshl_add_u32 v%d, v%d, 5, v%d", vG2A, T, T + 1), S("v_xor_b32 v%d, 32, v%d", vG2A + 1, vG2A),
             S("s_lshl_b32 s%d, s%d, 1", sT1, sA), S("s_xor_b32 s%d, s%d, s%d", sT1, sT1, sB), S("v_xor_b32 v%d, s%d, v%d", T, sT1, vSG),
             S("s_lshl_b32 s%d, s%d, 13", sT2, sB), S("v_add_u32 v%d, s%d, v%d", T + 1, sT2, vB),
             S("v_lshl_add_u32 v%d, v%d, 5, v%d", T, T, T + 1), S("v_xor_b32 v%d, 64, v%d", T + 1, T),
             S("v_lshlrev_b32 v%d, 9, v%d", T + 2, vHI), S("v_sub_u32 v%d, v%d, v%d", T + 2, vB, T + 2), S("v_lshl_add_u32 v%d, v%d, 5, v%d", T + 2, vSG, T + 2),
             S("v_add_u32 v%d, s%d, v%d", vTA + 4, sXM, T + 2), S("v_xor_b32 v%d, 64, v%d", vTA + 5, vTA + 4), S("v_subrev_u32 v%d, %d, v%d", T + 2, WR, T + 2),
             S("v_add_u32 v%d, s%d, v%d", vTA, sMX, T + 2), S("v_xor_b32 v%d, 64, v%d", vTA + 1, vTA),
             S("v_add_u32 v%d, s%d, v%d", vTA + 2, sM5, T + 2), S("v_xor_b32 v%d, 64, v%d", vTA + 3, vTA + 2),
             [S("s_cmp_eq_u32 s%d, 1", sG1Q), "s_cselect_b64 vcc, -1, 0"],
             S("v_cndmask_b32 v%d, v%d, v%d, vcc", vG1A, vG2A, T), S("v_cndmask_b32 v%d, v%d, v%d, vcc", vG1A + 1, vG2A + 1, T + 1),
             S("v_lshlrev_b32 v%d, 10, v%d", T, vHI), S("v_lshl_add_u32 v%d, v%d, 4, v%d", T, vL31, T),
             S("v_mul_u32_u24 v%d, %d, v%d", T + 1, 57344 - 256, vG), S("v_add_u32 v%d, v%d, v%d", vCO + 1, T, T + 1),
             S("v_cndmask_b32 v%d, v%d, v%d, vcc", vCO, vCO + 1, T),
             S("v_lshlrev_b32 v%d, 3, v%d", vCO + 2, vL31), S("s_lshl_b32 s%d, s%d, 8", sT0, sB), S("v_add_u32 v%d, s%d, v%d", vCO + 2, sT0, vCO + 2), S("v_xor_b32 v%d, 256, v%d", vCO + 3, vCO + 2),
             S("v_lshrrev_b32 v%d, 4, v%d", T, vL), S("v_min_u32 v%d, 2, v%d", T, T), S("v_sub_u32 v%d, s%d, v%d", T, sRA, T), S("v_max_i32 v%d, 0, v%d", T, T),
             S("v_and_b32 v%d, 15, v%d", T + 1, vL), S("v_lshlrev_b32 v%d, 7, v%d", T, T), S("v_lshl_add_u32 v%d, v%d, 3, v%d", vAF, T + 1, T),
             S("v_min_u32 v%d, 11, v%d", T + 1, T + 1), S("v_lshl_add_u32 v%d, v%d, 3, v%d", vVF, T + 1, T), S("v_add_u32 v%d, %d, v%d", vVF, FLV, vVF),
             S("v_lshlrev_b32 v%d, 6, v%d", vKD, vHI), S("v_xor_b32 v%d, v%d, v%d", vKD, vKD, vL16), S("v_xor_b32 v%d, 128, v%d", vKD + 1, vKD),
             S("s_lshl_b32 s%d, s%d, 11", sT0, sW), S("v_add_u32 v%d, s%d, v%d", vKA, sT0, vL16),
             S("v_bfe_u32 v%d, v%d, 4, 1", T, vL), S("v_and_b32 v%d, 3, v%d", T + 1, vL), S("v_lshl_add_u32 v%d, v%d, 2, v%d", T, T, T + 1),
             S("v_add_u32 v%d, s%d, v%d", T, sODD, T), S("v_bfe_u32 v%d, v%d, 1, 2", T + 1, T), S("v_and_b32 v%d, 1, v%d", T, T),
             S("v_bfe_u32 v%d, v%d, 2, 2", T + 3, vL), S("v_xor_b32 v%d, v%d, v%d", T + 4, vHI, T + 1), S("v_lshl_add_u32 v%d, v%d, 2, v%d", T + 3, T + 4, T + 3),
             S("v_lshlrev_b32 v%d, 9, v%d", T + 1, T + 1), S("v_lshl_add_u32 v%d, v%d, 4, v%d", T + 1, T + 3, T + 1), S("v_lshl_add_u32 v%d, v%d, 3, v%d", T + 1, T, T + 1),
             S("s_add_u32 s%d, s%d, %d", sT0, sT0, XR + 24576), S("v_add_u32 v%d, s%d, v%d", vVA, sT0, T + 1), S("v_xor_b32 v%d, 128, v%d", vVA + 1, vVA),
             S("v_lshl_add_u32 v%d, v%d, 4, s%d", vFX, vL31, sFXO),
             S("v_and_b32 v%d, 1, v%d", T, vL), S("v_lshlrev_b32 v%d, 3, v%d", T, T), S("v_bfe_u32 v%d, v%d, 1, 2", T + 1, vL),
             S("v_lshl_add_u32 v%d, v%d, 5, v%d", vFT + 4, T + 1, T), S("v_min_u32 v%d, 2, v%d", T + 2, T + 1), S("v_lshl_add_u32 v%d, v%d, 5, v%d", vFT + 2, T + 2, T),
             S("s_lshl_b32 s%d, s%d, 6", sT0, sW), S("s_sub_u32 s%d, 384, s%d", sT0, sT0), S("v_cmp_eq_u32 vcc, 3, v%d", T + 1), S("v_add_u32 v%d, s%d, v%d", T, sT0, T),
             S("v_mov_b32 v%d, 0", vMF + 3), S("v_cndmask_b32 v%d, v%d, v%d, vcc", vFT + 3, vFT + 4, T),
             S("v_mov_b32 v%d, 0", vMF + 5), S("v_mov_b32 v%d, 0", vMF + 7)]
        add(P1, 0, [nonce]); spread0(P1, 0, 1, PRE)
        spread(P1, 2, 26, [('W', ['stash'], []), rl(sL + 2, 'G1STR'), S('s_lshr_b32 s%d, s%d, 3', sL + 1, sCSS)] + D[:15] + RSt + D[15:])
        nload = ("VM", "buffer_load_dwordx2 %s, v%d, %s, 0 offen sc1" % (vr(vN, 2), vRO + 1, sr(sDBG, 4)), "nonce")
        add(P1, o.get("nonce_ld", 10), [nload])
        add(P1, o.get("nonce_ck", 19), self.spin("nonce", [nload], [S("v_readfirstlane_b32 s%d, v%d", sNON, vN), S("v_readfirstlane_b32 s%d, v%d", sNON + 1, vN + 1),
                     [S("s_min_u32 s%d, s%d, s%d", sSPIN, sNON, sNON + 1)][0].replace("s%d," % sSPIN, "s%d," % sM1, 1), S("s_cmp_lg_u32 s%d, 0", sM1)]) + [S("v_mov_b32 v%d, v%d", vRD2 + 1, vN),
                     ("VM", S("buffer_store_dwordx2 %s, v%d, %s, s%d offen sc1", vr(vRD2, 2), vRO, sr(sWS, 4), sRSO))])
        def cond_cs(items, inv=False):
            def f():
                l = self.lab()
                A("s_bitcmp1_b32 s%d, 2" % sIDX if MAPB == 3 else "s_bitcmp1_b32 s%d, 3" % sPRD); A("s_cbranch_scc%d %s" % (0 if inv else 1, l))
                A.br_begin(); put(items); A.br_alt_end(); A.br_alt_end(); A.br_end()
                A.label(l)
            f.wt = cnt(items) / 2 + 2
            return f
        CK = o.get("cs_dma", 16)
        if o.get("gtouch", 1): add(P1, CK, [cond_cs([("VM", S("buffer_load_dword v%d, v%d, %s, s%d offen%s", vDUM, vDUM + 1, sr(sCS, 4), sCO, " nt" if o.get("csnt") else ""))], True)])
        csd = [S("s_mul_i32 s%d, s%d, 7168", sT3, sW)]
        for i in range(7):
            csd += [S("s_add_u32 m0, s%d, %d", sT3, CSL + i * 1024), S("s_add_u32 s%d, s%d, s%d", sCO, sCO, sCSS) if i else "s_nop 0",
                    ("VM", S("buffer_load_dwordx4 v%d, %s, s%d offen%s lds", vCD, sr(sCS, 4), sCO, " nt" if o.get("csnt") else ""), "csd")]
        add(P1, CK, [cond_cs(csd[:10])]); add(P1, CK + 1, [cond_cs([csd[0]] + csd[10:])])
        vTC = vFT + 6
        if o.get("t_g1", 2) >= 0:
            add(P1, o.get("t_g1", 2), [[("W", ["stash"], []), rl(sM0, "TG1"), rl(sM0 + 1, "G1STR"), S("v_min_u32 v%d, 13, v%d", vTC, vL), "s_nop 0", S("v_mul_lo_u32 v%d, s%d, v%d", vTC + 1, sM0 + 1, vTC),
                                        ("VM", S("buffer_load_dword v%d, v%d, %s, s%d offen", vDUM, vTC + 1, sr(sG1, 4), sM0)),
                                        ]])
        if o.get("t_g2", -1) >= 0:
            add(P1, o.get("t_g2", -1), [[rl(sM0, "TG2"), S("v_min_u32 v%d, 13, v%d", vTC, vL), S("v_mul_u32_u24 v%d, 3584, v%d", vTC, vTC), "s_nop 1",
                                         ("VM", S("buffer_load_dword v%d, v%d, %s, s%d offen", vDUM, vTC, sr(sG2, 4), sM0))]])
        if o.get("tlb", 9) == 7:
            add(P1, o.get("tlb_ks", 15), [[S("s_and_b32 s%d, s%d, 7", sT3, sIDX), S("s_lshl_b32 s%d, s%d, 21", sT3, sT3), S("s_cmp_eq_u32 s%d, 1", sW), S("s_cselect_b32 s%d, %d, s%d", sT3, WS_BYTES - 128, sT3),
                S("s_cmp_eq_u32 s%d, 2", sW), S("s_cselect_b32 s%d, 0, s%d", sT3, sT3), S("s_cmp_eq_u32 s%d, 3", sW), S("s_cselect_b32 s%d, 1835004, s%d", sT3, sT3),
                S("s_cmp_lt_u32 s%d, 2", sW), S("s_cselect_b64 s[98:99], s[%d:%d], s[98:99]", sWS, sWS + 1), S("v_mov_b32 v%d, s%d", vFT + 7, sT3),
                ("VM", S("global_load_dword v%d, v%d, s[98:99]", vDUM, vFT + 7))]])
        def touch_wd():
            l = self.lab(); l3 = self.lab()
            A("s_cmp_eq_u32 s%d, 3" % sW); A("s_cbranch_scc1 %s" % l)
            A("v_min_u32 v%d, 24, v%d" % (vDUM + 1, vL)); A("v_lshlrev_b32 v%d, 7, v%d" % (vDUM + 1, vDUM + 1))
            A("s_cmp_eq_u32 s%d, 2" % sW); A("s_cbranch_scc1 %s" % l3)
            A("s_lshl_b32 s%d, s2, 1" % sT3); A("s_add_u32 s%d, s%d, s%d" % (sT3, sT3, sW)); A("s_mul_i32 s%d, s%d, 3136" % (sT3, sT3)); A("s_and_b32 s%d, s%d, 0xffffff80" % (sT3, sT3))
            A("buffer_load_dword v%d, v%d, %s, s%d offen" % (vDUM, vDUM + 1, sr(sWD, 4), sT3)); A("s_branch %s" % l)
            A.label(l3)
            A("s_mul_i32 s%d, s2, 1664" % sT3); A("v_min_u32 v%d, 1536, v%d" % (vDUM + 1, vDUM + 1))
            A("buffer_load_dword v%d, v%d, %s, s%d offen" % (vDUM, vDUM + 1, sr(sWO, 4), sT3))
            A.label(l)
        if o.get("pf_wd", 24) >= 0: add(P1, o.get("pf_wd", 24), [touch_wd])

        CSF1 = o.get("csf1", 22)
        if CSF1:
            tmp = [128 + 4 * i for i in range(7)]; vC2 = 156; vU_ = 160
            crd = [("DS", S("ds_read_b64_tr_b16 %s, v%d offset:%d", vr(tmp[s_] + 2 * j, 2), vCA, (16 * s_ + 4 * j) * 128), "csr") for s_ in range(7) for j in range(2)]
            cm = [("W", [], ["csr"])] + [mf16(vC2, vr(vSEL, 4), vr(tmp[s_], 4), "0" if s_ == 0 else None) for s_ in range(7)]
            cst = [rl(sCO, "CST"), S("v_lshrrev_b32 v%d, 5, v%d", vU_, vL), S("v_lshl_add_u32 v%d, v%d, 27, v%d", vU_, vU_, vL16),
                   S("v_mov_b32 v%d, v%d", vU_ + 3, vN)] + self.cfrag(vU_ + 2, vC2, vU_ + 4) + \
                  [("VM", S("buffer_store_dwordx2 %s, v%d, %s, s%d offen sc1", vr(vU_ + 2, 2), vU_, sr(sWS, 4), sCO))]
            add(P1, CSF1, [cond_cs(crd[:7])]); add(P1, CSF1 + 1, [cond_cs(crd[7:])]); add(P1, CSF1 + 2, [cond_cs(cm)]); add(P1, CSF1 + 4, [cond_cs(cst)])
        A.C("FIRST pass")
        if o.get("strip1"):
            for k_ in list(F):
                if k_[0] == P1: F[k_] = [x for x in F[k_] if not (isinstance(x, str) and not "readlane" in x and not "readfirst" in x and (o["strip1"] == 1 or "dot2" in x))]
        NU1 = o.get('nu1', 2)
        for s in range(NU0, NU1): put(dma_x(s) + dma_w1(s))
        A.wait_all_ds()
        A.wait(vm=["x0", "w0"]); A("s_barrier")
        self.stamp(1)
        put(rd_x(0) + rd_w1(0) + rd_x(1) + rd_w1(1))
        pend = [it for s in range(NU1, NUP) for it in dma_x(s) + dma_w1(s)]
        for ks in range(28):
            s, q = divmod(ks, 4); z = "0" if ks == 0 else None
            W = vr(vWF + W1SET[ks], 4)
            if o.get("finep", 0) == -1: self.stamp(32 + ks, True)
            A.wait(ds=["f%d" % ks])
            fill = F.get((P1, ks), []); tot = cnt(fill); g1 = []; g2 = []; u = 0
            for x in fill:
                (g1 if u < tot * 0.6 else g2).append(x); u += cnt(x)
            A(mf32(ACF, W, XF(0, ks), z))
            put(rd_x(ks + 2) if ks < 26 else rd_g(0, 0, 0) if ks == 27 else [])
            A(mf32(ACF + 16, W, XF(1, ks), z))
            put(rd_w1(ks + 2) if ks < 26 else rd_g(0, 0, 1) if ks == 27 else [])
            left = (1 - q) % 4 + 1
            if pend and ks < 26:
                for _ in range(-(-len(pend) // left)): put(pend.pop(0))
            if ks == 27: put(pend.pop(0))
            put(g1)
            if not o.get("nomf16"): A(mf16(vCSF, vr(vSEL, 4), W, z))
            put(g2)
            if q == 1 and s < 6:
                A.wait(vm=["x%d" % (s + 1), "w%d" % (s + 1)] + (["csd"] if CSF1 == ks + 1 else []))
                A("s_barrier")
                assert not pend
                pend = (dma_x(s + NUP) + dma_w1(s + NUP) if s + NUP < 7 else []) + (dma_g(s - 3) if s in (3, 4) else [])
                pend = [x for x in pend if x]
            if ks == 26:
                A.wait(vm=["g0"], ds=["f27"])
                A("s_barrier")
                pend = [x for x in dma_g(2) + dma_g(3) if x]
            if ks == 27: pass
        self.stamp(2)

        self.bar_ds = {}; self.bar_vm = {}
        add(0, 0, [S("v_mov_b32 v%d, v%d", vF0 + i, vFT + 2 + i) for i in range(3)] + [S("v_mul_f32 v%d, 0.5, v%d", T + 2, vCSF)])
        add(0, 1, self.cfrag(vCFF, T + 2, T))
        if not CSF1:
            CSB = o.get("cs_bar", 3)
            if not CSF1: self.bar_vm[(0, CSB)] = ["csd"]
            tmp = [224, 228, 232, 236, 240, 112, 116]
            crd = [("DS", S("ds_read_b64_tr_b16 %s, v%d offset:%d", vr(tmp[s_] + 2 * j, 2), vCA, (16 * s_ + 4 * j) * 128), "csr") for s_ in range(7) for j in range(2)]
            add(0, CSB + 1, [cond_cs(crd[:4]), cond_cs(crd[4:8])]); add(0, CSB + 2, [cond_cs(crd[8:11]), cond_cs(crd[11:])])
            cm = [("W", [], ["csr"])] + [mf16(vCSF, vr(vSEL, 4), vr(tmp[s_], 4), "0" if s_ == 0 else None) for s_ in range(7)]
            add(0, CSB + 3, [cond_cs(cm)])
            cst = [rl(sCO, "CST"), S("v_lshrrev_b32 v%d, 5, v%d", 224, vL), S("v_lshl_add_u32 v%d, v%d, 27, v%d", 224, 224, vL16),
                   S("v_mov_b32 v%d, v%d", 229, vN)] + self.cfrag(228, vCSF, 230) + \
                  [("VM", S("buffer_store_dwordx2 v[228:229], v224, %s, s%d offen sc1", sr(sWS, 4), sCO))]
            add(0, CSB + 5, [cond_cs(cst[:4]), cond_cs(cst[4:])])
            self.bar_ds[(0, 11)] = ["csr"]
        RK = o.get("rs_ld", 3)
        vRL = 232
        add(0, RK - 2, [rl(sL, "RSC")])
        rld = [("VM", S("buffer_load_dwordx2 %s, v%d, %s, s%d offen sc1", vr(vRL + 2 * j, 2), vCO + 2 + j, sr(sWS, 4), sL), "rs") for j in range(2)]
        add(0, RK, rld)
        E0 = o.get("e0_ks", 10)
        rc = self.spin("rs", rld, self.tagcheck([vRL + 1, vRL + 3], T)) + [S("s_mov_b32 s%d, 0x01000100", sT1),
              rl(sT2, "QS")]
        for j in range(2):
            rc += [S("v_xor_b32 v%d, 0x8000, v%d", T, vRL + 2 * j), S("v_and_b32 v%d, 0xffff0000, v%d", T + 1, vRL + 2 * j), S("v_perm_b32 v%d, v%d, v%d, s%d", vMF + 4 * j, T, T, sT1),
                   S("v_rcp_f32 v%d, v%d", vR + j, T + 1), S("v_mov_b32 v%d, v%d", vMF + 4 * j + 2, vMF + 4 * j),
                   S("v_mul_f32 v%d, s%d, v%d", vR + 2 + j, sT2, vR + j)]
        spread(0, E0 - 1, E0 + 1, rc)
        add(0, E0 + 2, [mf32(ACF, vr(vCFF, 4), vr(vMF, 4)), mf32(ACF + 16, vr(vCFF, 4), vr(vMF + 4, 4))])
        spread(0, E0 + 3, E0 + o.get("e0_len", 11), self.qkv_epi(ACF, vR + 2, sSF, vP, "st0") + self.qkv_epi(ACF + 16, vR + 3, sSF + 1, vP + 8, "st0"))
        kss = o.get("kw_ks0", {13: 0, 14: 2, 15: 4, 16: 6, 17: 8, 18: 12, 19: 20, 20: 22, 21: 24, 22: 26, 23: 27})
        for k, ks in kss.items(): add(0, ks, [self.kw_dma(k)])
        cl = [("VM", S("buffer_load_dwordx4 %s, v%d, %s, s%d offen sc1", vr(vCF + 4 * i, 4), vCO + i // 2, sr(sWS, 4), sCSO + i), "cs") for i in range(4)]
        for i in range(4): add(0, o.get("cs_ld", 5) + (i if i < 2 else i + 1), [cl[i]])
        spread(0, o.get("cs_ck", 21), o.get("cs_ck", 21) + 2, self.spin("cs", cl, self.tagcheck([vCF + 1 + 2 * i for i in range(8)], T)))
        add(0, 25, [rl(sL, "FQ"), rl(sL + 1, "FE"), rl(sL + 2, "QO"), rl(sL + 3, "RSQ"), rl(sL + 4, "FB0"), rl(sL + 5, "FH")])
        sFQo, sFE, sQO, sRSQ = sL, sL + 1, sL + 2, sL + 3
        self.sFB0, self.sFH = sL + 4, sL + 5

        FQB = o.get("fq_bar", (0, 27))
        self.bar_vm[FQB] = ["st0"]
        def put_fq():
            l = self.lab()
            A("s_cmp_lg_u32 s%d, 0" % sW); A("s_cbranch_scc1 %s" % l)
            A("buffer_store_dwordx2 %s, v%d, %s, s%d offen sc1" % (vr(vN, 2), vFO, sr(sWS, 4), sFQo))
            A.label(l)
        put_fq.wt = 3; put_fq.cy = 14
        F.setdefault(FQB, []).insert(0, put_fq)
        def ep0(isq):
            E = {}
            def a2(ks, items): E.setdefault(ks, []).extend(items)
            r1 = [mf32(ACA + 32 * t + 16 * j, vr(vCF + 4 * t, 4), vr(vMF + 4 * j, 4)) for t in range(2) for j in range(2)]
            a2(0, r1[:2]); a2(1, r1[2:])
            tl = []
            for t in range(2):
                for j in range(2):
                    if isq: tl += self.qkv_epi(ACA + 32 * t + 16 * j, vR + j, sS0 + 2 * t + j, vP + 8 * j, "ep0")
                    else: tl += self.gu_epi(ACA + 32 * t + 16 * j, sS0 + 2 * t + j, vP + 4 * (2 * t + j), "ep0")
            if o.get("capsp", 1): place(1, 2, 9, tl, lambda ks, x: a2(ks, [x]))
            else:
                n = 8; per = -(-len(tl) // n)
                for i in range(n): a2(2 + i, tl[i * per:(i + 1) * per])
            return E
        add(1, o.get("ep0_flag_ks", 13), [("W", ["ep0"], []), self.flagstore(sFE)])
        dr = o.get("dr", {13: 5, 14: 6, 15: 7, 16: 8, 17: 9, 18: 10, 19: 11, 20: 12, 21: 13, 22: 14, 23: 15, 24: 21, 25: 22, 26: 23, 27: 24, 28: 25})
        NA = o.get('na', 16)
        dr = {k: v for k, v in dr.items() if k < 13 + NA}
        self.xs = {k: i for i, k in enumerate(sorted(dr, key=lambda k_: (dr[k_], k_)))}
        for k in dr: assert self.xs[k] < dr[k]
        if NA == 16: rf = o.get("rf", {k: dr[k - 5] + 1 for k in range(24, 29)}); rf.update(o.get("rf2", {k: dr[24 + k] + 1 for k in range(5)}))
        else: rf = o.get("rf2", {0: 16, 1: 19, 2: 21, 3: 25, 4: 26})
        for k, ks in sorted(dr.items(), key=lambda x: x[1]): add(1, ks, [self.kw_drain(k)])
        xb_ = max(dr[k] for k in range(13, 19)); xb_ = xb_ + (3 - xb_ % 4 if xb_ % 4 != 3 else 4)
        self.bar_ds[(1, xb_)] = ["kr%d" % k for k in range(13, 19)]
        assert xb_ <= o.get("fq_ck", 20) + 2
        for k, ks in rf.items():
            assert ks >= 10
            src = k - 5 if k >= 24 else (24 if NA == 16 else 19) + k
            assert ks > dr[src] and (k < 24 or dr[k] > ks)
            add(1, ks, [[("W", [], ["kr%d" % src])] + self.kw_dma(k)])
        for k, ks in o.get("wk", {5: 17, 6: 18, 7: 20, 8: 27}).items(): add(1, ks, [self.kw_dma(k)])
        add(1, o.get("fq_ld", 16), [self.flagload(vAF, vAT, "fq")])
        FQC = o.get("fq_ck", 20)
        add(1, FQC, self.poll(vAF, vAT, "fq"))
        def kvdma(i, sec, v0_, v1_, tag):
            return [S("s_add_u32 m0, s%d, %d", sKM, XR + (sec - 1) * 24576 + i * 2048), S("s_add_u32 s%d, s%d, %d", sKS0 + i, sKS0 + i, 56 * 512),
                    ("VM", S("buffer_load_dwordx4 v%d, %s, s%d offen sc1 lds", v0_, sr(sWS, 4), sKS0 + i), tag),
                    ("VM", S("buffer_load_dwordx4 v%d, %s, s%d offen offset:1024 sc1 lds", v1_, sr(sWS, 4), sKS0 + i), tag)]
        for i in range(3): add(1, FQC + 2 + i, [kvdma(i, 1, vL16, vL16, "kq")])
        add(1, FQC + 1, [S("v_and_b32 v%d, 31, v%d", vS2, vL), S("v_lshlrev_b32 v%d, 3, v%d", vS2, vS2)]
            + [("VM", S("buffer_load_dwordx4 %s, v%d, %s, s%d offen offset:%d sc1", vr(vQ + 4 * i, 4), vL16, sr(sWS, 4), sQO, 1024 * i), "kq") for i in range(2)]
            + [("VM", S("buffer_load_dword v%d, v%d, %s, s%d offen sc1", vS2, vS2, sr(sWS, 4), sRSQ), "kq")])
        self.vdma = lambda i: kvdma(i, 2, vKD, vKD + 1, "vv")
        add(1, o.get("fv_ld", 25), [self.flagload(vVF, vVT, "fv")])
        add(1, o.get("fh0_ld", 25), [self.flagload(vF0, vAT, "fh0", "s%d" % self.sFB0)])
        M = [S("v_lshrrev_b32 v%d, 5, v%d", T + 2, vL), S("v_and_b32 v%d, 31, v%d", T, vL),
             S("v_lshlrev_b32 v%d, 2, v%d", T + 2, T + 2), S("v_sub_u32 v%d, v%d, v%d", T, T, T + 2), S("v_mov_b32 v%d, 0xf149f2ca", T + 1)]
        cp = [sr(sM0, 2), sr(sM1, 2), sr(sS0, 2)]
        aj = lambda j: (j & 3) + 8 * (j >> 2)
        M += [S("v_cmp_gt_i32 %s, %d, v%d", cp[j % 3], aj(j), T) for j in range(2)]
        for j in range(16):
            if j + 2 < 16: M.append(S("v_cmp_gt_i32 %s, %d, v%d", cp[(j + 2) % 3], aj(j + 2), T))
            M.append(S("v_cndmask_b32 v%d, 0, v%d, %s", vMB + j, T + 1, cp[j % 3]))
            M.append(S("v_sub_f32 v%d, v%d, v%d", vMA + j, T + 1, vMB + j))
        M += [rl(sM0 + 1, "ME"), rl(sM1, "MO"), S("s_mov_b32 s%d, 0", sM0), S("s_mov_b32 s%d, 0", sM1 + 1),
              rl(sL, "KF0"), rl(sL + 1, "KF1"), rl(sL + 2, "KF2"), S("v_mov_b32 v%d, 0x3f803f80", T)]
        spread(1, o.get('m0', 10), o.get('m1', 25), M[:-8]); add(1, 26, M[-8:-4]); add(1, 27, M[-4:])

        def g2_step(p, ks, fill):
            nonlocal pend
            s, q = divmod(ks, 4); g = p * 7 + s; z = "0" if ks == 0 else None
            acc = ACA if p == 0 else ACB
            W0 = vr(vWF + (ks % 2) * 8, 4); W1 = vr(vWF + (ks % 2) * 8 + 4, 4)
            last = (p == 1 and ks == 27)
            r1 = "r%d_%d_1" % (p, ks)
            if p == o.get("finep", 0): self.stamp(32 + ks, True)
            bar = (q == 2 and not (p == 1 and s == 6))
            A.wait(ds=["r%d_%d_%d" % (p, ks, 1 if o.get("onew", 1) else 0)])
            nx = (p, ks + 1) if ks < 27 else (p + 1, 0)
            willp = bool(pend and pend[0])
            base = [8, 4, (24 - 43) if willp else 24, -100 if bar else 20]
            tot = icost([x for x in fill if not (isinstance(x, str) and "32x32x16" in x)]); lo_, hi_ = -50.0, 300.0
            for _ in range(30):
                mid = (lo_ + hi_) / 2
                if sum(max(0.0, x + mid) for x in base) > tot: hi_ = mid
                else: lo_ = mid
            cap = [max(0.0, x + hi_) for x in base]
            gaps = [[] for _ in range(4)]; gi = 0; used = 0.0; lim = cap[0]
            for x in fill:
                c = 0 if (isinstance(x, str) and "32x32x16" in x) else icost(x)
                while gi < (2 if bar else 3) and used + c / 2 > lim: gi += 1; lim += cap[gi]
                gaps[gi].append(x); used += c
            A(mf32(acc, W0, XF(0, ks), z))
            if not last: put(rd_g(nx[0], nx[1], 0))
            put(gaps[0])
            A(mf32(acc + 16, W0, XF(1, ks), z))
            if not last: put(rd_g(nx[0], nx[1], 1))
            put(gaps[1])
            A.wait(ds=[r1])
            A(mf32(acc + 32, W1, XF(0, ks), z))
            if pend: put(pend.pop(0))
            put(gaps[2])
            A(mf32(acc + 48, W1, XF(1, ks), z))
            put(gaps[3])
            if bar:
                if o.get("finep") == 5: self.stamp(32 + 2 * g, True)
                A.wait(vm=["g%d" % (g + 1)] + self.bar_vm.get((p, ks + 1), []), ds=["r%d_%d_1" % nx] + self.bar_ds.get((p, ks + 1), []))
                if o.get("finep") == 6: self.stamp(32 + 2 * g, True)
                A("s_barrier")
                if o.get("finep") in (5, 6): self.stamp(33 + 2 * g, True)
                assert not any(pend)
                pend = dma_g(g + 4) if g + 4 < 14 else []
        for d in DEF: place(*d)
        if o.get("verbose"): print("room:", {k: int(room(*k)) for k in sorted(F) if k[0] >= 0})
        if o.get("verbose"): print("fill counts:", {k: cnt(v) for k, v in sorted(F.items())})
        if o.get("strip"):
            def flt(x):
                if isinstance(x, list): return [y for y in (flt(z) for z in x) if y is not None]
                if isinstance(x, str) and x.startswith("v_") and "mfma" not in x and "readlane" not in x: return None
                return x
            for k_ in list(F):
                if k_[0] >= 0: F[k_] = flt(F[k_])
            ep0_ = ep0
            ep0 = lambda isq: {k_: flt(v_) for k_, v_ in ep0_(isq).items()}
        A.C("G2 pass 0")
        for ks in range(28): g2_step(0, ks, F.get((0, ks), []))
        self.stamp(4)
        A.C("G2 pass 1")
        lq = self.lab("LQ"); lj = self.lab("LJ")
        NV = 10
        A.br_begin()
        A("s_cmp_eq_u32 s%d, 1" % sG1Q); A("s_cbranch_scc1 %s" % lq)
        pend0 = list(pend)
        for isq in (0, 1):
            if isq: A.label(lq)
            pend = list(pend0)
            E = ep0(isq)
            for ks in range(NV): g2_step(1, ks, E.get(ks, []) + F.get((1, ks), []))
            if not isq: A("s_branch %s" % lj)
            A.br_alt_end()
        A.br_end(); A.label(lj)
        self.stamp(5)
        for ks in range(NV, 28): g2_step(1, ks, F.get((1, ks), []))
        self.stamp(6)
        self.tail()
        A.label("L_END")
        A("s_endpgm")
        for f in self.ool: f()
        A.label("L_CEND")
        A("s_endpgm")

    def tail(self):
        A = self.A; o = self.o; put = self.put; mf32 = self.mf32; T = vT
        sFB0, sFH = self.sFB0, self.sFH; rl = self.rl
        KP = [192, 196, 200, 204, 44, 48, 52, 56, 60, 64, 68, 72, 76, 80, 84, 88, 28, 32]
        vS = [160, 176]; vO = 208; vV = 224; vPP = 240; vM = 22; vU = 23; vWK = 112
        A.C("ep1")
        fs = lambda i: self.stamp(32 + i, True) if o.get("finep") == 7 else None
        r1 = [mf32(ACB + 32 * t + 16 * j, vr(vCF + 8 + 4 * t, 4), vr(vMF + 4 * j, 4)) for t in range(2) for j in range(2)]
        fs(0)
        A(r1[0])
        A("v_mov_b32 v%d, 0xf14a" % vM)
        A.wait(vm=["kq"])
        fs(1)
        for i in range(3):
            A("v_mov_b32 v%d, s%d" % (T + 1, sL + i))
            A.DS("ds_write_b64 v%d, %s offset:%d" % (vFX, vr(T, 2), XR + i * 2048), "kfix")
            A(r1[1 + i])
        qz = ["v_cndmask_b32 v%d, v%d, 0, %s" % (vQ + 6, vQ + 6, sr(sM0, 2)), "v_cndmask_b32 v%d, v%d, 0, %s" % (vQ + 0, vQ + 0, sr(sM1, 2))]
        put(qz)
        A("v_cndmask_b32 v%d, v%d, v%d, %s" % (vQ + 7, vQ + 7, vM, sr(sM0, 2))); A("v_cndmask_b32 v%d, v%d, v%d, %s" % (vQ + 1, vQ + 1, vM, sr(sM1, 2)))
        put(self.poll(vVF, vVT, "fv"))
        A.wait(ds=["kfix"]); A("s_barrier")
        fs(2)
        ORD = [8, 7, 6, 5, 4, 3, 2, 1, 0]
        def rdk(t): return [("DS", "ds_read_b128 %s, v%d offset:%d" % (vr(KP[2 * t + i], 4), vKA, XR + t * 2048 + 1024 * i), "k%d" % t) for i in range(2)]
        def rdv(n):
            d = vV + 8 * (n % 2)
            return [("DS", "ds_read_b64_tr_b16 %s, v%d offset:%d" % (vr(d + 4 * s + 2 * j, 2), vVA + j, ORD[n] * 2048 + s * 256), "v%d" % n) for s in range(2) for j in range(2)]
        def qk(t, buf):
            c = vr(vMA, 16) if t == 0 else vr(vMB, 16) if t == 8 else "0"
            return [mf32(buf, vr(KP[2 * t], 4), vr(vQ, 4), c), mf32(buf, vr(KP[2 * t + 1], 4), vr(vQ + 4, 4))]
        def mx(first, buf):
            return [("v_max_f32 v%d, v%d, v%d" % (vM, buf, buf + 1)) if (first and i == 0) else
                    ("v_max3_f32 v%d, v%d, v%d, v%d" % (vM, buf + 2 * i, buf + 2 * i + 1, vM)) for i in range(8)]
        setm = ["v_mov_b32 v%d, v%d" % (vU, vM), "s_nop 1", "v_permlane32_swap_b32 v%d, v%d" % (vM, vU), "v_max_f32 v%d, v%d, v%d" % (vM, vM, vU),
                "v_cvt_pk_bf16_f32 v%d, -v%d, -v%d" % (vU, vM, vM), "v_lshlrev_b32 v%d, 16, v%d" % (vU, vU), "v_add_f32 v%d, v%d, v%d" % (vM, vM, vU),
                "v_cvt_pk_bf16_f32 v%d, v%d, -v%d" % (vU, vU, vM),
                "v_cndmask_b32 v%d, v%d, v%d, %s" % (vQ + 0, vQ + 0, vU, sr(sM1, 2)), "v_cndmask_b32 v%d, v%d, v%d, %s" % (vQ + 6, vQ + 6, vU, sr(sM0, 2))]
        ee = [self.gu_epi(ACB + 16 * i, sS1 + i, vP + 4 * i, "ep1") for i in range(4)]
        put(rdk(8)); put(rdk(7))
        for i in range(3): put(self.vdma(i))
        put(ee[0])
        fs(3)
        A.wait(ds=["k8"]); put(qk(8, vS[1]))
        put(ee[1]); put(ee[2][:6])
        fs(4)
        put(mx(True, vS[1])); put(setm)
        put(ee[2][6:8])
        fs(5)
        put(qk(8, vS[0]))
        put(ee[2][8:]); put(ee[3])
        put(self.poll(vF0, vAT, "fh0", "s%d" % sFB0))
        A("v_and_b32 v%d, 0xffff0000, v%d" % (vS2, vS2)); A("v_mul_f32 v%d, v%d, v%d" % (vS2, vS2, vS2))
        fs(6)
        self.stamp(9)
        X = {}
        def ax(t, it): X.setdefault(t, []).append(it)
        for i in range(12): ax(i * 8 // 12, self.act(i))
        X.setdefault(o.get("h1_t", 2), []).insert(0, [("W", ["ep1"], []), self.flagstore(sFH)])
        ax(1, [S("s_add_u32 s%d, s%d, %d", sFB0, sFB0, FLH1 - FLH0), rl(sL, "OST"), rl(sL + 1, "FO"), rl(sL + 2, "FB2")])
        ax(o.get("fh1_ld", 8), self.flagload(vF1, vAT, "fh1", "s%d" % sFB0))
        for i in range(4): ax([0, 2, 4, 5][i], self.kw_dma(9 + i))
        H1T = o.get("fh1_t", 7); H1K = o.get("fh1_k", 3)
        if H1K < 0:
            ax(H1T, self.poll(vF1, vAT, "fh1", "s%d" % sFB0))
            for i in range(4): ax(H1T + i // 2 if H1T < 8 else 8, self.act(12 + i))
        inreg = lambda k: 13 <= k < 13 + o.get('na', 16)
        def WK(k, T_):
            if inreg(k): return self.XF(T_, self.xs[k])
            return vr(vWK + (k % 2) * 8 + 4 * T_, 4)
        def rdw(k): return self.kw_read(k, lambda T_, j: vr(vWK + (k % 2) * 8 + 4 * T_ + 2 * j, 2))
        ax(8, [("W", ["kw0"], [])] + rdw(0))
        PPB = [vPP, vPP + 8, 36]
        def passB(X, kread):
            def pvm(n): return [mf32(vO, vr(vV + 8 * (n % 2), 4), vr(PPB[n % 3], 4), "0" if n == 0 else None), mf32(vO, vr(vV + 8 * (n % 2) + 4, 4), vr(PPB[n % 3] + 4, 4))]
            for n in range(10):
                buf = vS[n % 2]; pp = PPB[n % 3]
                mm = qk(ORD[n + 1], vS[(n + 1) % 2]) if n + 1 < 9 else []
                pv = pvm(n - 1) if n >= 3 else []
                if o.get("finep") == 2 and kread: self.stamp(32 + n, True)
                A.wait(ds=(["v%d" % (n - 1)] if pv else []) + (["k%d" % ORD[n + 1]] if mm and kread else []))
                if n == 9:
                    put(pv); break
                if pv: A(pv[0])
                for i in range(4): A("v_exp_f32 v%d, v%d" % (buf + i, buf + i))
                if mm: A(mm[0])
                if kread and n + 2 < 9: put(rdk(ORD[n + 2]))
                for i in range(4, 8): A("v_exp_f32 v%d, v%d" % (buf + i, buf + i))
                if pv: A(pv[1])
                if n == 2: A.wait(ds=["v1"]); p0 = pvm(0) + pvm(1); A(p0[0])
                for i in range(4): A("v_cvt_pk_bf16_f32 v%d, v%d, v%d" % (pp + i, buf + 2 * i, buf + 2 * i + 1))
                if n >= 3: put(rdv(n))
                if mm: A(mm[1])
                for i in range(8, 16):
                    A("v_exp_f32 v%d, v%d" % (buf + i, buf + i))
                    if n == 2 and i in (10, 13): A(p0[1 if i == 10 else 2])
                    if n == 2 and i == 11: put(rdv(2)[:2])
                    if n == 2 and i == 14: put(rdv(2)[2:])
                put(X.get(n, []))
                if n == 2: A(p0[3])
                for i in range(4, 8): A("v_cvt_pk_bf16_f32 v%d, v%d, v%d" % (pp + i, buf + 2 * i, buf + 2 * i + 1))
                if n == 1:
                    if kread:
                        A("v_mov_b32 v%d, 0x3f803f80" % vWK); A("v_mov_b32 v%d, 0x3f803f80" % (vWK + 1))
                        A.wait(vm=["vv"])
                        for i in range(3): A.DS("ds_write_b64 v%d, %s offset:%d" % (vFX, vr(vWK, 2), XR + 24576 + i * 2048), "vfix")
                        A.wait(ds=["vfix"]); A("s_barrier")
                    put(rdv(0)); put(rdv(1))
        passB(X, True)
        lfb = self.lab("FB"); lok = self.lab("FOK")
        A("s_mov_b32 s%d, 0x4b800000" % sT0)
        A("v_cmp_nlt_f32 vcc, v%d, s%d" % (vO + 12, sT0) if False else "v_cmp_ngt_f32 vcc, s%d, v%d" % (sT0, vO + 12))
        A("s_nop 0")
        A("s_cmp_lg_u32 vcc_hi, 0")
        A("s_cbranch_scc1 %s" % lfb)
        A.label(lok)
        def fallback():
            st_ = A._state()
            A.label(lfb)
            A.wait_all_ds()
            put(qz); A("s_nop 1")
            for t in range(9):
                put(qk(t, vS[0])); A("s_nop 11"); put(mx(t == 0, vS[0]))
            put(setm); A("s_nop 1")
            put(qk(ORD[0], vS[0])); A("s_nop 11")
            fp = o.pop("finep", None)
            passB({}, False)
            if fp is not None: o["finep"] = fp
            A("s_nop 11"); A("s_branch %s" % lok)
        self.ool.append(fallback)
        sFO = sL + 1; sFB2 = sL + 2
        OE = [S("s_mov_b32 s%d, 0", sM0), S("s_mov_b32 s%d, -1", sM0 + 1), S("v_mov_b32 v%d, v%d", vM, vO + 12), S("v_mov_b32 v%d, v%d", vU, vO + 12),
              "s_nop 1", S("v_permlane32_swap_b32 v%d, v%d", vM, vU), S("v_rcp_f32 v%d, v%d", vM, vU), "s_nop 0", S("v_mul_f32 v%d, v%d, v%d", vM, vM, vS2),
              S("v_cndmask_b32 v%d, v%d, 0, %s", vU, vM, sr(sM0, 2))]
        for hh in range(2):
            OE += [S("v_mul_f32 v%d, v%d, v%d", vO + i, vM if i < 12 else vU, vO + i) for i in range(8 * hh, 8 * hh + 8)]
            OE += [S("v_cvt_pk_bf16_f32 v%d, v%d, v%d", vPP + i, vO + 2 * i, vO + 2 * i + 1) for i in range(4 * hh, 4 * hh + 4)]
            OE.append(("VM", "buffer_store_dwordx4 %s, v%d, %s, s%d offen offset:%d sc1" % (vr(vPP + 4 * hh, 4), vL16, sr(sWS, 4), sL, 1024 * hh), "ost"))
        self.stamp(10)
        A.C("K2")
        lk = self.lab()
        A("s_cmp_lt_u32 s%d, 28" % sIDX)
        A("s_cbranch_scc1 %s" % lk)
        A.br_begin(); put(OE); A.br_alt_end(); A.br_alt_end(); A.br_end()
        A("s_waitcnt vmcnt(0)")
        A("buffer_store_dwordx2 %s, v%d, %s, s%d offen sc1" % (vr(vN, 2), vFO, sr(sWS, 4), sFO))
        self.stamp_flush()
        A("s_branch L_END")
        A.label(lk)
        ACC = 128
        FOK = o.get("fo_k", 20); FOC = o.get("fo_c", 24); OFK = o.get("oflag_k", 7)
        asch = {k: [16 + k] for k in range(12)}
        if H1K >= 0:
            asch = {}; na = 12
            for k in range(H1K, 30):
                n = 0
                while na < 28 and n < (2 if na <= k + 10 else 1): asch.setdefault(k, []).append(na); na += 1; n += 1
        for i in range(8): asch.setdefault(FOC + i // 2, []).append(28 + i)
        wsch = o.get('wsch', {1: 29, 2: 30, 17: 31, 19: 32, 20: 33, 22: 34, 23: 35} if o.get('na', 16) == 16 else {1: 24, 2: 25, 9: 26, 11: 27, 13: 28, 14: 29, 15: 30, 16: 31, 17: 32, 18: 33, 19: 34, 20: 35})
        vXL, vOO, vT3, vR2 = 24, 32, 34, 44
        KL = o.get("kl", 32)
        pool = [64 + 4 * i for i in range(10)] + [112, 116]
        LW = {kk: [pool[kk - KL], pool[6 + kk - KL]] for kk in range(KL, 36)}
        def lastw(kk, T_):
            return [("DS", x[1], "lw%d_%d" % (kk, T_)) for x in self.kw_read(kk, lambda T2, j: vr(LW[kk][T2] + 2 * j, 2))[2 * T_:2 * T_ + 2]]
        for k in range(36):
            z = "0" if k == 0 else None
            nxt = k < 35 and not inreg(k + 1)
            if k < KL: A.wait(vm=["ka%d" % k] + (["kw%d" % (k + 1)] if nxt else []), ds=["kr%d" % k])
            r = rdw(k + 1) if nxt else []
            ex = []
            if k < 2: ex += OE[:23] if k == 0 else OE[23:]
            if k == H1K: ex += self.poll(vF1, vAT, "fh1", "s%d" % sFB0)
            for w_ in ([wsch[k]] if isinstance(wsch.get(k), int) else wsch.get(k, [])): ex.append(self.kw_dma(w_))
            if k == OFK: ex.append([("W", ["ost"], []), self.flagstore(sFO)])
            if k == FOK: ex.append(self.flagload(vF2, vVT, "fo", "s%d" % sFB2))
            if k == FOC: ex.append(self.poll(vF2, vVT, "fo", "s%d" % sFB2))
            for a_ in asch.get(k, []): ex.append(self.act(a_))
            if k == 13: ex.append("s_load_dwordx2 s[%d:%d], s[0:1], 56" % (sOUT, sOUT + 1))
            if k == 18: ex.append([A.wait_all_ds, S("s_mov_b32 s%d, 1835008", sOUT + 2), S("s_mov_b32 s%d, 0x20000", sOUT + 3)])
            if k == 19:
                ex.append([S("v_lshrrev_b32 v%d, 3, v%d", vT3, vL), S("v_mul_u32_u24 v%d, 896, v%d", vT3 + 2, vT3), S("v_and_b32 v%d, 7, v%d", vT3 + 1, vL),
                           S("v_lshl_add_u32 v%d, v%d, 4, v%d", vOO, vT3 + 1, vT3 + 2), S("v_add_u32 v%d, %d, v%d", vOO + 1, 32 * 896, vOO), S("v_lshlrev_b32 v%d, 3, v%d", 46, vT3),
                           rl(sXO, "XO2"), rl(sM1, "RSK")])
            if k == 21:
                ex.append([("VM", S("buffer_load_dwordx4 %s, v%d, %s, s%d offen", vr(vXL + 4 * j, 4), vOO + j, sr(sX, 4), sXO), "xl") for j in range(2)]
                          + [("VM", S("buffer_load_dword v%d, v%d, %s, s%d offen offset:%d sc1", vR2 + j, 46, sr(sWS, 4), sM1, 256 * j), "xl") for j in range(2)])
            if k == 20:
                ex.append([S("v_bfe_u32 v%d, v%d, 4, 1", vT3, vL), S("v_and_b32 v%d, 15, v%d", vT3 + 1, vL), S("v_lshlrev_b32 v%d, 14, v%d", vT3, vT3),
                           S("v_lshl_add_u32 v%d, v%d, 8, v%d", vT3, vT3 + 1, vT3), S("v_add_u32 v%d, s%d, v%d", vT3, sXM, vT3), S("v_add_u32 v%d, %d, v%d", vT3, WR, vT3),
                           S("v_lshrrev_b32 v%d, 5, v%d", vT3 + 1, vL), S("v_and_b32 v%d, 7, v%d", vT3 + 2, vL), S("v_xor_b32 v%d, v%d, v%d", vT3 + 1, vT3 + 1, vT3 + 2)])
            if k == 22:
                ex.append(sum([[S("v_xor_b32 v%d, %d, v%d", vT3 + 3, 2 * i, vT3 + 1), S("v_lshl_add_u32 v%d, v%d, 4, v%d", vT3 + 6 + i, vT3 + 3, vT3)] for i in range(4)], []))
            if k == 23:
                ex.append([S("v_lshrrev_b32 v%d, 3, v%d", vT3, vL), S("v_lshlrev_b32 v%d, 1, v%d", vT3 + 1, vT3 + 2), S("v_xor_b32 v%d, v%d, v%d", vT3 + 1, vT3 + 1, vT3),
                           S("s_lshl_b32 s%d, s%d, 14", sT0, sA), S("s_lshl_b32 s%d, s%d, 11", sT1, sB), S("s_add_u32 s%d, s%d, s%d", sT0, sT0, sT1), S("s_add_u32 s%d, s%d, %d", sT0, sT0, WR),
                           S("v_lshlrev_b32 v%d, 8, v%d", vT3, vT3), S("v_lshl_add_u32 v%d, v%d, 4, v%d", vT3, vT3 + 1, vT3),
                           S("v_add_u32 v%d, s%d, v%d", vT3 + 4, sT0, vT3), S("v_xor_b32 v%d, 16, v%d", vT3 + 5, vT3 + 4)])
            if k == 26:
                ex.append([("W", ["xl"], [])] + [S("v_and_b32 v%d, 0xffff0000, v%d", vR2 + j, vR2 + j) for j in range(2)] + [S("v_mul_f32 v%d, v%d, v%d", vR2 + j, vR2 + j, vR2 + j) for j in range(2)]
                          + [S("v_rcp_f32 v%d, v%d", vR2 + j, vR2 + j) for j in range(2)])
            if k in (27, 28):
                j = k - 27
                ex.append(sum([[S("v_lshlrev_b32 v%d, 16, v%d", 48 + 8 * j + 2 * i, vXL + 4 * j + i), S("v_and_b32 v%d, 0xffff0000, v%d", 49 + 8 * j + 2 * i, vXL + 4 * j + i)] for i in range(4)], []))
            h = (len(ex) + 1) // 2
            if o.get("finep") == 3 and k < 28: self.stamp(32 + k, True)
            if o.get("finep") == 4 and k >= 8: self.stamp(32 + k - 8, True)
            if k == KL:
                wr = lambda T_, j: [("DS", "ds_write_b128 v%d, %s offset:%d" % (vT3 + 6 + i, vr(ACC + 32 * T_ + 16 * j + 4 * i, 4), j * 32768 + T_ * 128), "rw") for i in range(4)]
                ks_ = list(range(KL, 36)); n_ = len(ks_)
                w1r = [x for kk in ks_ for x in lastw(kk, 1)]
                for ti, (T_, j) in enumerate(((0, 0), (0, 1), (1, 0), (1, 1))):
                    wq = wr(*((0, 0), (0, 1), (1, 0))[ti - 1]) if ti else []
                    for i, kk in enumerate(ks_):
                        A.wait(vm=["ka%d" % kk], ds=["lw%d_%d" % (kk, T_)])
                        A(mf32(ACC + 32 * T_ + 16 * j, vr(LW[kk][T_], 4), self.AF(kk, j)))
                        if ti == 0: put(w1r[2 * i:2 * i + 2])
                        elif i >= n_ - 4: put(wq.pop(0))
                    put(wq)
                put(wr(1, 1))
                break
            if k == KL - 1: r = []; ex += [("W", ["kw35"], [])] + [x for kk in range(KL, 36) for x in lastw(kk, 0)]
            def isdma(x): return isinstance(x, list) and any(isinstance(y, str) and y.startswith("s_add_u32 m0") for y in x)
            fl = []
            for x in ex:
                if isinstance(x, list) and not isdma(x) and not any(isinstance(y, str) and "cbranch" in y for y in x): fl += x
                else: fl.append(x)
            def c_(x):
                if isinstance(x, list): return sum(c_(y) for y in x)
                if isinstance(x, tuple): return {"VM": 16, "DS": 8, "W": 4, "L": 0}[x[0]]
                return 5
            cap = [8, 8, 24, 20] if r else [24, 24, 24, 20]
            if k == 0: cap = [0, 0.01, 24, 20]
            tot = c_(fl); sc = max(1.0, tot / sum(cap)); gp = [[] for _ in range(4)]; gi = 0; used = 0.0; lim = cap[0] * sc
            for x in fl:
                while gi < 3 and used + c_(x) / 2 > lim: gi += 1; lim += cap[gi] * sc
                gp[gi].append(x); used += c_(x)
            A(mf32(ACC, WK(k, 0), self.AF(k, 0), z)); put(r[:2]); put(gp[0])
            A(mf32(ACC + 16, WK(k, 0), self.AF(k, 1), z)); put(r[2:]); put(gp[1])
            A(mf32(ACC + 32, WK(k, 1), self.AF(k, 0), z)); put(gp[2])
            A(mf32(ACC + 48, WK(k, 1), self.AF(k, 1), z)); put(gp[3])
            if k in (0, 6, 12, 18, 24, 30): self.stamp(16 + k // 6)
        self.stamp(12)
        A.C("reduce")
        A.wait(ds=["rw"]); A("s_barrier")
        self.stamp(11)
        vRD = 192
        for j in range(2):
            for w in range(4):
                for e in range(2):
                    A.DS("ds_read_b128 %s, v%d offset:%d" % (vr(vRD + j * 32 + w * 8 + e * 4, 4), vT3 + 4 + e, w * 4096 + j * 32768), "rr%d_%d" % (j, w))
        for j in range(2):
            b = vRD + j * 32; xb = 48 + 8 * j
            for w in range(1, 4):
                A.wait(ds=["rr%d_%d" % (j, w)])
                for i in range(0, 8, 2): A("v_pk_add_f32 %s, %s, %s" % (vr(b + i, 2), vr(b + i, 2), vr(b + 8 * w + i, 2)))
            for i in range(0, 8, 2): A("v_pk_fma_f32 %s, %s, %s, %s op_sel:[0,%d,0] op_sel_hi:[1,%d,1]" % (vr(xb + i, 2), vr(b + i, 2), vr(vR2, 2), vr(xb + i, 2), j, j))
            for i in range(4): A("v_cvt_pk_bf16_f32 v%d, v%d, v%d" % (b + i, xb + 2 * i, xb + 2 * i + 1))
            A.VM("buffer_store_dwordx4 %s, v%d, %s, s%d offen%s" % (vr(b, 4), vOO + j, sr(sOUT, 4), sXO, o.get("outfl", " sc1")))
        self.stamp(13); self.stamp_flush()

def generate(opts):
    global ROTK, ZDUM, MAPB
    MAPB = opts.get('mapb', 3)
    ZDUM = opts.get('zdum', 1)
    ROTK = opts.get('rotk', 0)
    g = G(opts); g.build()
    body, npad = pad_hazards(g.A.L, verbose=opts.get("verbose"))
    head = open("parallel_sum__sliding_block__glu_gated_bilinear__prompt.s.ref").read().split("; Override launch")[0]
    txt = head + "; @launch grid=(256,1,1) block=(256,1,1) lds=%d\n" % LDS_BYTES
    txt += '.amdgcn_target "amdgcn-amd-amdhsa--gfx950"\n.text\n.globl %s\n.p2align 8\n.type %s,@function\n%s:\n' % (KN, KN, KN)
    txt += "\n".join(("  " + l) if not l.endswith(":") else l for l in body) + "\n"
    txt += ".p2align 8\n.type L_TABLE,@object\nL_TABLE:\n" + "".join(".long " + ",".join(str(v) for v in r) + "\n" for r in table())
    txt += """.section .rodata,"a"
.p2align 6
.amdhsa_kernel %s
  .amdhsa_next_free_vgpr 512
  .amdhsa_next_free_sgpr 102
  .amdhsa_accum_offset 256
  .amdhsa_group_segment_fixed_size 0
  .amdhsa_kernarg_size 80
  .amdhsa_user_sgpr_count 2
  .amdhsa_user_sgpr_kernarg_segment_ptr 1
  .amdhsa_system_sgpr_workgroup_id_x 1
.end_amdhsa_kernel
""" % KN
    return txt, npad

if __name__ == "__main__":
    opts = {}
    out = "k10.s"
    for a in sys.argv[1:]:
        if "=" in a:
            k, v = a.split("=", 1); opts[k] = eval(v)
        else: out = a
    txt, npad = generate(opts)
    open(out, "w").write(txt)
    print("written", out, "lines", txt.count("\n"), "pad states", npad)
```

```python
import sys
from asmlib import Asm, pad_hazards

KN = "parallel_sum__sliding_block__glu_gated_bilinear__prompt_kernel"
FLQ, FLV, FLH0, FLH1, FLO = 0, 2048, 4096, 12288, 20480
RS = 32768
CSR = 65536
QKV = 0x40000
ACT = QKV + 64 * 168 * 512
WS_BYTES = ACT + 64 * 144 * 1024
STAMP = WS_BYTES
XR = 0
CSL = 65536
R5 = 49152
WR = 98304
LDS_BYTES = 163840
SPIN_MAX = 200000

def vr(a, n=1): return "v%d" % a if n == 1 else "v[%d:%d]" % (a, a + n - 1)
def ar(a, n=1): return "a%d" % a if n == 1 else "a[%d:%d]" % (a, a + n - 1)
def sr(a, n=1): return "s%d" % a if n == 1 else "s[%d:%d]" % (a, a + n - 1)

sW, sA, sB, sIDX, sSPIN = 3, 4, 5, 6, 7
sX, sWQKV, sG1, sG2, sWS, sWD, sWO, sOUT, sDBG = 8, 12, 16, 20, 24, 28, 32, 36, 40
sCS = 36
TB = 44
sG1O, sG2O, sG1S, sG1S3, sSF, sS0, sS1, sCO, sCSS, sCSO, sWB0, sWB1, sWB2, sAB0, sAB1, sAB2, sKS0, sMX, sM5, sKM = \
    [TB + i for i in (0, 1, 2, 3, 4, 6, 10, 14, 15, 16, 20, 21, 22, 23, 24, 25, 26, 29, 30, 31)]
sG1ST, sG1R, sG2R, sKWB = TB + 20, TB + 21, TB + 22, TB + 23
sPRD = 99
sT0, sT1, sT2, sT3 = 76, 77, 78, 79
sNON, sXO, sWO1, sXM, sWM, sG1Q, sACT, sM0, sM1 = 80, 82, 83, 84, 85, 86, 87, 88, 90
sL = 92
sXCD, sRB, sCG, sRT0 = 92, 93, 94, 95
STASH = ["FE", "FH", "FQ", "FO", "CST", "RSO", "RSC", "QO", "RSQ", "OST", "XO2", "RSK", "FB0", "FB2", "KF0", "KF1", "KF2", "RA", "ME", "MO", "ODD", "FXO", "QS", "G1STR"] + ["KW%d" % i for i in range(11)] + ["KA%d" % i for i in range(11)] + ["TG1", "TG2", "TW1"]
ROW = 81

ROTK = 1
ZDUM = 1
MAPB = 3
def table():
    rows = []
    for wg in range(256):
        xcd, idx = wg & 7, wg >> 3
        nb = MAPB; rb = ((xcd & ((1 << (4 - nb)) - 1)) << nb) + (idx & ((1 << nb) - 1)); cg = ((xcd >> (4 - nb)) << (5 - nb)) + (idx >> nb)
        isq = 12 <= cg <= 14
        gu0 = 2 * cg if cg < 12 else 27; gu1 = 2 * cg + 1 if cg < 12 else 12 + cg
        h = 2 * xcd + (idx & 1); ra = idx >> 1; odd = h & 1
        i2 = min(idx, 27); r64 = 4 * xcd + i2 // 7; cb = i2 % 7
        for w in range(4):
            a, b = w >> 1, w & 1
            rt = [4 * rb + (w ^ j) for j in range(2)]
            st1 = 2688 if isq else 3584
            ud = min(2 * cg - 8 + a, 20); uc = min(2 * cg - 8 + b, 20)
            tt = 2 * b + a
            t = {}
            t[0] = (ud if isq else gu0) * 128 + 32 * b * st1
            t[1] = gu1 * 128 + 32 * b * 3584
            t[2] = 16 * st1; t[3] = 48 * st1
            for j in range(2):
                t[4 + j] = QKV + rt[j] * 86016 + (2 * cg + b) * 2048
                for tl in range(2):
                    t[6 + 2 * tl + j] = (QKV + rt[j] * 86016 + (2 * uc + (a ^ tl)) * 2048) if isq else (ACT + rt[j] * 147456 + ((4 * gu0 + tt) ^ tl) * 1024)
                    if ZDUM and (cg == 15 or (cg == 14 and b == 1)): t[6 + 2 * tl + j] = 0x40000000
                    t[10 + 2 * tl + j] = ACT + rt[j] * 147456 + ((4 * gu1 + tt) ^ tl) * 1024
            line, ps = idx & 1, (idx >> 1) & 1
            half = ((xcd ^ (idx >> 2)) & 1) if MAPB == 3 else ((rb >> 2) ^ (rb >> 3)) & 1
            cq = isq and ps == 0
            if cq: cu = min(2 * cg - 8 + line, 20); col = cu * 128; unit = cu + 40; cstr = 2688
            else: g_ = gu0 if ps == 0 else gu1; col = g_ * 128; unit = g_ + 28 * line; cstr = 3584
            t[14] = col + (4 * half + w) * 56 * cstr; t[15] = 8 * cstr
            for tl in range(2):
                t[16 + tl] = CSR + ((uc + 40) * 2048 + (a ^ tl) * 512 if isq else gu0 * 2048 + (tt ^ tl) * 256)
                t[18 + tl] = CSR + gu1 * 2048 + (tt ^ tl) * 256
            ab = ACT + r64 * 2 * 147456
            rr = (i2 // 7 + cb) if ROTK else 0
            E_ = [6 * w + 2 * ((i + rr) % 3) for i in range(3)]
            L_ = [[6 * w + 1, 6 * w + 3, 6 * w + 5, 24 + w][(i + rr) % 4] for i in range(4)]
            O_ = [4 * w + (i + rr) % 4 for i in range(4)]
            kwb = [g_ * 64 * 896 + cb * 128 for g_ in E_ + L_] + [hh * 28 * 896 + cb * 128 for hh in O_]
            kab = [ab + g_ * 4096 for g_ in E_ + L_] + [ab + (112 + 2 * hh) * 1024 for hh in O_]
            t[20] = 64 * st1; t[21] = t[22] = t[23] = t[24] = t[25] = 0
            c0 = (7 * h) >> 1; kt = 4 * ra - 8 + 3 * w; qt = 4 * ra + w
            for i in range(3): t[26 + i] = QKV + max(kt + i, 0) * 86016 + c0 * 512
            t[29] = w * 12288; t[30] = R5 + w * 10240; t[31] = w * 6144
            fb = ((r64 >> 1) * 64 + 2 * (r64 & 1)) * 8
            s = dict(FE=(FLV + (rb * 16 + (cg - 12) * 4 + w) * 8) if isq else (FLH0 + ((rb * 16 + cg) * 4 + w) * 8), FH=FLH1 + ((rb * 16 + cg) * 4 + w) * 8,
                     FQ=FLQ + (rb * 16 + cg) * 8, FO=FLO + ((ra * 16 + h) * 4 + w) * 8,
                     CST=CSR + unit * 2048 + half * 1024 + b * 512 + a * 8, RSO=RS + (128 * rb + 8 * cg + 2 * w) * 8, RSC=RS + (rt[0] & ~1) * 256,
                     QO=QKV + qt * 86016 + c0 * 512, RSQ=RS + qt * 256, OST=ACT + (qt * 144 + 112 + 2 * h) * 1024,
                     XO2=(64 * r64 + 8 * w) * 896 + cb * 128, RSK=RS + (64 * r64 + 8 * w) * 8, FB0=FLH0 + fb + w * 96, FB2=FLO + fb + w * 128,
                     KF0=0x3f80 if kt < 0 else 0, KF1=0x3f80 if kt + 1 < 0 else 0, KF2=0x3f80 if kt + 2 < 0 else 0, RA=ra,
                     ME=0 if odd else 0xffffffff, MO=0xffffffff if odd else 0, ODD=odd, FXO=(0 if odd else 3 * 512 + 8) + w * 6144, QS=0x3e8b98d6 if cg < 7 else 0x3f800000, G1STR=st1)
            s['TG1'] = (ud if isq else gu0) * 128 + (28 * rb + 14 * b) * st1; s['TG2'] = gu1 * 128 + (28 * rb + 14 * b) * 3584; s['TW1'] = cg * 128 + (192 + 16 * rb + 4 * w) * 2688
            for i in range(11): s['KW%d' % i] = kwb[i]; s['KA%d' % i] = kab[i]
            rows.append([t[i] for i in range(32)] + [s[k] for k in STASH])
    return rows

vL, vL16 = 1, 2
vWD, vN, vFO, vG2D, vAO1, vST = 4, 6, 8, 9, 10, 11
vG1D2, vG2D2 = 90, 91
vXA, vW1A, vG1D = 12, 20, 21
vF0, vF1, vF2, vAT, vVT = 12, 13, 14, 16, 18
vS2 = 21
vG1A, vG2A, vAF, vVF, vSEL, vWF = 22, 24, 26, 27, 28, 32
vCSF, vMF, vCF, vCFF, vR, vT = 48, 52, 60, 76, 80, 84
vKA, vVA, vFX = 92, 93, 95
vQ, vTA, vKD, vP = 96, 104, 110, 112
vXD, vW1D = 112, 116
ACA, ACB, ACF = 128, 192, 192
vFT, vRSD, vDUM, vCO, vRO, vRD2, vCD, vCA = 224, 232, 252, 244, 248, 250, 254, 255
vMA, vMB = 128, 144
vXA2 = 176

def S(fmt, *a): return fmt % a

def icost(x):
    if isinstance(x, list): return sum(icost(y) for y in x)
    if isinstance(x, tuple):
        if x[0] == "L": return 0
        if x[0] == "W": return 4
        if x[0] == "VM": return 24 if "store" in x[1] else 16
        return 8
    if callable(x): return getattr(x, "cy", 24)
    if "mfma" in x: return 8
    if x.startswith(("v_permlane", "v_exp", "v_rcp", "v_sqrt")): return 8
    import re
    lit = any(abs(int(m_, 0)) > 64 for m_ in re.findall(r"(?<![\w\[:])(-?0x[0-9a-fA-F]+|-?\d+)(?![\w\]:.])", x.split(None, 1)[1] if " " in x else ""))
    four = x.startswith(("v_mul_f32", "v_mov_b32", "v_sub_f32", "v_add_f32", "v_and_b32", "v_xor_b32", "v_lshlrev", "v_lshrrev", "v_add_u32", "v_min_u32", "s_"))
    return 4 if four and not lit else 5.3

class G:
    def __init__(self, opts):
        self.o = opts; self.A = Asm(); self.nlab = 0; self.ool = []
    def lab(self, p="L"):
        self.nlab += 1; return "%s%d" % (p, self.nlab)
    def srd(self, d, ptr, size):
        A = self.A
        A("s_mov_b32 s%d, s%d" % (d, ptr)); A("s_and_b32 s%d, s%d, 0xffff" % (d + 1, ptr + 1))
        A("s_mov_b32 s%d, %d" % (d + 2, size)); A("s_mov_b32 s%d, 0x20000" % (d + 3))
    def stamp(self, i, light=False):
        if not self.o.get("stamps"): return
        if self.o.get("stamps") == 2 and i not in (0, 2, 6, 10, 12, 13): return
        if self.o.get("stamps") == 3 and i < 32 and i not in (0, 1, 2, 4, 6, 10, 13): return
        if i >= 32 and self.o.get("stamps") != 3: return
        A = self.A
        A("s_memtime s[100:101]"); A.wait_all_ds()
        A("v_writelane_b32 v0, s100, %d" % i)
        if not light:
            A("s_memrealtime s[100:101]"); A.wait_all_ds()
            A("v_writelane_b32 v3, s100, %d" % i)
    def stamp_flush(self):
        if not self.o.get("stamps"): return
        A = self.A
        A("s_lshl_b32 s100, s2, 2"); A("s_add_u32 s100, s100, s%d" % sW); A("s_lshl_b32 s100, s100, 9")
        A("s_add_u32 s100, s100, %d" % STAMP)
        A("v_lshlrev_b32 v2, 2, v%d" % vL)
        A("buffer_store_dword v0, v2, s[%d:%d], s100 offen" % (sWS, sWS + 3))
        A("buffer_store_dword v3, v2, s[%d:%d], s100 offen offset:256" % (sWS, sWS + 3))
    def spinlog(self, name):
        if not self.o.get("stamps"): return
        i = 24 + ["fq", "fv", "fh0", "fh1", "fo", "rs", "cs", "nonce"].index(name)
        self.A("v_writelane_b32 v0, s%d, %d" % (sSPIN, i))
    def put(self, x):
        A = self.A
        if callable(x): x()
        elif isinstance(x, list):
            for y in x: self.put(y)
        elif isinstance(x, tuple):
            if x[0] == "VM":
                tg = x[2] if len(x) > 2 else None
                import re as _re
                if self.o.get("dropvm") and _re.search(self.o["dropvm"], str(tg)): A.tag(tg)
                elif self.o.get("timevm") and _re.search(self.o["timevm"], str(tg)) and getattr(self, "ntv", 0) < 14:
                    n_ = getattr(self, "ntv", 0); self.ntv = n_ + 1
                    self.stamp(32 + 2 * n_, True); A.VM(x[1], tg); self.stamp(33 + 2 * n_, True)
                else: A.VM(x[1], tg)
            elif x[0] == "DS": A.DS(x[1], x[2] if len(x) > 2 else None)
            elif x[0] == "W": A.wait(vm=x[1], ds=x[2])
            elif x[0] == "L": A.label(x[1])
        else: A(x)
    def rl(self, dst, name): return "v_readlane_b32 s%d, v%d, %d" % (dst, vST, STASH.index(name))
    def flagload(self, voff, vt, tag, soff="0"):
        return ("VM", "buffer_load_dwordx2 %s, v%d, %s, %s offen sc1" % (vr(vt, 2), voff, sr(sWS, 4), soff), tag)
    def flagstore(self, soff):
        return ("VM", "buffer_store_dwordx2 %s, v%d, %s, s%d offen sc1" % (vr(vN, 2), vFO, sr(sWS, 4), soff))
    def spin(self, name, loads, check):
        ok = self.lab("OK"); sp = self.lab("SPIN")
        def slow():
            A = self.A
            A.label(sp)
            A("s_mov_b32 s%d, 0" % sSPIN)
            lp = sp + "L"; A.label(lp)
            A("s_sleep %d" % self.o.get("slp", 4))
            for l in loads: A(l[1])
            A("s_add_u32 s%d, s%d, 1" % (sSPIN, sSPIN))
            A("s_cmp_ge_u32 s%d, %d" % (sSPIN, self.o.get("spinmax", SPIN_MAX)))
            A("s_waitcnt vmcnt(0)")
            A("s_cbranch_scc1 %sX" % sp)
            for c in check: A(c); A("s_nop 1")
            A("s_cbranch_scc0 %s" % lp)
            A.label(sp + "X")
            self.spinlog(name)
            A("s_nop 4")
            A("s_branch %s" % ok)
        self.ool.append(slow)
        return [("W", [name], [])] + check[:-1] + [[check[-1], "s_cbranch_scc0 %s" % sp, ("L", ok)]]
    def poll(self, voff, vt, name, soff="0"):
        return self.spin(name, [self.flagload(voff, vt, name, soff)],
                         ["v_cmp_eq_u64 vcc, %s, %s" % (sr(sNON, 2), vr(vt, 2)), "s_cmp_eq_u64 vcc, exec"])
    def tagcheck(self, regs, t):
        o = []
        for i, r in enumerate(regs):
            if i == 0: o.append("v_xor_b32 v%d, s%d, v%d" % (t, sNON, r))
            else: o.append("v_bitop3_b32 v%d, v%d, s%d, v%d bitop3:0xbe" % (t, r, sNON, t))
        return o + ["v_cmp_eq_u32 vcc, 0, v%d" % t, "s_cmp_eq_u64 vcc, exec"]

    def XF(self, j, ks): return ar((j * 28 + ks) * 4, 4)
    def mf32(self, d, a_, b_, c=None): return "v_mfma_f32_32x32x16_bf16 %s, %s, %s, %s" % (vr(d, 16), a_, b_, c if c is not None else vr(d, 16))
    def mf16(self, d, a_, b_, c=None): return "v_mfma_f32_16x16x32_bf16 %s, %s, %s, %s" % (vr(d, 4), a_, b_, c if c is not None else vr(d, 4))
    def cfrag(self, dst, c, t):
        return ["v_cvt_pk_bf16_f32 v%d, v%d, v%d" % (t, c, c), "v_lshlrev_b32 v%d, 16, v%d" % (t, t),
                "v_sub_f32 v%d, v%d, v%d" % (t + 1, c, t), "v_cvt_pk_bf16_f32 v%d, v%d, v%d" % (dst, t, t + 1)]
    def qkv_epi(self, acc, vscale, soff, pk, tag):
        o = []
        for h in range(2):
            for i in range(8): o.append("v_mul_f32 v%d, v%d, v%d" % (acc + 8 * h + i, vscale, acc + 8 * h + i))
            for i in range(4): o.append("v_cvt_pk_bf16_f32 v%d, v%d, v%d" % (pk + 4 * h + i, acc + 8 * h + 2 * i, acc + 8 * h + 2 * i + 1))
        st = lambda h: ("VM", "buffer_store_dwordx4 %s, v%d, %s, s%d offen offset:%d sc1" % (vr(pk + 4 * h, 4), vL16, sr(sWS, 4), soff, 1024 * h), tag)
        sw = lambda r: "v_permlane32_swap_b32 v%d, v%d" % (r, r + 2)
        o += [sw(pk), sw(pk + 1), sw(pk + 4), st(0), sw(pk + 5), st(1)]
        return o
    def gu_epi(self, acc, soff, pk, tag):
        o = []
        for i in range(8): o.append("v_mul_f32 v%d, v%d, v%d" % (acc + i, acc + i, acc + 8 + i))
        for i in range(4): o.append("v_cvt_pk_bf16_f32 v%d, v%d, v%d" % (pk + i, acc + 2 * i, acc + 2 * i + 1))
        o.append(("VM", "buffer_store_dwordx4 %s, v%d, %s, s%d offen sc1" % (vr(pk, 4), vL16, sr(sWS, 4), soff), tag))
        return o

    def kw_loc(self, k):
        NA = self.o.get("na", 16)
        if 13 <= k <= 18: return ("X", k - 13)
        if 19 <= k < 13 + NA: return ("5", (k - 19) % 5)
        if k <= 4: return ("5", k)
        if k <= 12: return ("W", k - 5)
        return self.kw_loc(k - 13 - NA)
    def kw_off(self, k):
        r, i = self.kw_loc(k)
        if r == "W": return [2, 3, 0, 1][i // 2] * 16384 + (i % 2) * 2048
        return i * 2048
    def kw_dma(self, k):
        r, i = self.kw_loc(k)
        sm = {"X": sMX, "5": sM5, "W": sXM, "K": sKM}[r]
        grp, rows = (k // 4, 16 * (k % 4)) if k < 28 else (7 + (k - 28) // 2, 16 * (k % 2))
        srd_ = sWD if k < 28 else sWO
        if k in self.o.get("skipkw", []): return [lambda: self.A.tag("kw%d" % k)]
        def pre():
            if getattr(self, "kwg", None) != grp: self.A(self.rl(sKWB, "KW%d" % grp)); self.kwg = grp
        pre.wt = 0.5; pre.cy = 2
        return [pre, "s_add_u32 m0, s%d, %d" % (sm, self.kw_off(k) + (WR if r == "W" else 0)), "s_add_u32 s%d, s%d, %d" % (sT3, sKWB, rows * 896),
                ("VM", "buffer_load_dwordx4 v%d, %s, s%d offen lds" % (vWD, sr(srd_, 4), sT3), "kw%d" % k),
                ("VM", "buffer_load_dwordx4 v%d, %s, s%d offen offset:1024 lds" % (vWD + 1, sr(srd_, 4), sT3), "kw%d" % k)]
    def kw_read(self, k, dst):
        r, i = self.kw_loc(k); va = vTA + {"X": 0, "5": 2, "W": 4, "K": 0}[r]
        return [("DS", "ds_read_b64_tr_b16 %s, v%d offset:%d" % (dst(T, j), va + T, self.kw_off(k) + j * 1024), "kr%d" % k) for T in range(2) for j in range(2)]
    def kw_drain(self, k):
        x = self.xs[k]
        return [("W", ["kw%d" % k], [])] + self.kw_read(k, lambda T, j: ar((T * 28 + x) * 4 + 2 * j, 2))
    def AF(self, k, j):
        if k < 12: return self.XF(j, 16 + k)
        if k < 16: return ar(224 + (k - 12) * 8 + 4 * j, 4)
        if k < 26: return vr(24 + (k - 16) * 8 + 4 * j, 4)
        if k < 34: return vr(192 + (k - 26) * 8 + 4 * j, 4)
        return self.XF(j, 16 + k - 34)
    def act(self, k):
        o = []
        grp, i = (k // 4, k % 4) if k < 28 else (7 + (k - 28) // 2, k % 2)
        if i == 0: o += [self.rl(sT2, "KA%d" % grp), "s_nop 0", "s_mov_b32 s%d, s%d" % (sACT, sT2)]
        for j in range(2):
            o.append(("VM", "buffer_load_dwordx4 %s, v%d, %s, s%d offen offset:%d sc1" % (self.AF(k, j), vAO1 if j else vL16, sr(sWS, 4), sACT, i * 1024), "ka%d" % k))
        return o

    def build(self):
        A = self.A; o = self.o; put = self.put; rl = self.rl
        XF, mf32, mf16 = self.XF, self.mf32, self.mf16
        T = vT
        if o.get("stamps"): A("s_memrealtime s[98:99]")
        A("s_cmp_ge_u32 s2, 256"); A("s_cbranch_scc1 L_END")
        A("s_load_dwordx2 s[%d:%d], s[0:1], 0" % (sX, sX + 1)); A("s_load_dwordx2 s[%d:%d], s[0:1], 8" % (sWQKV, sWQKV + 1))
        A("v_lshrrev_b32 v3, 6, v0"); A("v_and_b32 v%d, 63, v0" % vL)
        A("v_readfirstlane_b32 s%d, v3" % sW)
        A("v_lshlrev_b32 v%d, 4, v%d" % (vL16, vL))
        A("s_and_b32 s%d, s2, 7" % sXCD); A("s_lshr_b32 s%d, s2, 3" % sIDX)
        A("s_getpc_b64 s[96:97]"); A.label("L_PFBASE")
        A("s_lshl_b32 s%d, s2, 2" % sT0); A("s_add_u32 s%d, s%d, s%d" % (sT0, sT0, sW)); A("s_mul_i32 s%d, s%d, %d" % (sT0, sT0, ROW * 4))
        A("s_add_u32 s%d, s%d, L_TABLE-L_PFBASE" % (sT0, sT0))
        A("s_add_u32 s%d, s96, s%d" % (sNON, sT0)); A("s_addc_u32 s%d, s97, 0" % (sNON + 1))
        A("v_min_u32 v%d, %d, v%d" % (vST, len(STASH) - 1, vL)); A("v_lshlrev_b32 v%d, 2, v%d" % (vST, vST))
        if o.get("early", 1):
            A.VM("global_load_dword v%d, v%d, s[%d:%d]" % (vDUM, vST, sNON, sNON + 1))
        A.VM("global_load_dword v%d, v%d, s[%d:%d] offset:128" % (vST, vST, sNON, sNON + 1), "stash")
        if o.get("codepf", 1):
            A("s_and_b32 s%d, s%d, 3" % (sT0, sIDX)); A("s_cmp_eq_u32 s%d, s%d" % (sT0, sW))
            l2 = self.lab(); A("s_cbranch_scc0 %s" % l2)
            A("s_lshl_b32 s%d, s%d, 13" % (sT0, sT0))
            A("v_lshlrev_b32 v%d, 7, v%d" % (T + 6, vL)); A("v_add_u32 v%d, s%d, v%d" % (T + 6, sT0, T + 6))
            A("v_min_u32 v%d, L_CEND-L_PFBASE, v%d" % (T + 6, T + 6))
            A("global_load_dword v%d, v%d, s[96:97]" % (vDUM, T + 6))
            A.label(l2)
        if o.get("padtest") == 1:
            for i in range(256): A("s_mov_b32 s98, 0x12345678")
        if o.get("padtest") == 2:
            A("s_mov_b32 s99, 0"); A.label("L_PADL")
            for i in range(31): A("s_mov_b32 s98, 0x12345678")
            A("s_add_u32 s99, s99, 1"); A("s_cmp_lt_u32 s99, 8"); A("s_cbranch_scc1 L_PADL")
        nb = MAPB
        A("s_and_b32 s%d, s%d, %d" % (sT0, sXCD, (1 << (4 - nb)) - 1)); A("s_lshl_b32 s%d, s%d, %d" % (sT0, sT0, nb)); A("s_and_b32 s%d, s%d, %d" % (sT1, sIDX, (1 << nb) - 1)); A("s_add_u32 s%d, s%d, s%d" % (sRB, sT0, sT1))
        A("s_lshr_b32 s%d, s%d, %d" % (sT0, sXCD, 4 - nb)); A("s_lshl_b32 s%d, s%d, %d" % (sT0, sT0, 5 - nb)); A("s_lshr_b32 s%d, s%d, %d" % (sT1, sIDX, nb)); A("s_add_u32 s%d, s%d, s%d" % (sCG, sT0, sT1))
        if nb != 3: A("s_mov_b32 s%d, s%d" % (sPRD, sRB))
        vR8, vSW = vCD, vCA
        A("v_lshrrev_b32 v%d, 3, v%d" % (vR8, vL)); A("v_lshrrev_b32 v%d, 4, v%d" % (T + 1, vL)); A("v_and_b32 v%d, 7, v%d" % (T + 2, vL))
        A("v_xor_b32 v%d, v%d, v%d" % (T + 3, T + 2, T + 1))
        A("v_mul_u32_u24 v%d, 896, v%d" % (T + 4, vR8))
        A("v_lshl_add_u32 v%d, v%d, 4, v%d" % (vXD, T + 3, T + 4))
        A("v_xor_b32 v%d, 64, v%d" % (vXD + 1, vXD))
        A("v_add_u32 v%d, %d, v%d" % (vXD + 3, 24 * 896 - 3072, vXD + 1))
        A("v_add_u32 v%d, %d, v%d" % (vXD + 1, 8 * 896 - 1024, vXD + 1))
        A("v_add_u32 v%d, %d, v%d" % (vXD + 2, 16 * 896 - 2048, vXD))
        A("s_lshl_b32 s%d, s%d, 2" % (sRT0, sRB)); A("s_add_u32 s%d, s%d, s%d" % (sRT0, sRT0, sW)); A("s_mul_i32 s%d, s%d, %d" % (sXO, sRT0, 32 * 896))
        A("s_lshl_b32 s%d, s%d, 12" % (sXM, sW))
        A("v_and_b32 v%d, 1, v%d" % (vSW, T + 1)); A("v_lshlrev_b32 v%d, 2, v%d" % (vSW, vSW)); A("v_xor_b32 v%d, v%d, v%d" % (vSW, vSW, T + 2))
        A("v_lshlrev_b32 v%d, 4, v%d" % (vSW, vSW))
        A("s_movk_i32 s%d, 2688" % sT2)
        A("v_mad_u32_u24 v%d, v%d, s%d, v%d" % (vW1D, vR8, sT2, vSW))
        A("v_add_u32 v%d, %d, v%d" % (vW1D + 1, 8 * 2688 - 1024, vW1D))
        A("v_add_u32 v%d, v%d, v%d" % (vWD, T + 4, vSW)); A("v_add_u32 v%d, %d, v%d" % (vWD + 1, 8 * 896 - 1024, vWD))
        A("s_mul_i32 s%d, s%d, %d" % (sWO1, sW, 16 * 2688)); A("s_lshl_b32 s%d, s%d, 7" % (sT0, sCG)); A("s_add_u32 s%d, s%d, s%d" % (sWO1, sWO1, sT0))
        A("s_lshl_b32 s%d, s%d, 11" % (sWM, sW)); A("s_add_u32 s%d, s%d, %d" % (sWM, sWM, WR))
        A("s_lshl_b32 s%d, s%d, 4" % (sT3, sRB)); A("s_add_u32 s%d, s%d, s%d" % (sT3, sT3, sCG)); A("s_lshl_b32 s%d, s%d, 2" % (sT3, sT3)); A("s_add_u32 s%d, s%d, s%d" % (sT3, sT3, sW))
        A("s_mul_i32 s%d, s%d, 1792" % (sM0, sT3))
        A("v_cmp_gt_u32 vcc, 56, v%d" % vL); A("v_mov_b32 v%d, 0x10000000" % (T + 5))
        A("s_lshr_b32 s%d, s%d, 1" % (sA, sW)); A("s_and_b32 s%d, s%d, 1" % (sB, sW))
        A("v_cndmask_b32 v%d, v%d, v%d, vcc" % (T + 5, T + 5, vL16))
        TLB = o.get("tlb", 9)
        if TLB >= 8:
            A("s_and_b32 s%d, s%d, 7" % (sT0, sIDX)); A("s_cmp_ge_u32 s%d, 3" % sT0); A("s_addc_u32 s%d, s%d, 0" % (sT1, sT0)); A("s_lshl_b32 s%d, s%d, 3" % (sT1, sT1))
            A("s_add_u32 s%d, s%d, 1" % (sT2, sW)); A("s_bitcmp0_b32 s%d, 1" % sT2); A("s_cselect_b32 s%d, 72, s%d" % (sT1, sT1))
            A("s_load_dwordx2 s[96:97], s[0:1], s%d" % sT1)
            A("s_mov_b32 s%d, 1605628" % sT2)
            for i, n_ in ((0, 1835008), (6, 1835008), (1, 1204224), (2, 401408), (7, 4)):
                A("s_cmp_eq_u32 s%d, %d" % (sT0, i)); A("s_cselect_b32 s%d, %d, s%d" % (sT2, n_ - 4, sT2))
            A("s_lshl_b32 s%d, s%d, 21" % (sT0, sT0))
            A("s_cmp_eq_u32 s%d, 0" % sW); A("s_cselect_b32 s%d, s%d, s%d" % (sT2, sT0, sT2))
            A("s_cmp_eq_u32 s%d, 1" % sW); A("s_cselect_b32 s%d, 0, s%d" % (sT2, sT2))
            A("s_cmp_eq_u32 s%d, 3" % sW); A("s_cselect_b32 s%d, %d, s%d" % (sT2, WS_BYTES - 128, sT2))
            A("v_mov_b32 v%d, s%d" % (vFT + 3, sT2))
        def sz(d, n): A("s_mov_b32 s%d, %d" % (d + 2, n)); A("s_mov_b32 s%d, 0x20000" % (d + 3))
        sz(sX, 1835008); sz(sWQKV, 1204224); sz(sWS, WS_BYTES + (1 << 20)); sz(sDBG, 256); sz(sWO, 401408); sz(sG2, 1605632)
        A("s_mov_b32 s%d, 0x20000" % (sG1 + 3)); A("s_mov_b32 s%d, 0x20000" % (sCS + 3))
        A("s_sub_u32 s%d, s%d, 12" % (sT0, sCG)); A("s_cmp_lt_u32 s%d, 3" % sT0); A("s_cselect_b32 s%d, 1, 0" % sG1Q); A("s_cselect_b32 s%d, s%d, s%d" % (sG1 + 2, sWQKV + 2, sG2 + 2))
        A("s_lshl_b32 s%d, s%d, 1" % (sT0, sCG)); A("s_add_u32 s%d, s%d, s%d" % (sT0, sT0, sA)); A("s_cmp_ge_u32 s%d, 29" % sT0); A("s_cselect_b32 s%d, 0, s%d" % (sG1 + 2, sG1 + 2))
        A("s_mul_i32 s%d, s%d, %d" % (sM1, sRT0, 6 * 2688)); A("s_lshl_b32 s%d, s%d, 7" % (sT1, sCG)); A("s_add_u32 s%d, s%d, s%d" % (sM1, sM1, sT1)); A("s_add_u32 s%d, s%d, %d" % (sM1, sM1, 64 * 2688))
        A("v_min_u32 v%d, 5, v%d" % (vFT, vL)); A("v_mul_u32_u24 v%d, 2688, v%d" % (vFT, vFT))
        A("v_lshlrev_b32 v%d, 28, v%d" % (vFO, vL))
        A("v_and_b32 v%d, 31, v%d" % (T, vL)); A("v_lshrrev_b32 v%d, 5, v%d" % (T + 1, vL))
        A("v_bfe_u32 v%d, v%d, 1, 3" % (T + 2, vL)); A("v_xor_b32 v%d, v%d, v%d" % (T + 2, T + 2, T + 1))
        A("v_lshlrev_b32 v%d, 7, v%d" % (T + 3, T)); A("v_add_u32 v%d, s%d, v%d" % (T + 3, sXM, T + 3))
        for s in range(4):
            A("v_xor_b32 v%d, %d, v%d" % (T + 4, 2 * s, T + 2))
            A("v_lshl_add_u32 v%d, v%d, 4, v%d" % (vXA + s, T + 4, T + 3))
            A("v_xor_b32 v%d, 4096, v%d" % (vXA + 4 + s, vXA + s))
        vB, vSG, vG = vG1A, vG1A + 1, vAF
        A("v_bfe_u32 v%d, v%d, 2, 2" % (T + 2, vL))
        A("v_lshl_add_u32 v%d, v%d, 3, v%d" % (T + 3, T + 1, T + 2))
        A("v_and_b32 v%d, 3, v%d" % (T + 4, vL)); A("v_lshlrev_b32 v%d, 3, v%d" % (T + 4, T + 4))
        A("v_lshl_add_u32 v%d, v%d, 7, v%d" % (T + 3, T + 3, T + 4))
        A("v_add_u32 v%d, %d, v%d" % (vB, WR, T + 3))
        A("v_and_b32 v%d, 2, v%d" % (T + 2, T + 2)); A("v_bfe_u32 v%d, v%d, 4, 1" % (vG, vL)); A("v_xor_b32 v%d, v%d, v%d" % (vSG, T + 2, vG))
        A("s_lshl_b32 s%d, s%d, 1" % (sT0, sB)); A("v_xor_b32 v%d, s%d, v%d" % (vFT + 1, sT0, vSG))
        A("v_lshl_add_u32 v%d, v%d, 5, v%d" % (vW1A, vFT + 1, vB))
        A("v_lshrrev_b32 v%d, 2, v%d" % (vFT + 1, vL)); A("v_xor_b32 v%d, v%d, v%d" % (vFT + 1, vFT + 1, vG)); A("v_and_b32 v%d, 1, v%d" % (vFT + 1, vFT + 1))
        A("v_and_or_b32 v%d, v%d, 3, v%d" % (vFT + 1, vL, vFT + 1))
        A("v_cmp_eq_u32 vcc, 0, v%d" % (vFT + 1)); A("v_mov_b32 v%d, 0x3f803f80" % (vFT + 2))
        A("v_add_u32 v%d, 147456, v%d" % (vAO1, vL16))
        for i in range(4): A("v_cndmask_b32 v%d, 0, v%d, vcc" % (vSEL + i, vFT + 2))

        A("s_waitcnt lgkmcnt(0)")
        if o.get("stamps"): A("v_mov_b32 v%d, s98" % vCO); A("s_memrealtime s[100:101]"); A("s_waitcnt lgkmcnt(0)"); A("v_mov_b32 v%d, s100" % (vCO + 1))
        def dma_x(s):
            out = []
            for h in range(2):
                it = ["s_add_u32 m0, s%d, %d" % (sXM, XR + (s % 4) * 16384), ("s_add_u32 s%d, s%d, 128" % (sXO, sXO)) if (s > 0 and h == 0) else "s_nop 0"]
                for i in (2 * h, 2 * h + 1):
                    it.append(("VM", "buffer_load_dwordx4 v%d, %s, s%d offen offset:%d%s lds" % (vXD + i, sr(sX, 4), sXO, 1024 * i, " nt" if s < o.get("ntx", 0) else ""), "x%d" % s))
                out.append(it)
            return out
        def dma_w1(s):
            return [["s_add_u32 m0, s%d, %d" % (sWM, s * 8192), ("s_add_u32 s%d, s%d, %d" % (sWO1, sWO1, 64 * 2688)) if s > 0 else "s_nop 0",
                     ("VM", "buffer_load_dwordx4 v%d, %s, s%d offen%s lds" % (vW1D, sr(sWQKV, 4), sWO1, " nt" if s < o.get("ntw", 0) else ""), "w%d" % s),
                     ("VM", "buffer_load_dwordx4 v%d, %s, s%d offen offset:1024%s lds" % (vW1D + 1, sr(sWQKV, 4), sWO1, " nt" if s < o.get("ntw", 0) else ""), "w%d" % s)]]
        NUP = 3; NU0 = 1
        if TLB == 9: A.VM("global_load_dword v%d, v%d, s[96:97]" % (vDUM, vFT + 3))
        put(dma_x(0) + dma_w1(0))
        if TLB == 8: A.VM("global_load_dword v%d, v%d, s[96:97]" % (vDUM, vFT + 3))
        A("s_load_dwordx2 s[%d:%d], s[0:1], 16" % (sWO, sWO + 1)); A("s_load_dwordx4 s[92:95], s[0:1], 32"); A("s_load_dwordx4 s[%d:%d], s[0:1], 48" % (sWD, sWD + 3))
        A("s_load_dwordx2 s[%d:%d], s[0:1], 64" % (sDBG, sDBG + 1)); A("s_load_dwordx2 s[%d:%d], s[0:1], 72" % (sWS, sWS + 1))
        A("s_load_dwordx16 s[44:59], s[%d:%d], 0" % (sNON, sNON + 1)); A("s_load_dwordx16 s[60:75], s[%d:%d], 64" % (sNON, sNON + 1))
        for j in range(2): A.VM("buffer_load_dwordx4 %s, v%d, %s, s%d offen offset:%d" % (vr(vRSD + 4 * j, 4), T + 5, sr(sX, 4), sM0, 896 * j), "rsd")
        A.VM("buffer_load_dword v%d, v%d, %s, s%d offen" % (vDUM, vFT, sr(sWQKV, 4), sM1))
        if o.get("stamps"):
            A("v_mov_b32 v0, 0"); A("v_mov_b32 v3, 0")
            A("v_readfirstlane_b32 s100, v%d" % vCO); A("v_readfirstlane_b32 s101, v%d" % (vCO + 1)); A("s_nop 3")
            A("v_writelane_b32 v3, s100, 22"); A("v_writelane_b32 v3, s101, 23")
        PRE = []
        if o.get("tlb", 9) == 7:
            PRE += [S("s_mov_b64 s[98:99], s[%d:%d]", sWD + 2, sWD + 3)]
        if o.get("tlb", 9) == 6:
            PRE += [S("s_and_b32 s%d, s%d, 7", sT0, sIDX), S("s_mov_b64 s[96:97], s[%d:%d]", sDBG, sDBG + 1), S("s_mov_b32 s%d, 4", sT1)]
            for i, (p_, n_) in enumerate(((sX, 1835008), (sWQKV, 1204224), (sWO, 401408), (92, 1605632), (94, 1605632), (sWD, 1605632), (sWD + 2, 1835008))):
                PRE.append([S("s_cmp_eq_u32 s%d, %d", sT0, i), S("s_cselect_b64 s[96:97], s[%d:%d], s[96:97]", p_, p_ + 1), S("s_cselect_b32 s%d, %d, s%d", sT1, n_, sT1)])
            PRE += [S("s_sub_u32 s%d, s%d, 4", sT1, sT1), [S("s_cmp_eq_u32 s%d, 2", sW), S("s_cselect_b32 s%d, s%d, 0", sT1, sT1)],
                    S("s_lshl_b32 s%d, s%d, 21", sT0, sT0), [S("s_cmp_eq_u32 s%d, 3", sW), S("s_cselect_b32 s%d, %d, s%d", sT0, WS_BYTES - 128, sT0)],
                    S("s_add_u32 s%d, s%d, 1", sT2, sW),
                    [S("s_bitcmp0_b32 s%d, 1", sT2), S("s_cselect_b64 s[96:97], s[%d:%d], s[96:97]", sWS, sWS + 1), S("s_cselect_b32 s%d, s%d, s%d", sT1, sT0, sT1)],
                    S("v_mov_b32 v%d, s%d", vFT, sT1), ("VM", S("global_load_dword v%d, v%d, s[96:97]", vDUM, vFT))]
        PRE += [S("s_mov_b32 s%d, 1605632", sWD + 2), S("s_mov_b32 s%d, 0x20000", sWD + 3),
                [S("s_cmp_eq_u32 s%d, 0", sA), S("s_cselect_b64 s[%d:%d], s[92:93], s[94:95]", sG2, sG2 + 1)],
                [S("s_cmp_eq_u32 s%d, 1", sG1Q), S("s_cselect_b64 s[%d:%d], s[%d:%d], s[%d:%d]", sG1, sG1 + 1, sWQKV, sWQKV + 1, sG2, sG2 + 1)],
                [S("s_bitcmp0_b32 s%d, 0", sIDX), S("s_cselect_b64 s[%d:%d], s[92:93], s[94:95]", sCS, sCS + 1)],
                S("s_lshr_b32 s%d, s%d, 1", sT0, sIDX),
                [S("s_andn2_b32 s%d, s%d, s%d", sT0, sG1Q, sT0), S("s_cselect_b64 s[%d:%d], s[%d:%d], s[%d:%d]", sCS, sCS + 1, sWQKV, sWQKV + 1, sCS, sCS + 1),
                 S("s_cselect_b32 s%d, s%d, s%d", sCS + 2, sWQKV + 2, sG2 + 2)]]
        def nonce():
            l1 = self.lab(); u = vFT + 8
            A("s_or_b32 s%d, s%d, s%d" % (sT3, sIDX, sW)); A("s_cmp_lg_u32 s%d, 0" % sT3); A("s_cbranch_scc1 %s" % l1)
            A("s_memrealtime s[98:99]"); A("s_waitcnt lgkmcnt(0)")
            A("s_and_b32 s%d, s98, 0x3fff" % sT3); A("s_lshl_b32 s%d, s98, 2" % sM1); A("s_and_b32 s%d, s%d, 0x3fff0000" % (sM1, sM1))
            A("s_or_b32 s%d, s%d, s%d" % (sT3, sT3, sM1)); A("s_or_b32 s%d, s%d, 1" % (sT3, sT3))
            A("s_lshr_b64 s[90:91], s[98:99], 28"); A("s_or_b32 s%d, s90, 0x80000000" % sM1)
            A("v_mov_b32 v%d, s%d" % (ACA, sT3)); A("v_mov_b32 v%d, s%d" % (ACA + 1, sM1)); A("v_mov_b32 v%d, 0" % (ACA + 2)); A("v_mov_b32 v%d, 0" % (ACA + 3))
            A("v_lshlrev_b32 v%d, 8, v%d" % (ACA + 4, vL))
            A("buffer_atomic_cmpswap_x2 %s, v%d, %s, 0 offen sc1" % (vr(ACA, 4), ACA + 4, sr(sDBG, 4)))
            A.label(l1)
        nonce.wt = 3
        self.stamp(0)
        def dma_g(g):
            p = g // 7; out = []
            so, vd, vd2, srd_ = (sG1O, vG1D, vG1D2, sG1) if p == 0 else (sG2O, vG2D, vG2D2, sG2)
            for i in range(2):
                it = ["s_add_u32 m0, s%d, %d" % (sXM, WR + (g % 4) * 16384 + i * 2048)]
                if i == 0 and g % 7 == 0: it.append("s_nop 0")
                elif p == 0: it.append("s_add_u32 s%d, s%d, s%d" % (so, so, sG1S if i > 0 else sG1S3))
                else: it.append("s_add_u32 s%d, s%d, %d" % (so, so, 16 * 3584 * (1 if i > 0 else 3)))
                it.append(("VM", "buffer_load_dwordx4 v%d, %s, s%d offen lds" % (vd, sr(srd_, 4), so), "g%d" % g))
                it.append(("VM", "buffer_load_dwordx4 v%d, %s, s%d offen offset:1024 lds" % (vd2, sr(srd_, 4), so), "g%d" % g))
                out.append(it); out.append([])
            return out
        W1SET = [((ks + 2) % 3) * 4 + 4 for ks in range(28)]
        def rd_x(ks):
            s, q = divmod(ks, 4)
            return [("DS", "ds_read_b128 %s, v%d offset:%d" % (XF(j, ks), vXA + 4 * j + q, XR + (s % 4) * 16384), "f%d" % ks) for j in range(2)]
        def rd_w1(ks):
            s, q = divmod(ks, 4); d = vWF + W1SET[ks]
            return [("DS", "ds_read_b64_tr_b16 %s, v%d offset:%d" % (vr(d + 2 * j, 2), vW1A, s * 8192 + (16 * q + 4 * j) * 128), "f%d" % ks) for j in range(2)]
        def rd_g(p, ks, t):
            s, q = divmod(ks, 4); g = p * 7 + s; d = vWF + (ks % 2) * 8 + t * 4
            va = (vG1A if p == 0 else vG2A) + t
            return [("DS", "ds_read_b64_tr_b16 %s, v%d offset:%d" % (vr(d + 2 * j, 2), va, (g % 4) * 16384 + (16 * q + 4 * j) * 128), "r%d_%d_%d" % (p, ks, t)) for j in range(2)]

        F = {}
        def add(p, ks, items): F.setdefault((p, ks), []).extend(items)
        def cnt(x):
            if isinstance(x, list): return sum(cnt(y) for y in x)
            if isinstance(x, tuple):
                if x[0] == "L": return 0
                if x[0] == "W": return 0.5
                if x[0] == "VM": return 3 if "store" in x[1] else 1.5
                return 1
            if callable(x): return getattr(x, "wt", 5)
            return 4 if "mfma" in x else 1
        def spread0(p, k0, k1, items):
            n = k1 - k0 + 1; tot = cnt(items); i = 0; used = 0
            for x in items:
                while i < n - 1 and used + cnt(x) / 2 > tot * (i + 1) / n: i += 1
                add(p, k0 + i, [x]); used += cnt(x)
        DEF = []
        def spread(p, k0, k1, items):
            if p < 0 or not o.get("capsp", 1): spread0(p, k0, k1, items)
            else: DEF.append((p, k0, k1, items))
        def room(p, ks):
            q = ks % 4; own = (p == 0) or ks <= 14
            c = 56 - (20 if q == 2 else 0) - (43 if own and q in (1, 3) else 0)
            if o.get('bar2', 0):
                G_ = 28 * p + ks; c = 60 - (20 if G_ % 8 == 6 else 0) - (43 if (G_ - 7) % 8 < 4 and G_ < 43 else 0)
            ex_ = F.get((p, ks), [])
            c += 32 * sum(1 for x in ex_ if isinstance(x, str) and "32x32x16" in x)
            return c - icost(ex_)
        def place(p, k0, k1, items, addf=None, roomf=None):
            addf = addf or (lambda ks, x: add(p, ks, [x])); roomf = roomf or (lambda ks: room(p, ks))
            tot = icost(items); r = [roomf(k) for k in range(k0, k1 + 1)]
            lo, hi = -200.0, 200.0
            for _ in range(30):
                mid = (lo + hi) / 2
                if sum(max(0.0, x + mid) for x in r) > tot: hi = mid
                else: lo = mid
            w = [max(0.0, x + hi) for x in r]; i = 0; used = 0.0; lim = w[0]
            for x in items:
                c = icost(x)
                while i < len(w) - 1 and used + c / 2 > lim: i += 1; lim += w[i]
                addf(k0 + i, x); used += c
        P1 = -1
        a0, b0 = vRSD, vRSD + 4
        RSt = [("W", ["rsd", "stash"], []), S("s_mov_b32 s%d, 0x3f803f80", sT0)]
        for i in range(4):
            for (acc, x, y) in ((T, a0 + i, None), (T + 1, b0 + i, None), (T + 2, a0 + i, a0 + i), (T + 3, b0 + i, b0 + i)):
                RSt.append(S("v_dot2_f32_bf16 v%d, v%d, %s, %s", acc, x, ("s%d" % sT0) if y is None else ("v%d" % y), "0" if i == 0 else "v%d" % acc))
        dpp = lambda n: S("v_add_f32_dpp v%d, v%d, v%d row_ror:%d row_mask:0xf bank_mask:0xf", T, T, T, n)
        RSt += [S("v_and_b32 v%d, 31, v%d", vFT, vL), S("v_lshlrev_b32 v%d, 27, v%d", vRO, vFT), S("v_lshrrev_b32 v%d, 5, v%d", vFT + 1, vL),
                S("v_permlane32_swap_b32 v%d, v%d", T, T + 1), S("v_permlane32_swap_b32 v%d, v%d", T + 2, T + 3),
                S("v_add_f32 v%d, v%d, v%d", T, T, T + 1), S("v_add_f32 v%d, v%d, v%d", T + 2, T + 2, T + 3),
                S("v_lshl_add_u32 v%d, v%d, 3, v%d", vRO, vFT + 1, vRO), S("v_mov_b32 v%d, 0", vRO + 1),
                S("v_permlane16_swap_b32 v%d, v%d", T, T + 2), S("v_add_f32 v%d, v%d, v%d", T, T, T + 2),
                rl(sL, "RSO"), S("s_mov_b32 s%d, 0xffff", sT1), dpp(8), "s_nop 1", dpp(4), rl(sL + 3, "RA"), rl(sL + 4, "ODD"), dpp(2),
                rl(sL + 5, "FXO"), S("v_mov_b32 v%d, 0", vCFF + 1), dpp(1),
                S("v_mov_b32 v%d, v%d", T + 2, T), S("v_mov_b32 v%d, 0", vCFF + 2), S("v_mov_b32 v%d, 0", vCFF + 3), S("v_permlane16_swap_b32 v%d, v%d", T, T + 2),
                S("v_mul_f32 v%d, 0x3b124925, v%d", T + 1, T), S("v_mul_f32 v%d, 0x3b124925, v%d", T + 2, T + 2),
                S("v_fmac_f32 v%d, 0xc3e00000, v%d", T, T + 1), S("v_fmamk_f32 v%d, v%d, 0x3b124925, v%d", T, T, T + 1),
                S("v_fma_f32 v%d, -v%d, v%d, v%d", T + 2, T, T, T + 2), S("v_max_f32 v%d, 0, v%d", T + 2, T + 2),
                S("v_cvt_pk_bf16_f32 v%d, v%d, v%d", T, T, T + 2), S("v_and_b32 v%d, 0xffff0000, v%d", T + 2, T),
                S("v_add_f32 v%d, 0x3727c5ac, v%d", T + 2, T + 2), S("v_cvt_pk_bf16_f32 v%d, v%d, v%d", T + 2, T + 2, T + 2),
                S("v_lshlrev_b32 v%d, 16, v%d", T + 2, T + 2), S("v_sqrt_f32 v%d, v%d", T + 2, T + 2), S("v_mov_b32 v%d, 0", vMF + 1),
                S("v_cvt_pk_bf16_f32 v%d, v%d, v%d", T + 2, T + 2, T + 2), S("v_bfi_b32 v%d, s%d, v%d, v%d", vRD2, sT1, T, T + 2)]
        vL31, vHI = vFT, vFT + 1
        sRSO, sCSTR, sG1STR, sRA, sODD, sFXO = sL, sL + 1, sL + 2, sL + 3, sL + 4, sL + 5
        D = [S("s_lshl_b32 s%d, s%d, 5", sT0, sA), S("v_xor_b32 v%d, s%d, v%d", T, sT0, vSW), S("s_movk_i32 s%d, 3584", sT0),
             S("v_mad_u32_u24 v%d, v%d, s%d, v%d", vG1D, vR8, sG1STR, T), S("v_mad_u32_u24 v%d, v%d, s%d, v%d", vG2D, vR8, sT0, T),
             S("s_lshr_b32 s%d, s%d, 1", sT0, sG1S), S("s_sub_u32 s%d, s%d, 1024", sT0, sT0), S("v_add_u32 v%d, s%d, v%d", vG1D2, sT0, vG1D),
             S("v_add_u32 v%d, %d, v%d", vG2D2, 8 * 3584 - 1024, vG2D),
             S("v_min_u32 v%d, 55, v%d", vDUM + 1, vL), S("v_mul_lo_u32 v%d, s%d, v%d", vDUM + 1, sCSTR, vDUM + 1),
             S("v_mad_u32_u24 v%d, v%d, s%d, v%d", vCD, vR8, sCSTR, vSW),
             S("s_mul_i32 s%d, s%d, 14336", sT0, sA), S("s_add_u32 s%d, s%d, %d", sT0, sT0, (CSL - WR) & 0xffffffff), S("v_add_u32 v%d, s%d, v%d", vCA, sT0, vW1A),
             S("s_lshl_b32 s%d, s%d, 1", sT0, sB), S("s_add_u32 s%d, s%d, s%d", sT1, sT0, sA),
             S("v_xor_b32 v%d, s%d, v%d", T, sT1, vSG), S("v_lshl_add_u32 v%d, v%d, 13, v%d", T + 1, vG, vB),
             S("v_lshl_add_u32 v%d, v%d, 5, v%d", vG2A, T, T + 1), S("v_xor_b32 v%d, 32, v%d", vG2A + 1, vG2A),
             S("s_lshl_b32 s%d, s%d, 1", sT1, sA), S("s_xor_b32 s%d, s%d, s%d", sT1, sT1, sB), S("v_xor_b32 v%d, s%d, v%d", T, sT1, vSG),
             S("s_lshl_b32 s%d, s%d, 13", sT2, sB), S("v_add_u32 v%d, s%d, v%d", T + 1, sT2, vB),
             S("v_lshl_add_u32 v%d, v%d, 5, v%d", T, T, T + 1), S("v_xor_b32 v%d, 64, v%d", T + 1, T),
             S("v_lshlrev_b32 v%d, 9, v%d", T + 2, vHI), S("v_sub_u32 v%d, v%d, v%d", T + 2, vB, T + 2), S("v_lshl_add_u32 v%d, v%d, 5, v%d", T + 2, vSG, T + 2),
             S("v_add_u32 v%d, s%d, v%d", vTA + 4, sXM, T + 2), S("v_xor_b32 v%d, 64, v%d", vTA + 5, vTA + 4), S("v_subrev_u32 v%d, %d, v%d", T + 2, WR, T + 2),
             S("v_add_u32 v%d, s%d, v%d", vTA, sMX, T + 2), S("v_xor_b32 v%d, 64, v%d", vTA + 1, vTA),
             S("v_add_u32 v%d, s%d, v%d", vTA + 2, sM5, T + 2), S("v_xor_b32 v%d, 64, v%d", vTA + 3, vTA + 2),
             [S("s_cmp_eq_u32 s%d, 1", sG1Q), "s_cselect_b64 vcc, -1, 0"],
             S("v_cndmask_b32 v%d, v%d, v%d, vcc", vG1A, vG2A, T), S("v_cndmask_b32 v%d, v%d, v%d, vcc", vG1A + 1, vG2A + 1, T + 1),
             S("v_lshlrev_b32 v%d, 10, v%d", T, vHI), S("v_lshl_add_u32 v%d, v%d, 4, v%d", T, vL31, T),
             S("v_mul_u32_u24 v%d, %d, v%d", T + 1, 57344 - 256, vG), S("v_add_u32 v%d, v%d, v%d", vCO + 1, T, T + 1),
             S("v_cndmask_b32 v%d, v%d, v%d, vcc", vCO, vCO + 1, T),
             S("v_lshlrev_b32 v%d, 3, v%d", vCO + 2, vL31), S("s_lshl_b32 s%d, s%d, 8", sT0, sB), S("v_add_u32 v%d, s%d, v%d", vCO + 2, sT0, vCO + 2), S("v_xor_b32 v%d, 256, v%d", vCO + 3, vCO + 2),
             S("v_lshrrev_b32 v%d, 4, v%d", T, vL), S("v_min_u32 v%d, 2, v%d", T, T), S("v_sub_u32 v%d, s%d, v%d", T, sRA, T), S("v_max_i32 v%d, 0, v%d", T, T),
             S("v_and_b32 v%d, 15, v%d", T + 1, vL), S("v_lshlrev_b32 v%d, 7, v%d", T, T), S("v_lshl_add_u32 v%d, v%d, 3, v%d", vAF, T + 1, T),
             S("v_min_u32 v%d, 11, v%d", T + 1, T + 1), S("v_lshl_add_u32 v%d, v%d, 3, v%d", vVF, T + 1, T), S("v_add_u32 v%d, %d, v%d", vVF, FLV, vVF),
             S("v_lshlrev_b32 v%d, 6, v%d", vKD, vHI), S("v_xor_b32 v%d, v%d, v%d", vKD, vKD, vL16), S("v_xor_b32 v%d, 128, v%d", vKD + 1, vKD),
             S("s_lshl_b32 s%d, s%d, 11", sT0, sW), S("v_add_u32 v%d, s%d, v%d", vKA, sT0, vL16),
             S("v_bfe_u32 v%d, v%d, 4, 1", T, vL), S("v_and_b32 v%d, 3, v%d", T + 1, vL), S("v_lshl_add_u32 v%d, v%d, 2, v%d", T, T, T + 1),
             S("v_add_u32 v%d, s%d, v%d", T, sODD, T), S("v_bfe_u32 v%d, v%d, 1, 2", T + 1, T), S("v_and_b32 v%d, 1, v%d", T, T),
             S("v_bfe_u32 v%d, v%d, 2, 2", T + 3, vL), S("v_xor_b32 v%d, v%d, v%d", T + 4, vHI, T + 1), S("v_lshl_add_u32 v%d, v%d, 2, v%d", T + 3, T + 4, T + 3),
             S("v_lshlrev_b32 v%d, 9, v%d", T + 1, T + 1), S("v_lshl_add_u32 v%d, v%d, 4, v%d", T + 1, T + 3, T + 1), S("v_lshl_add_u32 v%d, v%d, 3, v%d", T + 1, T, T + 1),
             S("s_add_u32 s%d, s%d, %d", sT0, sT0, XR + 24576), S("v_add_u32 v%d, s%d, v%d", vVA, sT0, T + 1), S("v_xor_b32 v%d, 128, v%d", vVA + 1, vVA),
             S("v_lshl_add_u32 v%d, v%d, 4, s%d", vFX, vL31, sFXO),
             S("v_and_b32 v%d, 1, v%d", T, vL), S("v_lshlrev_b32 v%d, 3, v%d", T, T), S("v_bfe_u32 v%d, v%d, 1, 2", T + 1, vL),
             S("v_lshl_add_u32 v%d, v%d, 5, v%d", vFT + 4, T + 1, T), S("v_min_u32 v%d, 2, v%d", T + 2, T + 1), S("v_lshl_add_u32 v%d, v%d, 5, v%d", vFT + 2, T + 2, T),
             S("s_lshl_b32 s%d, s%d, 6", sT0, sW), S("s_sub_u32 s%d, 384, s%d", sT0, sT0), S("v_cmp_eq_u32 vcc, 3, v%d", T + 1), S("v_add_u32 v%d, s%d, v%d", T, sT0, T),
             S("v_mov_b32 v%d, 0", vMF + 3), S("v_cndmask_b32 v%d, v%d, v%d, vcc", vFT + 3, vFT + 4, T),
             S("v_mov_b32 v%d, 0", vMF + 5), S("v_mov_b32 v%d, 0", vMF + 7)]
        add(P1, 0, [nonce]); spread0(P1, 0, 1, PRE)
        spread(P1, 2, 26, [('W', ['stash'], []), rl(sL + 2, 'G1STR'), S('s_lshr_b32 s%d, s%d, 3', sL + 1, sCSS)] + D[:15] + RSt + D[15:])
        nload = ("VM", "buffer_load_dwordx2 %s, v%d, %s, 0 offen sc1" % (vr(vN, 2), vRO + 1, sr(sDBG, 4)), "nonce")
        add(P1, o.get("nonce_ld", 10), [nload])
        add(P1, o.get("nonce_ck", 19), self.spin("nonce", [nload], [S("v_readfirstlane_b32 s%d, v%d", sNON, vN), S("v_readfirstlane_b32 s%d, v%d", sNON + 1, vN + 1),
                     [S("s_min_u32 s%d, s%d, s%d", sSPIN, sNON, sNON + 1)][0].replace("s%d," % sSPIN, "s%d," % sM1, 1), S("s_cmp_lg_u32 s%d, 0", sM1)]) + [S("v_mov_b32 v%d, v%d", vRD2 + 1, vN),
                     ("VM", S("buffer_store_dwordx2 %s, v%d, %s, s%d offen sc1", vr(vRD2, 2), vRO, sr(sWS, 4), sRSO))])
        def cond_cs(items, inv=False):
            def f():
                l = self.lab()
                A("s_bitcmp1_b32 s%d, 2" % sIDX if MAPB == 3 else "s_bitcmp1_b32 s%d, 3" % sPRD); A("s_cbranch_scc%d %s" % (0 if inv else 1, l))
                A.br_begin(); put(items); A.br_alt_end(); A.br_alt_end(); A.br_end()
                A.label(l)
            f.wt = cnt(items) / 2 + 2
            return f
        CK = o.get("cs_dma", 16)
        if o.get("gtouch", 1): add(P1, CK, [cond_cs([("VM", S("buffer_load_dword v%d, v%d, %s, s%d offen%s", vDUM, vDUM + 1, sr(sCS, 4), sCO, " nt" if o.get("csnt") else ""))], True)])
        csd = [S("s_mul_i32 s%d, s%d, 7168", sT3, sW)]
        for i in range(7):
            csd += [S("s_add_u32 m0, s%d, %d", sT3, CSL + i * 1024), S("s_add_u32 s%d, s%d, s%d", sCO, sCO, sCSS) if i else "s_nop 0",
                    ("VM", S("buffer_load_dwordx4 v%d, %s, s%d offen%s lds", vCD, sr(sCS, 4), sCO, " nt" if o.get("csnt") else ""), "csd")]
        add(P1, CK, [cond_cs(csd[:10])]); add(P1, CK + 1, [cond_cs([csd[0]] + csd[10:])])
        vTC = vFT + 6
        if o.get("t_g1", 2) >= 0:
            add(P1, o.get("t_g1", 2), [[("W", ["stash"], []), rl(sM0, "TG1"), rl(sM0 + 1, "G1STR"), S("v_min_u32 v%d, 13, v%d", vTC, vL), "s_nop 0", S("v_mul_lo_u32 v%d, s%d, v%d", vTC + 1, sM0 + 1, vTC),
                                        ("VM", S("buffer_load_dword v%d, v%d, %s, s%d offen", vDUM, vTC + 1, sr(sG1, 4), sM0)),
                                        ]])
        if o.get("t_g2", -1) >= 0:
            add(P1, o.get("t_g2", -1), [[rl(sM0, "TG2"), S("v_min_u32 v%d, 13, v%d", vTC, vL), S("v_mul_u32_u24 v%d, 3584, v%d", vTC, vTC), "s_nop 1",
                                         ("VM", S("buffer_load_dword v%d, v%d, %s, s%d offen", vDUM, vTC, sr(sG2, 4), sM0))]])
        if o.get("tlb", 9) == 7:
            add(P1, o.get("tlb_ks", 15), [[S("s_and_b32 s%d, s%d, 7", sT3, sIDX), S("s_lshl_b32 s%d, s%d, 21", sT3, sT3), S("s_cmp_eq_u32 s%d, 1", sW), S("s_cselect_b32 s%d, %d, s%d", sT3, WS_BYTES - 128, sT3),
                S("s_cmp_eq_u32 s%d, 2", sW), S("s_cselect_b32 s%d, 0, s%d", sT3, sT3), S("s_cmp_eq_u32 s%d, 3", sW), S("s_cselect_b32 s%d, 1835004, s%d", sT3, sT3),
                S("s_cmp_lt_u32 s%d, 2", sW), S("s_cselect_b64 s[98:99], s[%d:%d], s[98:99]", sWS, sWS + 1), S("v_mov_b32 v%d, s%d", vFT + 7, sT3),
                ("VM", S("global_load_dword v%d, v%d, s[98:99]", vDUM, vFT + 7))]])
        def touch_wd():
            l = self.lab(); l3 = self.lab()
            A("s_cmp_eq_u32 s%d, 3" % sW); A("s_cbranch_scc1 %s" % l)
            A("v_min_u32 v%d, 24, v%d" % (vDUM + 1, vL)); A("v_lshlrev_b32 v%d, 7, v%d" % (vDUM + 1, vDUM + 1))
            A("s_cmp_eq_u32 s%d, 2" % sW); A("s_cbranch_scc1 %s" % l3)
            A("s_lshl_b32 s%d, s2, 1" % sT3); A("s_add_u32 s%d, s%d, s%d" % (sT3, sT3, sW)); A("s_mul_i32 s%d, s%d, 3136" % (sT3, sT3)); A("s_and_b32 s%d, s%d, 0xffffff80" % (sT3, sT3))
            A("buffer_load_dword v%d, v%d, %s, s%d offen" % (vDUM, vDUM + 1, sr(sWD, 4), sT3)); A("s_branch %s" % l)
            A.label(l3)
            A("s_mul_i32 s%d, s2, 1664" % sT3); A("v_min_u32 v%d, 1536, v%d" % (vDUM + 1, vDUM + 1))
            A("buffer_load_dword v%d, v%d, %s, s%d offen" % (vDUM, vDUM + 1, sr(sWO, 4), sT3))
            A.label(l)
        if o.get("pf_wd", 24) >= 0: add(P1, o.get("pf_wd", 24), [touch_wd])

        CSF1 = o.get("csf1", 22)
        if CSF1:
            tmp = [128 + 4 * i for i in range(7)]; vC2 = 156; vU_ = 160
            crd = [("DS", S("ds_read_b64_tr_b16 %s, v%d offset:%d", vr(tmp[s_] + 2 * j, 2), vCA, (16 * s_ + 4 * j) * 128), "csr") for s_ in range(7) for j in range(2)]
            cm = [("W", [], ["csr"])] + [mf16(vC2, vr(vSEL, 4), vr(tmp[s_], 4), "0" if s_ == 0 else None) for s_ in range(7)]
            cst = [rl(sCO, "CST"), S("v_lshrrev_b32 v%d, 5, v%d", vU_, vL), S("v_lshl_add_u32 v%d, v%d, 27, v%d", vU_, vU_, vL16),
                   S("v_mov_b32 v%d, v%d", vU_ + 3, vN)] + self.cfrag(vU_ + 2, vC2, vU_ + 4) + \
                  [("VM", S("buffer_store_dwordx2 %s, v%d, %s, s%d offen sc1", vr(vU_ + 2, 2), vU_, sr(sWS, 4), sCO))]
            add(P1, CSF1, [cond_cs(crd[:7])]); add(P1, CSF1 + 1, [cond_cs(crd[7:])]); add(P1, CSF1 + 2, [cond_cs(cm)]); add(P1, CSF1 + 4, [cond_cs(cst)])
        A.C("FIRST pass")
        if o.get("strip1"):
            for k_ in list(F):
                if k_[0] == P1: F[k_] = [x for x in F[k_] if not (isinstance(x, str) and not "readlane" in x and not "readfirst" in x and (o["strip1"] == 1 or "dot2" in x))]
        NU1 = o.get('nu1', 2)
        for s in range(NU0, NU1): put(dma_x(s) + dma_w1(s))
        A.wait_all_ds()
        A.wait(vm=["x0", "w0"]); A("s_barrier")
        self.stamp(1)
        put(rd_x(0) + rd_w1(0) + rd_x(1) + rd_w1(1))
        pend = [it for s in range(NU1, NUP) for it in dma_x(s) + dma_w1(s)]
        for ks in range(28):
            s, q = divmod(ks, 4); z = "0" if ks == 0 else None
            W = vr(vWF + W1SET[ks], 4)
            if o.get("finep", 0) == -1: self.stamp(32 + ks, True)
            A.wait(ds=["f%d" % ks])
            fill = F.get((P1, ks), []); tot = cnt(fill); g1 = []; g2 = []; u = 0
            for x in fill:
                (g1 if u < tot * 0.6 else g2).append(x); u += cnt(x)
            A(mf32(ACF, W, XF(0, ks), z))
            put(rd_x(ks + 2) if ks < 26 else rd_g(0, 0, 0) if ks == 27 else [])
            A(mf32(ACF + 16, W, XF(1, ks), z))
            put(rd_w1(ks + 2) if ks < 26 else rd_g(0, 0, 1) if ks == 27 else [])
            left = (1 - q) % 4 + 1
            if pend and ks < 26:
                for _ in range(-(-len(pend) // left)): put(pend.pop(0))
            if ks == 27: put(pend.pop(0))
            put(g1)
            if not o.get("nomf16"): A(mf16(vCSF, vr(vSEL, 4), W, z))
            put(g2)
            if q == 1 and s < 6:
                A.wait(vm=["x%d" % (s + 1), "w%d" % (s + 1)] + (["csd"] if CSF1 == ks + 1 else []))
                A("s_barrier")
                assert not pend
                pend = (dma_x(s + NUP) + dma_w1(s + NUP) if s + NUP < 7 else []) + (dma_g(s - 3) if s in (3, 4) else [])
                pend = [x for x in pend if x]
            if ks == 26:
                A.wait(vm=["g1" if o.get("bar2", 0) else "g0"], ds=["f27"])
                A("s_barrier")
                pend = [x for x in dma_g(2) + dma_g(3) if x]
            if ks == 27: pass
        self.stamp(2)

        self.bar_ds = {}; self.bar_vm = {}
        add(0, 0, [S("v_mov_b32 v%d, v%d", vF0 + i, vFT + 2 + i) for i in range(3)] + [S("v_mul_f32 v%d, 0.5, v%d", T + 2, vCSF)])
        add(0, 1, self.cfrag(vCFF, T + 2, T))
        if not CSF1:
            CSB = o.get("cs_bar", 3)
            if not CSF1: self.bar_vm[(0, CSB)] = ["csd"]
            tmp = [224, 228, 232, 236, 240, 112, 116]
            crd = [("DS", S("ds_read_b64_tr_b16 %s, v%d offset:%d", vr(tmp[s_] + 2 * j, 2), vCA, (16 * s_ + 4 * j) * 128), "csr") for s_ in range(7) for j in range(2)]
            add(0, CSB + 1, [cond_cs(crd[:4]), cond_cs(crd[4:8])]); add(0, CSB + 2, [cond_cs(crd[8:11]), cond_cs(crd[11:])])
            cm = [("W", [], ["csr"])] + [mf16(vCSF, vr(vSEL, 4), vr(tmp[s_], 4), "0" if s_ == 0 else None) for s_ in range(7)]
            add(0, CSB + 3, [cond_cs(cm)])
            cst = [rl(sCO, "CST"), S("v_lshrrev_b32 v%d, 5, v%d", 224, vL), S("v_lshl_add_u32 v%d, v%d, 27, v%d", 224, 224, vL16),
                   S("v_mov_b32 v%d, v%d", 229, vN)] + self.cfrag(228, vCSF, 230) + \
                  [("VM", S("buffer_store_dwordx2 v[228:229], v224, %s, s%d offen sc1", sr(sWS, 4), sCO))]
            add(0, CSB + 5, [cond_cs(cst[:4]), cond_cs(cst[4:])])
            self.bar_ds[(0, 11)] = ["csr"]
        RK = o.get("rs_ld", 3)
        vRL = 232
        add(0, RK - 2, [rl(sL, "RSC")])
        rld = [("VM", S("buffer_load_dwordx2 %s, v%d, %s, s%d offen sc1", vr(vRL + 2 * j, 2), vCO + 2 + j, sr(sWS, 4), sL), "rs") for j in range(2)]
        add(0, RK, rld)
        E0 = o.get("e0_ks", 10)
        rc = self.spin("rs", rld, self.tagcheck([vRL + 1, vRL + 3], T)) + [S("s_mov_b32 s%d, 0x01000100", sT1),
              rl(sT2, "QS")]
        for j in range(2):
            rc += [S("v_xor_b32 v%d, 0x8000, v%d", T, vRL + 2 * j), S("v_and_b32 v%d, 0xffff0000, v%d", T + 1, vRL + 2 * j), S("v_perm_b32 v%d, v%d, v%d, s%d", vMF + 4 * j, T, T, sT1),
                   S("v_rcp_f32 v%d, v%d", vR + j, T + 1), S("v_mov_b32 v%d, v%d", vMF + 4 * j + 2, vMF + 4 * j),
                   S("v_mul_f32 v%d, s%d, v%d", vR + 2 + j, sT2, vR + j)]
        spread(0, E0 - 1, E0 + 1, rc)
        add(0, E0 + 2, [mf32(ACF, vr(vCFF, 4), vr(vMF, 4)), mf32(ACF + 16, vr(vCFF, 4), vr(vMF + 4, 4))])
        spread(0, E0 + 3, E0 + o.get("e0_len", 11), self.qkv_epi(ACF, vR + 2, sSF, vP, "st0") + self.qkv_epi(ACF + 16, vR + 3, sSF + 1, vP + 8, "st0"))
        kss = o.get("kw_ks0", {13: 0, 14: 2, 15: 4, 16: 6, 17: 8, 18: 12, 19: 20, 20: 22, 21: 24, 22: 26, 23: 27})
        for k, ks in kss.items(): add(0, ks, [self.kw_dma(k)])
        cl = [("VM", S("buffer_load_dwordx4 %s, v%d, %s, s%d offen sc1", vr(vCF + 4 * i, 4), vCO + i // 2, sr(sWS, 4), sCSO + i), "cs") for i in range(4)]
        for i in range(4): add(0, o.get("cs_ld", 5) + (i if i < 2 else i + 1), [cl[i]])
        spread(0, o.get("cs_ck", 21), o.get("cs_ck", 21) + 2, self.spin("cs", cl, self.tagcheck([vCF + 1 + 2 * i for i in range(8)], T)))
        add(0, 25, [rl(sL, "FQ"), rl(sL + 1, "FE"), rl(sL + 2, "QO"), rl(sL + 3, "RSQ"), rl(sL + 4, "FB0"), rl(sL + 5, "FH")])
        sFQo, sFE, sQO, sRSQ = sL, sL + 1, sL + 2, sL + 3
        self.sFB0, self.sFH = sL + 4, sL + 5

        FQB = o.get("fq_bar", (0, 27))
        self.bar_vm[FQB] = ["st0"]
        def put_fq():
            l = self.lab()
            A("s_cmp_lg_u32 s%d, 0" % sW); A("s_cbranch_scc1 %s" % l)
            A("buffer_store_dwordx2 %s, v%d, %s, s%d offen sc1" % (vr(vN, 2), vFO, sr(sWS, 4), sFQo))
            A.label(l)
        put_fq.wt = 3; put_fq.cy = 14
        F.setdefault(FQB, []).insert(0, put_fq)
        def ep0(isq):
            E = {}
            def a2(ks, items): E.setdefault(ks, []).extend(items)
            r1 = [mf32(ACA + 32 * t + 16 * j, vr(vCF + 4 * t, 4), vr(vMF + 4 * j, 4)) for t in range(2) for j in range(2)]
            a2(0, r1[:2]); a2(1, r1[2:])
            tl = []
            for t in range(2):
                for j in range(2):
                    if isq: tl += self.qkv_epi(ACA + 32 * t + 16 * j, vR + j, sS0 + 2 * t + j, vP + 8 * j, "ep0")
                    else: tl += self.gu_epi(ACA + 32 * t + 16 * j, sS0 + 2 * t + j, vP + 4 * (2 * t + j), "ep0")
            if o.get("capsp", 1): place(1, 2, 9, tl, lambda ks, x: a2(ks, [x]))
            else:
                n = 8; per = -(-len(tl) // n)
                for i in range(n): a2(2 + i, tl[i * per:(i + 1) * per])
            return E
        add(1, o.get("ep0_flag_ks", 13), [("W", ["ep0"], []), self.flagstore(sFE)])
        dr = o.get("dr", {13: 5, 14: 6, 15: 7, 16: 8, 17: 9, 18: 10, 19: 11, 20: 12, 21: 13, 22: 14, 23: 15, 24: 21, 25: 22, 26: 23, 27: 24, 28: 25})
        NA = o.get('na', 16)
        dr = {k: v for k, v in dr.items() if k < 13 + NA}
        self.xs = {k: i for i, k in enumerate(sorted(dr, key=lambda k_: (dr[k_], k_)))}
        for k in dr: assert self.xs[k] < dr[k]
        if NA == 16: rf = o.get("rf", {k: dr[k - 5] + 1 for k in range(24, 29)}); rf.update(o.get("rf2", {k: dr[24 + k] + 1 for k in range(5)}))
        else: rf = o.get("rf2", {0: 16, 1: 19, 2: 21, 3: 25, 4: 26})
        for k, ks in sorted(dr.items(), key=lambda x: x[1]): add(1, ks, [self.kw_drain(k)])
        xb_ = max(dr[k] for k in range(13, 19)); xb_ = xb_ + (3 - xb_ % 4 if xb_ % 4 != 3 else 4)
        self.bar_ds[(1, xb_)] = ["kr%d" % k for k in range(13, 19)]
        assert xb_ <= o.get("fq_ck", 20) + 2
        for k, ks in rf.items():
            assert ks >= 10
            src = k - 5 if k >= 24 else (24 if NA == 16 else 19) + k
            assert ks > dr[src] and (k < 24 or dr[k] > ks)
            add(1, ks, [[("W", [], ["kr%d" % src])] + self.kw_dma(k)])
        for k, ks in o.get("wk", {5: 17, 6: 18, 7: 20, 8: 27}).items(): add(1, ks, [self.kw_dma(k)])
        add(1, o.get("fq_ld", 16), [self.flagload(vAF, vAT, "fq")])
        FQC = o.get("fq_ck", 20)
        add(1, FQC, self.poll(vAF, vAT, "fq"))
        def kvdma(i, sec, v0_, v1_, tag):
            return [S("s_add_u32 m0, s%d, %d", sKM, XR + (sec - 1) * 24576 + i * 2048), S("s_add_u32 s%d, s%d, %d", sKS0 + i, sKS0 + i, 56 * 512),
                    ("VM", S("buffer_load_dwordx4 v%d, %s, s%d offen sc1 lds", v0_, sr(sWS, 4), sKS0 + i), tag),
                    ("VM", S("buffer_load_dwordx4 v%d, %s, s%d offen offset:1024 sc1 lds", v1_, sr(sWS, 4), sKS0 + i), tag)]
        for i in range(3): add(1, FQC + 2 + i, [kvdma(i, 1, vL16, vL16, "kq")])
        add(1, FQC + 1, [S("v_and_b32 v%d, 31, v%d", vS2, vL), S("v_lshlrev_b32 v%d, 3, v%d", vS2, vS2)]
            + [("VM", S("buffer_load_dwordx4 %s, v%d, %s, s%d offen offset:%d sc1", vr(vQ + 4 * i, 4), vL16, sr(sWS, 4), sQO, 1024 * i), "kq") for i in range(2)]
            + [("VM", S("buffer_load_dword v%d, v%d, %s, s%d offen sc1", vS2, vS2, sr(sWS, 4), sRSQ), "kq")])
        self.vdma = lambda i: kvdma(i, 2, vKD, vKD + 1, "vv")
        add(1, o.get("fv_ld", 25), [self.flagload(vVF, vVT, "fv")])
        add(1, o.get("fh0_ld", 25), [self.flagload(vF0, vAT, "fh0", "s%d" % self.sFB0)])
        M = [S("v_lshrrev_b32 v%d, 5, v%d", T + 2, vL), S("v_and_b32 v%d, 31, v%d", T, vL),
             S("v_lshlrev_b32 v%d, 2, v%d", T + 2, T + 2), S("v_sub_u32 v%d, v%d, v%d", T, T, T + 2), S("v_mov_b32 v%d, 0xf149f2ca", T + 1)]
        cp = [sr(sM0, 2), sr(sM1, 2), sr(sS0, 2)]
        aj = lambda j: (j & 3) + 8 * (j >> 2)
        M += [S("v_cmp_gt_i32 %s, %d, v%d", cp[j % 3], aj(j), T) for j in range(2)]
        for j in range(16):
            if j + 2 < 16: M.append(S("v_cmp_gt_i32 %s, %d, v%d", cp[(j + 2) % 3], aj(j + 2), T))
            M.append(S("v_cndmask_b32 v%d, 0, v%d, %s", vMB + j, T + 1, cp[j % 3]))
            M.append(S("v_sub_f32 v%d, v%d, v%d", vMA + j, T + 1, vMB + j))
        M += [rl(sM0 + 1, "ME"), rl(sM1, "MO"), S("s_mov_b32 s%d, 0", sM0), S("s_mov_b32 s%d, 0", sM1 + 1),
              rl(sL, "KF0"), rl(sL + 1, "KF1"), rl(sL + 2, "KF2"), S("v_mov_b32 v%d, 0x3f803f80", T)]
        spread(1, o.get('m0', 10), o.get('m1', 25), M[:-8]); add(1, 26, M[-8:-4]); add(1, 27, M[-4:])

        def g2_step(p, ks, fill):
            nonlocal pend
            s, q = divmod(ks, 4); g = p * 7 + s; z = "0" if ks == 0 else None
            acc = ACA if p == 0 else ACB
            W0 = vr(vWF + (ks % 2) * 8, 4); W1 = vr(vWF + (ks % 2) * 8 + 4, 4)
            last = (p == 1 and ks == 27)
            r1 = "r%d_%d_1" % (p, ks)
            if p == o.get("finep", 0): self.stamp(32 + ks, True)
            B2 = o.get('bar2', 0)
            bar = (q == 2 and not (p == 1 and s == 6) and (not B2 or g % 2 == 1))
            A.wait(ds=["r%d_%d_%d" % (p, ks, 1 if o.get("onew", 1) else 0)])
            nx = (p, ks + 1) if ks < 27 else (p + 1, 0)
            willp = bool(pend and pend[0])
            base = [8, 4, (24 - 43) if willp else 24, -100 if bar else 20]
            tot = icost([x for x in fill if not (isinstance(x, str) and "32x32x16" in x)]); lo_, hi_ = -50.0, 300.0
            for _ in range(30):
                mid = (lo_ + hi_) / 2
                if sum(max(0.0, x + mid) for x in base) > tot: hi_ = mid
                else: lo_ = mid
            cap = [max(0.0, x + hi_) for x in base]
            gaps = [[] for _ in range(4)]; gi = 0; used = 0.0; lim = cap[0]
            for x in fill:
                c = 0 if (isinstance(x, str) and "32x32x16" in x) else icost(x)
                while gi < (2 if bar else 3) and used + c / 2 > lim: gi += 1; lim += cap[gi]
                gaps[gi].append(x); used += c
            A(mf32(acc, W0, XF(0, ks), z))
            if not last: put(rd_g(nx[0], nx[1], 0))
            put(gaps[0])
            A(mf32(acc + 16, W0, XF(1, ks), z))
            if not last: put(rd_g(nx[0], nx[1], 1))
            put(gaps[1])
            A.wait(ds=[r1])
            A(mf32(acc + 32, W1, XF(0, ks), z))
            if pend: put(pend.pop(0))
            put(gaps[2])
            A(mf32(acc + 48, W1, XF(1, ks), z))
            put(gaps[3])
            if bar:
                if o.get("finep") == 5: self.stamp(32 + 2 * g, True)
                A.wait(vm=["g%d" % (g + (2 if B2 else 1))] + self.bar_vm.get((p, ks + 1), []), ds=["r%d_%d_1" % nx] + self.bar_ds.get((p, ks + 1), []))
                if o.get("finep") == 6: self.stamp(32 + 2 * g, True)
                A("s_barrier")
                if o.get("finep") in (5, 6): self.stamp(33 + 2 * g, True)
                assert not any(pend)
                pend = dma_g(g + 4) if g + 4 < 14 else []
                if B2: pend = [x for x in (dma_g(g + 3) + dma_g(g + 4) if g + 4 < 14 else []) if x]
        for d in DEF: place(*d)
        if o.get("verbose"): print("room:", {k: int(room(*k)) for k in sorted(F) if k[0] >= 0})
        if o.get("verbose"): print("fill counts:", {k: cnt(v) for k, v in sorted(F.items())})
        if o.get("strip"):
            def flt(x):
                if isinstance(x, list): return [y for y in (flt(z) for z in x) if y is not None]
                if isinstance(x, str) and x.startswith("v_") and "mfma" not in x and "readlane" not in x: return None
                return x
            for k_ in list(F):
                if k_[0] >= 0: F[k_] = flt(F[k_])
            ep0_ = ep0
            ep0 = lambda isq: {k_: flt(v_) for k_, v_ in ep0_(isq).items()}
        A.C("G2 pass 0")
        for ks in range(28): g2_step(0, ks, F.get((0, ks), []))
        self.stamp(4)
        A.C("G2 pass 1")
        lq = self.lab("LQ"); lj = self.lab("LJ")
        NV = 10
        A.br_begin()
        A("s_cmp_eq_u32 s%d, 1" % sG1Q); A("s_cbranch_scc1 %s" % lq)
        pend0 = list(pend)
        for isq in (0, 1):
            if isq: A.label(lq)
            pend = list(pend0)
            E = ep0(isq)
            for ks in range(NV): g2_step(1, ks, E.get(ks, []) + F.get((1, ks), []))
            if not isq: A("s_branch %s" % lj)
            A.br_alt_end()
        A.br_end(); A.label(lj)
        self.stamp(5)
        for ks in range(NV, 28): g2_step(1, ks, F.get((1, ks), []))
        self.stamp(6)
        self.tail()
        A.label("L_END")
        A("s_endpgm")
        for f in self.ool: f()
        A.label("L_CEND")
        A("s_endpgm")

    def tail(self):
        A = self.A; o = self.o; put = self.put; mf32 = self.mf32; T = vT
        sFB0, sFH = self.sFB0, self.sFH; rl = self.rl
        KP = [192, 196, 200, 204, 44, 48, 52, 56, 60, 64, 68, 72, 76, 80, 84, 88, 28, 32]
        vS = [160, 176]; vO = 208; vV = 224; vPP = 240; vM = 22; vU = 23; vWK = 112
        A.C("ep1")
        fs = lambda i: self.stamp(32 + i, True) if o.get("finep") == 7 else None
        r1 = [mf32(ACB + 32 * t + 16 * j, vr(vCF + 8 + 4 * t, 4), vr(vMF + 4 * j, 4)) for t in range(2) for j in range(2)]
        fs(0)
        A(r1[0])
        A("v_mov_b32 v%d, 0xf14a" % vM)
        A.wait(vm=["kq"])
        fs(1)
        for i in range(3):
            A("v_mov_b32 v%d, s%d" % (T + 1, sL + i))
            A.DS("ds_write_b64 v%d, %s offset:%d" % (vFX, vr(T, 2), XR + i * 2048), "kfix")
            A(r1[1 + i])
        qz = ["v_cndmask_b32 v%d, v%d, 0, %s" % (vQ + 6, vQ + 6, sr(sM0, 2)), "v_cndmask_b32 v%d, v%d, 0, %s" % (vQ + 0, vQ + 0, sr(sM1, 2))]
        put(qz)
        A("v_cndmask_b32 v%d, v%d, v%d, %s" % (vQ + 7, vQ + 7, vM, sr(sM0, 2))); A("v_cndmask_b32 v%d, v%d, v%d, %s" % (vQ + 1, vQ + 1, vM, sr(sM1, 2)))
        put(self.poll(vVF, vVT, "fv"))
        A.wait(ds=["kfix"]); A("s_barrier")
        fs(2)
        ORD = [8, 7, 6, 5, 4, 3, 2, 1, 0]
        def rdk(t): return [("DS", "ds_read_b128 %s, v%d offset:%d" % (vr(KP[2 * t + i], 4), vKA, XR + t * 2048 + 1024 * i), "k%d" % t) for i in range(2)]
        def rdv(n):
            d = vV + 8 * (n % 2)
            return [("DS", "ds_read_b64_tr_b16 %s, v%d offset:%d" % (vr(d + 4 * s + 2 * j, 2), vVA + j, ORD[n] * 2048 + s * 256), "v%d" % n) for s in range(2) for j in range(2)]
        def qk(t, buf):
            c = vr(vMA, 16) if t == 0 else vr(vMB, 16) if t == 8 else "0"
            return [mf32(buf, vr(KP[2 * t], 4), vr(vQ, 4), c), mf32(buf, vr(KP[2 * t + 1], 4), vr(vQ + 4, 4))]
        def mx(first, buf):
            return [("v_max_f32 v%d, v%d, v%d" % (vM, buf, buf + 1)) if (first and i == 0) else
                    ("v_max3_f32 v%d, v%d, v%d, v%d" % (vM, buf + 2 * i, buf + 2 * i + 1, vM)) for i in range(8)]
        setm = ["v_mov_b32 v%d, v%d" % (vU, vM), "s_nop 1", "v_permlane32_swap_b32 v%d, v%d" % (vM, vU), "v_max_f32 v%d, v%d, v%d" % (vM, vM, vU),
                "v_cvt_pk_bf16_f32 v%d, -v%d, -v%d" % (vU, vM, vM), "v_lshlrev_b32 v%d, 16, v%d" % (vU, vU), "v_add_f32 v%d, v%d, v%d" % (vM, vM, vU),
                "v_cvt_pk_bf16_f32 v%d, v%d, -v%d" % (vU, vU, vM),
                "v_cndmask_b32 v%d, v%d, v%d, %s" % (vQ + 0, vQ + 0, vU, sr(sM1, 2)), "v_cndmask_b32 v%d, v%d, v%d, %s" % (vQ + 6, vQ + 6, vU, sr(sM0, 2))]
        ee = [self.gu_epi(ACB + 16 * i, sS1 + i, vP + 4 * i, "ep1") for i in range(4)]
        put(rdk(8)); put(rdk(7))
        for i in range(3): put(self.vdma(i))
        put(ee[0])
        fs(3)
        A.wait(ds=["k8"]); put(qk(8, vS[1]))
        put(ee[1]); put(ee[2][:6])
        fs(4)
        put(mx(True, vS[1])); put(setm)
        put(ee[2][6:8])
        fs(5)
        put(qk(8, vS[0]))
        put(ee[2][8:]); put(ee[3])
        put(self.poll(vF0, vAT, "fh0", "s%d" % sFB0))
        A("v_and_b32 v%d, 0xffff0000, v%d" % (vS2, vS2)); A("v_mul_f32 v%d, v%d, v%d" % (vS2, vS2, vS2))
        fs(6)
        self.stamp(9)
        X = {}
        def ax(t, it): X.setdefault(t, []).append(it)
        for i in range(12): ax(i * 8 // 12, self.act(i))
        X.setdefault(o.get("h1_t", 2), []).insert(0, [("W", ["ep1"], []), self.flagstore(sFH)])
        ax(1, [S("s_add_u32 s%d, s%d, %d", sFB0, sFB0, FLH1 - FLH0), rl(sL, "OST"), rl(sL + 1, "FO"), rl(sL + 2, "FB2")])
        ax(o.get("fh1_ld", 8), self.flagload(vF1, vAT, "fh1", "s%d" % sFB0))
        for i in range(4): ax([0, 2, 4, 5][i], self.kw_dma(9 + i))
        H1T = o.get("fh1_t", 7); H1K = o.get("fh1_k", 3)
        if H1K < 0:
            ax(H1T, self.poll(vF1, vAT, "fh1", "s%d" % sFB0))
            for i in range(4): ax(H1T + i // 2 if H1T < 8 else 8, self.act(12 + i))
        inreg = lambda k: 13 <= k < 13 + o.get('na', 16)
        def WK(k, T_):
            if inreg(k): return self.XF(T_, self.xs[k])
            return vr(vWK + (k % 2) * 8 + 4 * T_, 4)
        def rdw(k): return self.kw_read(k, lambda T_, j: vr(vWK + (k % 2) * 8 + 4 * T_ + 2 * j, 2))
        ax(8, [("W", ["kw0"], [])] + rdw(0))
        PPB = [vPP, vPP + 8, 36]
        def passB(X, kread):
            def pvm(n): return [mf32(vO, vr(vV + 8 * (n % 2), 4), vr(PPB[n % 3], 4), "0" if n == 0 else None), mf32(vO, vr(vV + 8 * (n % 2) + 4, 4), vr(PPB[n % 3] + 4, 4))]
            for n in range(10):
                buf = vS[n % 2]; pp = PPB[n % 3]
                mm = qk(ORD[n + 1], vS[(n + 1) % 2]) if n + 1 < 9 else []
                pv = pvm(n - 1) if n >= 3 else []
                if o.get("finep") == 2 and kread: self.stamp(32 + n, True)
                A.wait(ds=(["v%d" % (n - 1)] if pv else []) + (["k%d" % ORD[n + 1]] if mm and kread else []))
                if n == 9:
                    put(pv); break
                if pv: A(pv[0])
                for i in range(4): A("v_exp_f32 v%d, v%d" % (buf + i, buf + i))
                if mm: A(mm[0])
                if kread and n + 2 < 9: put(rdk(ORD[n + 2]))
                for i in range(4, 8): A("v_exp_f32 v%d, v%d" % (buf + i, buf + i))
                if pv: A(pv[1])
                if n == 2: A.wait(ds=["v1"]); p0 = pvm(0) + pvm(1); A(p0[0])
                for i in range(4): A("v_cvt_pk_bf16_f32 v%d, v%d, v%d" % (pp + i, buf + 2 * i, buf + 2 * i + 1))
                if n >= 3: put(rdv(n))
                if mm: A(mm[1])
                for i in range(8, 16):
                    A("v_exp_f32 v%d, v%d" % (buf + i, buf + i))
                    if n == 2 and i in (10, 13): A(p0[1 if i == 10 else 2])
                    if n == 2 and i == 11: put(rdv(2)[:2])
                    if n == 2 and i == 14: put(rdv(2)[2:])
                put(X.get(n, []))
                if n == 2: A(p0[3])
                for i in range(4, 8): A("v_cvt_pk_bf16_f32 v%d, v%d, v%d" % (pp + i, buf + 2 * i, buf + 2 * i + 1))
                if n == 1:
                    if kread:
                        A("v_mov_b32 v%d, 0x3f803f80" % vWK); A("v_mov_b32 v%d, 0x3f803f80" % (vWK + 1))
                        A.wait(vm=["vv"])
                        for i in range(3): A.DS("ds_write_b64 v%d, %s offset:%d" % (vFX, vr(vWK, 2), XR + 24576 + i * 2048), "vfix")
                        A.wait(ds=["vfix"]); A("s_barrier")
                    put(rdv(0)); put(rdv(1))
        passB(X, True)
        lfb = self.lab("FB"); lok = self.lab("FOK")
        A("s_mov_b32 s%d, 0x4b800000" % sT0)
        A("v_cmp_nlt_f32 vcc, v%d, s%d" % (vO + 12, sT0) if False else "v_cmp_ngt_f32 vcc, s%d, v%d" % (sT0, vO + 12))
        A("s_nop 0")
        A("s_cmp_lg_u32 vcc_hi, 0")
        A("s_cbranch_scc1 %s" % lfb)
        A.label(lok)
        def fallback():
            st_ = A._state()
            A.label(lfb)
            A.wait_all_ds()
            put(qz); A("s_nop 1")
            for t in range(9):
                put(qk(t, vS[0])); A("s_nop 11"); put(mx(t == 0, vS[0]))
            put(setm); A("s_nop 1")
            put(qk(ORD[0], vS[0])); A("s_nop 11")
            fp = o.pop("finep", None)
            passB({}, False)
            if fp is not None: o["finep"] = fp
            A("s_nop 11"); A("s_branch %s" % lok)
        self.ool.append(fallback)
        sFO = sL + 1; sFB2 = sL + 2
        OE = [S("s_mov_b32 s%d, 0", sM0), S("s_mov_b32 s%d, -1", sM0 + 1), S("v_mov_b32 v%d, v%d", vM, vO + 12), S("v_mov_b32 v%d, v%d", vU, vO + 12),
              "s_nop 1", S("v_permlane32_swap_b32 v%d, v%d", vM, vU), S("v_rcp_f32 v%d, v%d", vM, vU), "s_nop 0", S("v_mul_f32 v%d, v%d, v%d", vM, vM, vS2),
              S("v_cndmask_b32 v%d, v%d, 0, %s", vU, vM, sr(sM0, 2))]
        for hh in range(2):
            OE += [S("v_mul_f32 v%d, v%d, v%d", vO + i, vM if i < 12 else vU, vO + i) for i in range(8 * hh, 8 * hh + 8)]
            OE += [S("v_cvt_pk_bf16_f32 v%d, v%d, v%d", vPP + i, vO + 2 * i, vO + 2 * i + 1) for i in range(4 * hh, 4 * hh + 4)]
            OE.append(("VM", "buffer_store_dwordx4 %s, v%d, %s, s%d offen offset:%d sc1" % (vr(vPP + 4 * hh, 4), vL16, sr(sWS, 4), sL, 1024 * hh), "ost"))
        self.stamp(10)
        A.C("K2")
        lk = self.lab()
        A("s_cmp_lt_u32 s%d, 28" % sIDX)
        A("s_cbranch_scc1 %s" % lk)
        A.br_begin(); put(OE); A.br_alt_end(); A.br_alt_end(); A.br_end()
        A("s_waitcnt vmcnt(0)")
        A("buffer_store_dwordx2 %s, v%d, %s, s%d offen sc1" % (vr(vN, 2), vFO, sr(sWS, 4), sFO))
        self.stamp_flush()
        A("s_branch L_END")
        A.label(lk)
        ACC = 128
        FOK = o.get("fo_k", 20); FOC = o.get("fo_c", 24); OFK = o.get("oflag_k", 7)
        asch = {k: [16 + k] for k in range(12)}
        if H1K >= 0:
            asch = {}; na = 12
            for k in range(H1K, 30):
                n = 0
                while na < 28 and n < (2 if na <= k + 10 else 1): asch.setdefault(k, []).append(na); na += 1; n += 1
        for i in range(8): asch.setdefault(FOC + i // 2, []).append(28 + i)
        wsch = o.get('wsch', {1: 29, 2: 30, 17: 31, 19: 32, 20: 33, 22: 34, 23: 35} if o.get('na', 16) == 16 else {1: 24, 2: 25, 9: 26, 11: 27, 13: 28, 14: 29, 15: 30, 16: 31, 17: 32, 18: 33, 19: 34, 20: 35})
        vXL, vOO, vT3, vR2 = 24, 32, 34, 44
        KL = o.get("kl", 32)
        pool = [64 + 4 * i for i in range(10)] + [112, 116]
        LW = {kk: [pool[kk - KL], pool[6 + kk - KL]] for kk in range(KL, 36)}
        def lastw(kk, T_):
            return [("DS", x[1], "lw%d_%d" % (kk, T_)) for x in self.kw_read(kk, lambda T2, j: vr(LW[kk][T2] + 2 * j, 2))[2 * T_:2 * T_ + 2]]
        for k in range(36):
            z = "0" if k == 0 else None
            nxt = k < 35 and not inreg(k + 1)
            if k < KL: A.wait(vm=["ka%d" % k] + (["kw%d" % (k + 1)] if nxt else []), ds=["kr%d" % k])
            r = rdw(k + 1) if nxt else []
            ex = []
            if k < 2: ex += OE[:23] if k == 0 else OE[23:]
            if k == H1K: ex += self.poll(vF1, vAT, "fh1", "s%d" % sFB0)
            for w_ in ([wsch[k]] if isinstance(wsch.get(k), int) else wsch.get(k, [])): ex.append(self.kw_dma(w_))
            if k == OFK: ex.append([("W", ["ost"], []), self.flagstore(sFO)])
            if k == FOK: ex.append(self.flagload(vF2, vVT, "fo", "s%d" % sFB2))
            if k == FOC: ex.append(self.poll(vF2, vVT, "fo", "s%d" % sFB2))
            for a_ in asch.get(k, []): ex.append(self.act(a_))
            if k == 13: ex.append("s_load_dwordx2 s[%d:%d], s[0:1], 56" % (sOUT, sOUT + 1))
            if k == 18: ex.append([A.wait_all_ds, S("s_mov_b32 s%d, 1835008", sOUT + 2), S("s_mov_b32 s%d, 0x20000", sOUT + 3)])
            if k == 19:
                ex.append([S("v_lshrrev_b32 v%d, 3, v%d", vT3, vL), S("v_mul_u32_u24 v%d, 896, v%d", vT3 + 2, vT3), S("v_and_b32 v%d, 7, v%d", vT3 + 1, vL),
                           S("v_lshl_add_u32 v%d, v%d, 4, v%d", vOO, vT3 + 1, vT3 + 2), S("v_add_u32 v%d, %d, v%d", vOO + 1, 32 * 896, vOO), S("v_lshlrev_b32 v%d, 3, v%d", 46, vT3),
                           rl(sXO, "XO2"), rl(sM1, "RSK")])
            if k == 21:
                ex.append([("VM", S("buffer_load_dwordx4 %s, v%d, %s, s%d offen", vr(vXL + 4 * j, 4), vOO + j, sr(sX, 4), sXO), "xl") for j in range(2)]
                          + [("VM", S("buffer_load_dword v%d, v%d, %s, s%d offen offset:%d sc1", vR2 + j, 46, sr(sWS, 4), sM1, 256 * j), "xl") for j in range(2)])
            if k == 20:
                ex.append([S("v_bfe_u32 v%d, v%d, 4, 1", vT3, vL), S("v_and_b32 v%d, 15, v%d", vT3 + 1, vL), S("v_lshlrev_b32 v%d, 14, v%d", vT3, vT3),
                           S("v_lshl_add_u32 v%d, v%d, 8, v%d", vT3, vT3 + 1, vT3), S("v_add_u32 v%d, s%d, v%d", vT3, sXM, vT3), S("v_add_u32 v%d, %d, v%d", vT3, WR, vT3),
                           S("v_lshrrev_b32 v%d, 5, v%d", vT3 + 1, vL), S("v_and_b32 v%d, 7, v%d", vT3 + 2, vL), S("v_xor_b32 v%d, v%d, v%d", vT3 + 1, vT3 + 1, vT3 + 2)])
            if k == 22:
                ex.append(sum([[S("v_xor_b32 v%d, %d, v%d", vT3 + 3, 2 * i, vT3 + 1), S("v_lshl_add_u32 v%d, v%d, 4, v%d", vT3 + 6 + i, vT3 + 3, vT3)] for i in range(4)], []))
            if k == 23:
                ex.append([S("v_lshrrev_b32 v%d, 3, v%d", vT3, vL), S("v_lshlrev_b32 v%d, 1, v%d", vT3 + 1, vT3 + 2), S("v_xor_b32 v%d, v%d, v%d", vT3 + 1, vT3 + 1, vT3),
                           S("s_lshl_b32 s%d, s%d, 14", sT0, sA), S("s_lshl_b32 s%d, s%d, 11", sT1, sB), S("s_add_u32 s%d, s%d, s%d", sT0, sT0, sT1), S("s_add_u32 s%d, s%d, %d", sT0, sT0, WR),
                           S("v_lshlrev_b32 v%d, 8, v%d", vT3, vT3), S("v_lshl_add_u32 v%d, v%d, 4, v%d", vT3, vT3 + 1, vT3),
                           S("v_add_u32 v%d, s%d, v%d", vT3 + 4, sT0, vT3), S("v_xor_b32 v%d, 16, v%d", vT3 + 5, vT3 + 4)])
            if k == 26:
                ex.append([("W", ["xl"], [])] + [S("v_and_b32 v%d, 0xffff0000, v%d", vR2 + j, vR2 + j) for j in range(2)] + [S("v_mul_f32 v%d, v%d, v%d", vR2 + j, vR2 + j, vR2 + j) for j in range(2)]
                          + [S("v_rcp_f32 v%d, v%d", vR2 + j, vR2 + j) for j in range(2)])
            if k in (27, 28):
                j = k - 27
                ex.append(sum([[S("v_lshlrev_b32 v%d, 16, v%d", 48 + 8 * j + 2 * i, vXL + 4 * j + i), S("v_and_b32 v%d, 0xffff0000, v%d", 49 + 8 * j + 2 * i, vXL + 4 * j + i)] for i in range(4)], []))
            h = (len(ex) + 1) // 2
            if o.get("finep") == 3 and k < 28: self.stamp(32 + k, True)
            if o.get("finep") == 4 and k >= 8: self.stamp(32 + k - 8, True)
            if k == KL:
                wr = lambda T_, j: [("DS", "ds_write_b128 v%d, %s offset:%d" % (vT3 + 6 + i, vr(ACC + 32 * T_ + 16 * j + 4 * i, 4), j * 32768 + T_ * 128), "rw") for i in range(4)]
                ks_ = list(range(KL, 36)); n_ = len(ks_)
                w1r = [x for kk in ks_ for x in lastw(kk, 1)]
                for ti, (T_, j) in enumerate(((0, 0), (0, 1), (1, 0), (1, 1))):
                    wq = wr(*((0, 0), (0, 1), (1, 0))[ti - 1]) if ti else []
                    for i, kk in enumerate(ks_):
                        A.wait(vm=["ka%d" % kk], ds=["lw%d_%d" % (kk, T_)])
                        A(mf32(ACC + 32 * T_ + 16 * j, vr(LW[kk][T_], 4), self.AF(kk, j)))
                        if ti == 0: put(w1r[2 * i:2 * i + 2])
                        elif i >= n_ - 4: put(wq.pop(0))
                    put(wq)
                put(wr(1, 1))
                break
            if k == KL - 1: r = []; ex += [("W", ["kw35"], [])] + [x for kk in range(KL, 36) for x in lastw(kk, 0)]
            def isdma(x): return isinstance(x, list) and any(isinstance(y, str) and y.startswith("s_add_u32 m0") for y in x)
            fl = []
            for x in ex:
                if isinstance(x, list) and not isdma(x) and not any(isinstance(y, str) and "cbranch" in y for y in x): fl += x
                else: fl.append(x)
            def c_(x):
                if isinstance(x, list): return sum(c_(y) for y in x)
                if isinstance(x, tuple): return {"VM": 16, "DS": 8, "W": 4, "L": 0}[x[0]]
                return 5
            cap = [8, 8, 24, 20] if r else [24, 24, 24, 20]
            if k == 0: cap = [0, 0.01, 24, 20]
            tot = c_(fl); sc = max(1.0, tot / sum(cap)); gp = [[] for _ in range(4)]; gi = 0; used = 0.0; lim = cap[0] * sc
            for x in fl:
                while gi < 3 and used + c_(x) / 2 > lim: gi += 1; lim += cap[gi] * sc
                gp[gi].append(x); used += c_(x)
            A(mf32(ACC, WK(k, 0), self.AF(k, 0), z)); put(r[:2]); put(gp[0])
            A(mf32(ACC + 16, WK(k, 0), self.AF(k, 1), z)); put(r[2:]); put(gp[1])
            A(mf32(ACC + 32, WK(k, 1), self.AF(k, 0), z)); put(gp[2])
            A(mf32(ACC + 48, WK(k, 1), self.AF(k, 1), z)); put(gp[3])
            if k in (0, 6, 12, 18, 24, 30): self.stamp(16 + k // 6)
        self.stamp(12)
        A.C("reduce")
        A.wait(ds=["rw"]); A("s_barrier")
        self.stamp(11)
        vRD = 192
        for j in range(2):
            for w in range(4):
                for e in range(2):
                    A.DS("ds_read_b128 %s, v%d offset:%d" % (vr(vRD + j * 32 + w * 8 + e * 4, 4), vT3 + 4 + e, w * 4096 + j * 32768), "rr%d_%d" % (j, w))
        for j in range(2):
            b = vRD + j * 32; xb = 48 + 8 * j
            for w in range(1, 4):
                A.wait(ds=["rr%d_%d" % (j, w)])
                for i in range(0, 8, 2): A("v_pk_add_f32 %s, %s, %s" % (vr(b + i, 2), vr(b + i, 2), vr(b + 8 * w + i, 2)))
            for i in range(0, 8, 2): A("v_pk_fma_f32 %s, %s, %s, %s op_sel:[0,%d,0] op_sel_hi:[1,%d,1]" % (vr(xb + i, 2), vr(b + i, 2), vr(vR2, 2), vr(xb + i, 2), j, j))
            for i in range(4): A("v_cvt_pk_bf16_f32 v%d, v%d, v%d" % (b + i, xb + 2 * i, xb + 2 * i + 1))
            A.VM("buffer_store_dwordx4 %s, v%d, %s, s%d offen%s" % (vr(b, 4), vOO + j, sr(sOUT, 4), sXO, o.get("outfl", " sc1")))
        self.stamp(13); self.stamp_flush()

def generate(opts):
    global ROTK, ZDUM, MAPB
    MAPB = opts.get('mapb', 3)
    ZDUM = opts.get('zdum', 1)
    ROTK = opts.get('rotk', 0)
    g = G(opts); g.build()
    body, npad = pad_hazards(g.A.L, verbose=opts.get("verbose"))
    head = open("parallel_sum__sliding_block__glu_gated_bilinear__prompt.s.ref").read().split("; Override launch")[0]
    txt = head + "; @launch grid=(256,1,1) block=(256,1,1) lds=%d\n" % LDS_BYTES
    txt += '.amdgcn_target "amdgcn-amd-amdhsa--gfx950"\n.text\n.globl %s\n.p2align 8\n.type %s,@function\n%s:\n' % (KN, KN, KN)
    txt += "\n".join(("  " + l) if not l.endswith(":") else l for l in body) + "\n"
    txt += ".p2align 8\n.type L_TABLE,@object\nL_TABLE:\n" + "".join(".long " + ",".join(str(v) for v in r) + "\n" for r in table())
    txt += """.section .rodata,"a"
.p2align 6
.amdhsa_kernel %s
  .amdhsa_next_free_vgpr 512
  .amdhsa_next_free_sgpr 102
  .amdhsa_accum_offset 256
  .amdhsa_group_segment_fixed_size 0
  .amdhsa_kernarg_size 80
  .amdhsa_user_sgpr_count 2
  .amdhsa_user_sgpr_kernarg_segment_ptr 1
  .amdhsa_system_sgpr_workgroup_id_x 1
.end_amdhsa_kernel
""" % KN
    return txt, npad

if __name__ == "__main__":
    opts = {}
    out = "k10.s"
    for a in sys.argv[1:]:
        if "=" in a:
            k, v = a.split("=", 1); opts[k] = eval(v)
        else: out = a
    txt, npad = generate(opts)
    open(out, "w").write(txt)
    print("written", out, "lines", txt.count("\n"), "pad states", npad)
```
